```python
import torch

def _softmax(x, axis=-1):
    return torch.softmax(x, dim=axis)
def _gelu(x):
    return torch.nn.functional.gelu(x, approximate="tanh")
def _silu(x):
    return torch.nn.functional.silu(x)
def _sigmoid(x):
    return torch.sigmoid(x)
def _layernorm(x, axis=-1, eps=1e-5):
    m = x.mean(dim=axis, keepdim=True)
    v = x.var(dim=axis, keepdim=True, unbiased=False)
    return (x - m) / torch.sqrt(v + eps)
def _scatter_add(tgt, idx, src, axis=0):
    return tgt.clone().index_add_(axis, idx, src)
def _segment_sum(src, seg, n):
    out = torch.zeros((n,) + src.shape[1:], dtype=src.dtype)
    return out.index_add_(0, seg, src)
def _pad(x, pw):
    flat = tuple(v for pair in reversed(pw) for v in pair)
    return torch.nn.functional.pad(x, flat)

kernel_name = 'parallel_sum__mha_block_cached__dense_activation_silu__decode'

def setup_inputs():

    _w = (lambda a: (lambda t: t.to(torch.bfloat16) if t.is_floating_point() else t)(torch.as_tensor(a)))
    def _A_setup():
        B, Sq, D = 1, 1, 576
        H, Sk, Dh = 32, 32768, 128
        return {
            "x": _w((lambda *s: torch.randn(*s, dtype=torch.bfloat16) * 0.05)(B, Sq, D)),
            "k_cache": _w((lambda *s: torch.randn(*s, dtype=torch.bfloat16) * 3.2)(B, H, Sk, Dh)),
            "v_cache": _w((lambda *s: torch.randn(*s, dtype=torch.bfloat16) * 0.8)(B, H, Sk, Dh)),
            "wq": _w((lambda *s: torch.randn(*s, dtype=torch.bfloat16) * 3.2)(D, H * Dh) * (D ** -0.5)),
            "wo": _w((lambda *s: torch.randn(*s, dtype=torch.bfloat16) * 0.8)(H * Dh, D) * ((H * Dh) ** -0.5)),
        }
    _A_in = _A_setup()

    def _B_setup():
        B, S, D, F = 1, 1, 576, 4608
        return {
            "x": _w((lambda *s: torch.randn(*s, dtype=torch.bfloat16) * 0.05)(B, S, D)),
            "w1": _w((lambda *s: torch.randn(*s, dtype=torch.bfloat16) * 3.2)(D, F) * (D ** -0.5)),
            "w2": _w((lambda *s: torch.randn(*s, dtype=torch.bfloat16) * 0.4)(F, D) * (F ** -0.5)),
        }
    _B_in = _B_setup()

    return {
        "A_x": _A_in["x"],
        "A_k_cache": _A_in["k_cache"],
        "A_v_cache": _A_in["v_cache"],
        "A_wq": _A_in["wq"],
        "A_wo": _A_in["wo"],
        "B_x": _B_in["x"],
        "B_w1": _B_in["w1"],
        "B_w2": _B_in["w2"],
    }

def reference(A_x, A_k_cache, A_v_cache, A_wq, A_wo, B_x, B_w1, B_w2):
    def _A_ref(x, k_cache, v_cache, wq, wo):
        B, Sq, D = x.shape
        H, Dh = 32, 128
        q = (lambda x, *d: x.permute(*d))((x @ wq).reshape(B, Sq, H, Dh), 0, 2, 1, 3)
        scores = torch.einsum("bhqd,bhkd->bhqk", q, k_cache) * (Dh ** -0.5)
        p = _softmax(scores, axis=-1)
        o = torch.einsum("bhqk,bhkd->bhqd", p, v_cache)
        return (lambda x, *d: x.permute(*d))(o, 0, 2, 1, 3).reshape(B, Sq, H * Dh) @ wo

    def _B_ref(x, w1, w2):
        h = torch.einsum("bsd,df->bsf", x, w1)
        h = _silu(h)
        out = torch.einsum("bsf,fd->bsd", h, w2)
        return out

    x = A_x
    xn = _layernorm(x, axis=-1)
    return x + _A_ref(xn, A_k_cache, A_v_cache, A_wq, A_wo) + _B_ref(xn, B_w1, B_w2)
```

```python
NAME = "parallel_sum__mha_block_cached__dense_activation_silu__decode"
KN = NAME + "_kernel"

class A:
    def __init__(self):
        self.lines = []
        self.n = 0
    def __call__(self, s=""):
        for l in s.split("\n"):
            self.lines.append("    " + l.strip() if l.strip() and not l.strip().endswith(":") else l.strip())
    def label(self, base="L"):
        self.n += 1
        return f"{base}_{self.n}"
    def text(self): return "\n".join(self.lines) + "\n"

def wrap(body, grid, block, lds, vgpr, sgpr=102, accum=None, comment=""):
    if accum is None: accum = (vgpr + 3) // 4 * 4
    return f"""; {comment}
; @launch grid=({grid},1,1) block=({block},1,1) lds={lds}
.amdgcn_target "amdgcn-amd-amdhsa--gfx950"
.text
.globl {KN}
.p2align 8
.type {KN},@function
{KN}:
{body}
.section .rodata,"a"
.p2align 6
.amdhsa_kernel {KN}
  .amdhsa_next_free_vgpr {vgpr}
  .amdhsa_next_free_sgpr {sgpr}
  .amdhsa_accum_offset {accum}
  .amdhsa_group_segment_fixed_size 0
  .amdhsa_kernarg_size 88
  .amdhsa_user_sgpr_count 2
  .amdhsa_user_sgpr_kernarg_segment_ptr 1
  .amdhsa_system_sgpr_workgroup_id_x 1
.end_amdhsa_kernel
"""
```

```python
import re
TRANS = ("v_exp_f32","v_log_f32","v_rcp_f32","v_rsq_f32","v_sqrt_f32","v_sin_f32","v_cos_f32")
def regs(tok):
    tok = tok.strip()
    neg = tok.lstrip("-")
    m = re.fullmatch(r"abs\((.*)\)", neg)
    if m: neg = m.group(1)
    m = re.fullmatch(r"([vsa])\[(\d+):(\d+)\]", neg)
    if m: return [(m.group(1), i) for i in range(int(m.group(2)), int(m.group(3)) + 1)]
    m = re.fullmatch(r"([vsa])(\d+)", neg)
    if m: return [(m.group(1), int(m.group(2)))]
    if neg == "vcc": return [("s", "vcc")]
    if neg == "exec": return [("s", "exec")]
    return []
def parse(line):
    line = line.split(";")[0].strip()
    if not line or line.endswith(":") or line.startswith("."): return None
    parts = line.split(None, 1)
    op = parts[0]
    rest = parts[1] if len(parts) > 1 else ""
    ops = []; cur = ""; depth = 0
    for ch in rest:
        if ch == "[": depth += 1
        if ch == "]": depth -= 1
        if ch == "," and depth == 0: ops.append(cur.strip()); cur = ""
        else: cur += ch
    if cur.strip(): ops.append(cur.strip())
    mods = ""
    if ops:
        sp = ops[-1].split(None, 1)
        ops[-1] = sp[0]
        mods = sp[1] if len(sp) > 1 else ""
    return op, ops, mods
def check(text):
    ins = []
    for ln, line in enumerate(text.split("\n"), 1):
        p = parse(line)
        if p: ins.append((ln, line.strip(), p))
    errs = []
    hist = []
    def states_of(op, ops):
        if op == "s_nop": return int(ops[0], 0) + 1
        return 1
    for ln, txt, (op, ops, mods) in ins:
        base = op.replace("_e32", "").replace("_e64", "")
        isv = base.startswith("v_")
        mfma = base.startswith("v_mfma")
        dot = base.startswith("v_dot")
        dpp = base.endswith("_dpp") or "row_" in mods or "quad_perm" in mods
        perm = base.startswith("v_permlane")
        rdl = base.startswith("v_readlane") or base.startswith("v_readfirstlane")
        trans = base.replace("_dpp", "") in TRANS
        vmem = base.startswith(("buffer_", "global_", "flat_"))
        ds = base.startswith("ds_")
        W = set(); R = set(); RC = set(); RAB = set(); Rdpp = set()
        if isv:
            if base.startswith("v_cmp"):
                W |= set(regs(ops[0]));
                for o in ops[1:]: R |= set(regs(o))
            elif perm and "swap" in base:
                W |= set(regs(ops[0])) | set(regs(ops[1])); R |= W
            elif mfma:
                W |= set(regs(ops[0])); RAB = set(regs(ops[1])) | set(regs(ops[2])); RC = set(regs(ops[3])); R = RAB | RC
            else:
                W |= set(regs(ops[0]))
                srcs = ops[1:]
                if base.startswith(("v_add_co", "v_addc_co", "v_sub_co")):
                    W |= set(regs(ops[1])); srcs = ops[2:]
                for o in srcs: R |= set(regs(o))
                if base.startswith(("v_fmac", "v_dot2c")): R |= set(regs(ops[0]))
                if base.startswith("v_cndmask") and len(ops) == 3: R |= {("s", "vcc")}
                if dpp: Rdpp = set(regs(ops[1]))
        elif vmem or ds:
            store = "store" in base or "write" in base or "atomic" in base
            if vmem:
                if base.startswith("buffer_"):
                    if "lds" in mods.split():
                        for o in ops: R |= set(regs(o))
                    elif store:
                        for o in ops: R |= set(regs(o))
                    else:
                        W |= set(regs(ops[0]))
                        for o in ops[1:]: R |= set(regs(o))
                else:
                    if store:
                        for o in ops: R |= set(regs(o))
                    else:
                        W |= set(regs(ops[0]))
                        for o in ops[1:]: R |= set(regs(o))
            else:
                if base.startswith(("ds_read", "ds_bpermute", "ds_permute", "ds_swizzle")) or "rtn" in base:
                    W |= set(regs(ops[0]))
                    for o in ops[1:]: R |= set(regs(o))
                else:
                    for o in ops: R |= set(regs(o))
        dist = 0
        for h in reversed(hist):
            if dist >= 20: break
            hw = h["W"]
            def need(n, cond, why):
                if cond and dist < n: errs.append(f"line {ln}: {txt}  <- line {h['ln']}: {h['txt']} : {why} needs {n} has {dist}")
            vw = {r for r in hw if r[0] in "va"}
            sw = {r for r in hw if r[0] == "s"}
            if h["isv"] and not h["mfma"]:
                need(2, dpp and (vw & Rdpp), "VALU->DPP")
                need(2, perm and (vw & R), "VALU->permlane")
                need(1, rdl and (vw & R), "VALU->readlane")
                need(2, mfma and (vw & R), "VALU->MFMA")
                need(1, h["trans"] and isv and not trans and (vw & R), "trans->VALU")
                need(1, h["trans"] and (vmem or ds) and (vw & R), "trans->mem(conservative)")
                need(2, isv and not rdl and (sw & R), "VALU sgpr write->VALU read")
                need(4, rdl and (sw & R), "VALU sgpr->lane select")
                need(5, vmem and (sw & R), "VALU sgpr->VMEM")
                if h["dot"]:
                    same = base == h["base"]
                    if isv:
                        if same:
                            srcs_ab = set(regs(ops[1])) | set(regs(ops[2]))
                            need(3, vw & srcs_ab, "dot->dot srcAB")
                        else:
                            need(3, vw & (R | W), "dot->other")
                    elif vmem or ds:
                        need(3, vw & R, "dot->mem")
            if h["mfma"]:
                passes = 4 if "16x16x32" in h["base"] else 8
                n1 = {4: 8, 8: 12}[passes]
                if mfma:
                    if hw == RC and base == h["base"]: pass
                    else: need({4: 6, 8: 10}[passes], hw & RC, "MFMA->MFMA C overlap")
                    need(n1, hw & RAB, "MFMA->MFMA AB")
                elif isv:
                    need(n1, hw & (R | W), "MFMA->VALU")
                    need({4: 3, 8: 7}[passes], h["RC"] & W, "MFMA C WAR")
                elif vmem or ds:
                    need(n1, hw & (R | W), "MFMA->mem")
            if h["wide_store"]:
                need(2, isv and (h["R"] & W), "wide store WAR")
            dist += h["states"]
        hist.append(dict(ln=ln, txt=txt, W=W, R=R, RC=RC, isv=isv, mfma=mfma, trans=trans, dot=dot, base=base,
                         states=states_of(op, ops), wide_store=(vmem and "store" in base and ("x4" in base or "x3" in base))))
        if base in ("s_branch", "s_endpgm", "s_setpc_b64"):
            hist = []
    return errs
if __name__ == "__main__":
    import sys
    for e in check(open(sys.argv[1]).read()): print(e)
```

```python
import sys
from asmlib import A, NAME, KN
import hazard

WS_SIZE = 0x1000000
EPOCH = 0
CNT   = 0x1000
QG    = 0x10000
HG    = 0x60000
AG    = 0xA0000
YA    = 0x200000
YB    = 0x400000
TS    = 0x800000
L_Q   = 0
L_ML  = 256
L_O   = 512
LOG2E = 0x3FB8AA3B
SCALE = 0x3DB504F3

HEADER = """; Fused decode step: out = x + MHA(LN(x)) + FFN(LN(x))       (gfx950, hand written via own generator script)
; Hand-offs between workgroups are 8-byte {value, tag} granules in d_ws; the tag is derived from
"""

class K(A):
    def nop(self, n):
        while n > 0:
            m = min(n, 16); self(f"s_nop {m-1}"); n -= m

def gen(NSTAT=32, HILO=True, TSTAMP=False, NT="nt", POLLMAX=40000, LDS=86016, DEEP=False, dbg=False):
    a = K()
    POOL0 = 32 * NSTAT
    DYN = POOL0 < 1024
    stamps = {}
    def stamp(i):
        if TSTAMP:
            a(f"s_memrealtime s[{70+2*i}:{71+2*i}]")
            a("s_waitcnt lgkmcnt(0)")
    def stamp_store(nst):
        if TSTAMP:
            a("s_lshl_b32 s30, s2, 3\ns_add_u32 s30, s30, s3\ns_lshl_b32 s30, s30, 6")
            a(f"s_add_u32 s30, s30, {TS}")
            a("s_mov_b64 exec, 1")
            a("v_mov_b32 v60, s30")
            for i in range(nst):
                a(f"v_mov_b32 v61, s{70+2*i}")
                a(f"buffer_store_dword v61, v60, s[44:47], 0 offen offset:{4*i}")
            a("s_getreg_b32 s31, hwreg(HW_REG_XCC_ID)")
            a("v_mov_b32 v61, s31")
            a(f"buffer_store_dword v61, v60, s[44:47], 0 offen offset:60")
            a("s_waitcnt vmcnt(0)")
            a("s_mov_b64 exec, -1")

    def make_masks(tmp1, tmp2):
        a(f"v_and_b32 v{tmp1}, 7, v3")
        a(f"v_and_b32 v{tmp2}, 1, v3")
        a(f"v_lshlrev_b32 v{tmp2}, 4, v{tmp2}")
        a(f"v_mov_b32 v12, 0xffff")
        a(f"v_lshlrev_b32 v{tmp2}, v{tmp2}, v12")
        a(f"v_lshrrev_b32 v{tmp1}, 1, v{tmp1}")
        for w in range(4):
            a(f"v_cmp_eq_u32 vcc, {w}, v{tmp1}")
            a.nop(2)
            a(f"v_cndmask_b32 v{12+w}, 0, v{tmp2}, vcc")

    def allreduce(op, v, t, rors=(8, 4, 2, 1), cross=True):
        for n in rors:
            a.nop(2)
            a(f"{op}_dpp v{v}, v{v}, v{v} row_ror:{n} row_mask:0xf bank_mask:0xf")
        if cross:
            for sw in ("16", "32"):
                a(f"v_mov_b32 v{t}, v{v}")
                a.nop(2)
                a(f"v_permlane{sw}_swap_b32 v{v}, v{t}")
                a(f"{op} v{v}, v{v}, v{t}")

    def to_bf16f(dst, src):
        a(f"v_cvt_pk_bf16_f32 v{dst}, v{src}, v{src}")
        a(f"v_and_b32 v{dst}, 0xffff0000, v{dst}")

    def div_refined(dst, num, den, rcp, t):
        a(f"v_mul_f32 v{dst}, v{num}, v{rcp}")
        a(f"v_fma_f32 v{t}, -v{dst}, v{den}, v{num}")
        a(f"v_fma_f32 v{dst}, v{t}, v{rcp}, v{dst}")

    def poll_begin(name):
        a(f"s_mov_b32 s49, 0")
        a(f"L_{name}_poll:")
    def poll_end(name, acc, sleep=0, code=1):
        a(f"v_cmp_ne_u32 vcc, 0, v{acc}")
        a(f"s_cbranch_vccz L_{name}_ok")
        a(f"s_add_u32 s49, s49, 1")
        if sleep: a(f"s_sleep {sleep}")
        a(f"s_cmp_lt_u32 s49, {POLLMAX}")
        a(f"s_cbranch_scc1 L_{name}_poll")
        if dbg:
            a(f"v_mov_b32 v62, {code}\nv_mov_b32 v63, {4*code}\nglobal_atomic_or v63, v62, s[26:27]")
        a(f"L_{name}_ok:")
    def tagcheck(acc, tagregs, first=True):
        it = list(tagregs)
        tmp = 61
        for i in range(0, len(it), 2):
            pair = it[i:i+2]
            if first and i == 0:
                a(f"v_xor_b32 v{acc}, s6, v{pair[0]}")
                if len(pair) > 1:
                    a(f"v_xor_b32 v{tmp}, s6, v{pair[1]}")
                    a(f"v_or_b32 v{acc}, v{acc}, v{tmp}")
            else:
                a(f"v_xor_b32 v{tmp}, s6, v{pair[0]}")
                if len(pair) > 1:
                    a(f"v_xor_b32 v{tmp+1}, s6, v{pair[1]}")
                    a(f"v_or3_b32 v{acc}, v{acc}, v{tmp}, v{tmp+1}")
                else:
                    a(f"v_or_b32 v{acc}, v{acc}, v{tmp}")

    def ln_loads(row0_sgpr):
        a(f"""
        s_mov_b32 s32, s8
        s_mov_b32 s33, s9
        s_mov_b32 s34, 1152
        s_mov_b32 s35, 0x20000
        v_lshlrev_b32 v20, 3, v0
        v_lshlrev_b32 v21, 1, v0
        v_lshl_add_u32 v22, v3, 2, v2
        v_add_u32 v22, s{row0_sgpr}, v22
        v_lshlrev_b32 v22, 1, v22
        buffer_load_dwordx2 v[4:5], v20, s[32:35], 0 offen
        buffer_load_dwordx2 v[6:7], v20, s[32:35], 0 offen offset:512
        buffer_load_ushort v8, v21, s[32:35], 0 offen offset:1024
        buffer_load_ushort v9, v22, s[32:35], 0 offen
        buffer_load_ushort v10, v22, s[32:35], 0 offen offset:128
        """)
    def ln_compute():
        for i, r in enumerate((4, 5, 6, 7)):
            a(f"v_lshlrev_b32 v{24+2*i}, 16, v{r}")
            a(f"v_and_b32 v{25+2*i}, 0xffff0000, v{r}")
        a("v_lshlrev_b32 v32, 16, v8")
        a("v_add_f32 v33, v24, v25\nv_add_f32 v34, v26, v27\nv_add_f32 v35, v28, v29\nv_add_f32 v36, v30, v31")
        a("v_add_f32 v33, v33, v34\nv_add_f32 v35, v35, v36\nv_add_f32 v33, v33, v32\nv_add_f32 v33, v33, v35")
        allreduce("v_add_f32", 33, 34)
        a("v_mov_b32 v36, 0x44100000")
        a("v_mov_b32 v37, 0x3ae38e39")
        div_refined(38, 33, 36, 37, 34)
        for i in range(9):
            a(f"v_sub_f32 v{24+i}, v{24+i}, v38")
        a("v_mul_f32 v33, v24, v24")
        for i in range(1, 9):
            a(f"v_fmac_f32 v33, v{24+i}, v{24+i}")
        allreduce("v_add_f32", 33, 34)
        div_refined(39, 33, 36, 37, 34)
        to_bf16f(38, 38)
        to_bf16f(39, 39)
        a("v_add_f32 v39, 0x3727c5ac, v39")
        to_bf16f(39, 39)
        a("v_sqrt_f32 v39, v39")
        a.nop(1)
        to_bf16f(39, 39)
        a("v_rcp_f32 v37, v39")
        for r in (9, 10):
            a(f"v_lshlrev_b32 v{r}, 16, v{r}")
            a(f"v_sub_f32 v{r}, v{r}, v38")
            to_bf16f(r, r)
        for r in (9, 10):
            div_refined(33, r, 39, 37, 34)
            a(f"v_cvt_pk_bf16_f32 v{r}, v33, v33")

    def job4(wb, n, nolder_after):
        a("v_mov_b32 v16, 0\nv_mov_b32 v17, 0\nv_mov_b32 v18, 0\nv_mov_b32 v19, 0")
        def prep(j):
            src = 9 if j < 16 else 10
            b = 24 + 4 * (j & 1)
            for w in range(4):
                a(f"v_and_b32_dpp v{b+w}, v{src}, v{12+w} row_newbcast:{j & 15} row_mask:0xf bank_mask:0xf")
        a.nop(2)
        prep(0)
        for j in range(n):
            if j + 1 < n: prep(j + 1)
            else: a.nop(2)
            a(f"s_waitcnt vmcnt({n - 1 - j + nolder_after})")
            b = 24 + 4 * (j & 1)
            a(f"v_mfma_f32_16x16x32_bf16 v[16:19], v[{wb+4*j}:{wb+4*j+3}], v[{b}:{b+3}], v[16:19]")
        a.nop(8)
        a("s_mov_b32 s52, 0xff00ff00\ns_mov_b32 s53, 0xff00ff00")
        a("v_cndmask_b32 v20, v16, v17, s[52:53]")
        a("v_cndmask_b32 v22, v18, v19, s[52:53]")

    def job8(wb, nb, mult, ab, nyounger=0):
        for i in range(36): a(f"v_mov_b32 v{ab+i}, 0")
        n = nb * 9
        for bb in range(nb):
            for w in range(4):
                a(f"v_and_b32 v{24+w}, v{mult[bb]}, v{12+w}")
            a.nop(2)
            for blk in range(9):
                j = bb * 9 + blk
                a(f"s_waitcnt vmcnt({n - 1 - j + nyounger})")
                a(f"v_mfma_f32_16x16x32_bf16 v[{ab+4*blk}:{ab+4*blk+3}], v[{wb+4*j}:{wb+4*j+3}], v[24:27], v[{ab+4*blk}:{ab+4*blk+3}]")
            if bb + 1 < nb: a.nop(1)
        a.nop(8)
    def job8_publish(ab, ybase, pairbase):
        a("v_and_b32 v20, 1, v2\nv_lshlrev_b32 v20, 2, v20")
        a("v_lshrrev_b32 v21, 3, v3\nv_lshlrev_b32 v21, 1, v21\nv_add_u32 v20, v20, v21")
        a("v_lshrrev_b32 v21, 1, v2\nv_add_u32 v20, v20, v21\nv_lshlrev_b32 v20, 14, v20")
        a("v_and_b32 v21, 7, v3\nv_lshl_add_u32 v20, v21, 3, v20")
        a(f"s_lshl_b32 s30, s2, 6\ns_add_u32 s30, s30, {ybase}")
        a("v_add_u32 v20, s30, v20")
        for blk in range(9):
            y = ab + 4 * blk
            pr = pairbase + 2 * blk
            a(f"v_permlane32_swap_b32 v{y}, v{y+1}")
            a(f"v_permlane32_swap_b32 v{y+2}, v{y+3}")
            a(f"v_mov_b32 v{pr+1}, s6")
            a.nop(1)
            a(f"v_add_f32_dpp v{pr}, v{y+1}, v{y} row_ror:8 row_mask:0xf bank_mask:0x3")
            a(f"v_add_f32_dpp v{pr}, v{y+2}, v{y+3} row_ror:8 row_mask:0xf bank_mask:0xc")
            a(f"s_mov_b32 s31, {blk * 8 * 16384}")
            a(f"buffer_store_dwordx2 v[{pr}:{pr+1}], v20, s[44:47], s31 offen sc1")

    a(f"""
    s_cmp_ge_u32 s2, 256
    s_cbranch_scc1 L_end
    s_load_dwordx16 s[8:23], s[0:1], 0
    s_load_dwordx4 s[24:27], s[0:1], 64
    s_load_dwordx2 s[28:29], s[0:1], 80
    """)
    stamp_first = TSTAMP
    if TSTAMP: a("s_memrealtime s[70:71]")
    a(f"""
    v_lshrrev_b32 v1, 6, v0
    v_and_b32 v0, 63, v0
    v_readfirstlane_b32 s3, v1
    s_lshr_b32 s4, s2, 3
    s_and_b32 s5, s2, 7
    v_lshrrev_b32 v2, 4, v0
    v_and_b32 v3, 15, v0
    s_cmp_eq_u32 s3, 5
    s_cbranch_scc0 L_nopf
    L_pc:
    s_getpc_b64 s[30:31]
    v_lshlrev_b32 v4, 7, v0
    v_add_u32 v5, 8192, v4
    v_min_u32 v4, L_end-L_pc, v4
    v_min_u32 v5, L_end-L_pc, v5
    global_load_dword v58, v4, s[30:31]
    global_load_dword v59, v5, s[30:31]
    L_nopf:
    s_waitcnt lgkmcnt(0)
    s_load_dword s6, s[28:29], {EPOCH}
    s_mov_b32 s44, s28
    s_mov_b32 s45, s29
    s_mov_b32 s46, {WS_SIZE}
    s_mov_b32 s47, 0x20000
    s_cmp_eq_u32 s3, 4
    s_cbranch_scc1 L_helperA
    s_cmp_eq_u32 s3, 5
    s_cbranch_scc1 L_helperB
    """)

    SL = 64
    def kload(j, base=SL):
        a(f"buffer_load_dwordx4 v[{base+4*j}:{base+4*j+3}], v{5 + (j >> 2)}, s[32:35], 0 offen offset:{(j & 3) * 1024} {NT}")
    def vload(j, base=SL):
        a(f"buffer_load_dwordx4 v[{base+4*j}:{base+4*j+3}], v{5 + (j >> 2)}, s[36:39], 0 offen offset:{(j & 3) * 1024} {NT}")
    a(f"""
    s_lshl_b32 s30, s4, 23
    s_add_u32 s32, s10, s30
    s_addc_u32 s33, s11, 0
    s_mov_b32 s34, 0x800000
    s_mov_b32 s35, 0x20000
    s_add_u32 s36, s12, s30
    s_addc_u32 s37, s13, 0
    s_mov_b32 s38, 0x800000
    s_mov_b32 s39, 0x20000
    s_mul_i32 s56, s5, {4 * NSTAT}
    s_add_u32 s56, s56, s3
    s_lshl_b32 s57, s56, 13
    v_lshlrev_b32 v4, 4, v0
    v_add_u32 v5, s57, v4
    v_add_u32 v6, 4096, v5
    """)
    for j in range(8): kload(j)
    a(f"""
    s_lshl_b32 s30, s4, 8
    s_add_u32 s30, s30, {CNT}
    s_add_u32 s40, s28, s30
    s_addc_u32 s41, s29, 0
    s_mov_b32 s58, 0                   ; i
    s_mov_b32 s60, {LOG2E:#x}
    s_mov_b32 s61, {SCALE:#x}
    s_mov_b32 s52, 0xcccccccc
    s_mov_b32 s53, 0xcccccccc
    s_mov_b32 s54, 0xaaaaaaaa
    s_mov_b32 s55, 0xaaaaaaaa
    """)
    make_masks(20, 21)
    a(f"""
    v_mov_b32 v16, 0
    v_mov_b32 v17, 0
    v_mov_b32 v18, 0
    v_mov_b32 v19, 0
    v_mov_b32 v20, 0
    v_mov_b32 v21, 0xff800000
    v_mov_b32 v22, 0xff800000
    v_lshlrev_b32 v23, 4, v3
    """)
    stamp(1)
    a("s_barrier")
    a(f"ds_read_b128 v[8:11], v23 offset:{L_Q}")
    a("s_waitcnt lgkmcnt(0)")
    stamp(2)
    a("L_tile:")
    a("s_add_u32 s58, s58, 1")
    if DYN:
        a(f"s_cmp_lt_u32 s58, {NSTAT}")
        a("s_cbranch_scc1 L_notk")
        a("s_mov_b32 s59, 1")
        a("s_atomic_add s59, s[40:41], 0 glc")
        a("L_notk:")
    a("v_add_u32 v5, s57, v4\nv_add_u32 v6, 4096, v5")
    for j in range(8):
        a("s_waitcnt vmcnt(7)")
        P = 24 + j; sl = SL + 4 * j
        a(f"v_dot2_f32_bf16 v{P}, v{sl}, v8, 0")
        a(f"v_dot2_f32_bf16 v{P}, v{sl+1}, v9, v{P}")
        a(f"v_dot2_f32_bf16 v{P}, v{sl+2}, v10, v{P}")
        a(f"v_dot2_f32_bf16 v{P}, v{sl+3}, v11, v{P}")
        vload(j)
    for j in range(4):
        a(f"v_add_f32_dpp v{32+j}, v{24+j}, v{24+j} row_ror:8 row_mask:0xf bank_mask:0x3")
        a(f"v_add_f32_dpp v{32+j}, v{28+j}, v{28+j} row_ror:8 row_mask:0xf bank_mask:0xc")
    for j in range(2):
        a(f"v_add_f32_dpp v{36+j}, v{32+j}, v{32+j} row_shl:4 row_mask:0xf bank_mask:0x5")
        a(f"v_add_f32_dpp v{36+j}, v{34+j}, v{34+j} row_shr:4 row_mask:0xf bank_mask:0xa")
    a(f"s_lshl_b32 s30, s58, 2")
    a(f"s_add_u32 s30, s30, s56")
    a("v_add_f32_dpp v38, v36, v36 quad_perm:[2,3,0,1] row_mask:0xf bank_mask:0xf")
    a("v_add_f32_dpp v39, v37, v37 quad_perm:[2,3,0,1] row_mask:0xf bank_mask:0xf")
    a("v_cndmask_b32 v40, v38, v39, s[52:53]")
    if DYN:
        a("s_waitcnt lgkmcnt(0)")
        a(f"s_add_u32 s31, s59, {POOL0}")
    else:
        a(f"s_mov_b32 s31, 1024")
        a("s_nop 0")
    a("v_add_f32_dpp v40, v40, v40 quad_perm:[1,0,3,2] row_mask:0xf bank_mask:0xf")
    a(f"s_cmp_lt_u32 s58, {NSTAT}")
    a("s_cselect_b32 s62, s30, s31")
    a("v_cvt_pk_bf16_f32 v40, v40, v40")
    a("v_and_b32 v40, 0xffff0000, v40")
    a("v_mul_f32 v40, s61, v40")
    a("v_cvt_pk_bf16_f32 v40, v40, v40")
    a("v_and_b32 v40, 0xffff0000, v40")
    a("v_cmp_lt_f32 vcc, v22, v40")
    a("s_lshl_b32 s63, s62, 13")
    a("s_cbranch_vccnz L_rare")
    a("L_back:")
    a("v_fma_f32 v41, v40, s60, -v21")
    a("v_exp_f32 v41, v41")
    a("v_add_u32 v5, s63, v4")
    a("v_add_f32 v20, v20, v41")
    a("v_cvt_pk_bf16_f32 v42, v41, v41")
    if HILO:
        a("v_and_b32 v43, 0xffff0000, v42")
        a("v_sub_f32 v43, v41, v43")
        a("v_cvt_pk_bf16_f32 v43, v43, v43")
        a("v_cndmask_b32 v42, v42, v43, s[54:55]")
    a("v_add_u32 v6, 4096, v5")
    a.nop(1)
    def prepB(j):
        b = 48 + 4 * (j & 1)
        if HILO:
            y = 44 + (j & 1)
            a(f"v_mov_b32_dpp v{y}, v42 row_newbcast:{2*j} row_mask:0xf bank_mask:0x3")
            a(f"v_mov_b32_dpp v{y}, v42 row_newbcast:{2*j+1} row_mask:0xf bank_mask:0xc")
            for w in range(4): a(f"v_and_b32 v{b+w}, v{y}, v{12+w}")
        else:
            for w in range(4):
                a(f"v_and_b32_dpp v{b+w}, v42, v{12+w} row_newbcast:{2*j} row_mask:0xf bank_mask:0xf")
    prepB(0)
    for j in range(8):
        if j < 7: prepB(j + 1)
        else: a.nop(1)
        a("s_waitcnt vmcnt(7)")
        b = 48 + 4 * (j & 1); sl = SL + 4 * j
        a(f"v_mfma_f32_16x16x32_bf16 v[16:19], v[{sl}:{sl+3}], v[{b}:{b+3}], v[16:19]")
        kload(j)
    a("s_mov_b32 s57, s63")
    a("s_cmp_lt_u32 s62, 1024")
    a("s_cbranch_scc1 L_tile")
    stamp(3)
    a.nop(8)
    if HILO:
        for r in range(4):
            a(f"v_add_f32_dpp v{16+r}, v{16+r}, v{16+r} row_ror:8 row_mask:0xf bank_mask:0xf")
    a("s_mov_b32 s52, 0xff00ff00\ns_mov_b32 s53, 0xff00ff00")
    a("v_cndmask_b32 v24, v16, v17, s[52:53]")
    a("v_cndmask_b32 v25, v18, v19, s[52:53]")
    a("v_lshl_add_u32 v26, v2, 5, v3")
    a("v_lshlrev_b32 v26, 2, v26")
    a(f"s_lshl_b32 s30, s3, 9")
    a("v_add_u32 v26, s30, v26")
    a(f"ds_write_b32 v26, v24 offset:{L_O}")
    a(f"ds_write_b32 v26, v25 offset:{L_O + 64}")
    allreduce("v_add_f32", 20, 27)
    a("v_mul_f32 v23, 0.5, v20")
    a("s_lshl_b32 s30, s3, 3")
    a("v_mov_b32 v27, s30")
    a("s_mov_b64 exec, 1")
    a(f"ds_write_b64 v27, v[22:23] offset:{L_ML}")
    a("s_mov_b64 exec, -1")
    a("s_waitcnt vmcnt(0) lgkmcnt(0)")
    a("s_barrier")
    stamp(4)
    stamp_store(5)
    a("s_endpgm")
    a("L_rare:")
    a("v_mov_b32 v41, v40")
    for n in (8, 4, 2):
        a.nop(2)
        a(f"v_max_f32_dpp v41, v41, v41 row_ror:{n} row_mask:0xf bank_mask:0xf")
    a.nop(2)
    a("v_max_f32_dpp v41, v41, v41 row_bcast:15 row_mask:0xa bank_mask:0xf")
    a.nop(2)
    a("v_max_f32_dpp v41, v41, v41 row_bcast:31 row_mask:0xc bank_mask:0xf")
    a.nop(1)
    a("v_readlane_b32 s30, v41, 63")
    a.nop(2)
    a("v_mov_b32 v22, s30")
    a("v_mul_f32 v42, s60, v22")
    a("v_sub_f32 v43, v21, v42")
    a("v_exp_f32 v43, v43")
    a("v_mov_b32 v21, v42")
    for r in (16, 17, 18, 19, 20):
        a(f"v_mul_f32 v{r}, v{r}, v43")
    a("s_branch L_back")

    a("L_helperA:")
    WB = 64
    if DYN:
        a(f"""
        s_cmp_eq_u32 s5, 0
        s_cbranch_scc0 L_nozero
        s_lshl_b32 s30, s4, 8
        s_add_u32 s30, s30, {CNT}
        v_mov_b32 v4, s30
        v_mov_b32 v5, 0
        s_mov_b64 exec, 1
        buffer_store_dword v5, v4, s[44:47], 0 offen sc1
        s_mov_b64 exec, -1
        L_nozero:
        """)
    a("s_mul_i32 s48, s5, 72")
    ln_loads(48)
    a(f"""
    s_mov_b32 s36, s14
    s_mov_b32 s37, s15
    s_mov_b32 s38, {576*8192}
    s_mov_b32 s39, 0x20000
    v_add_u32 v23, s48, v2
    v_lshlrev_b32 v23, 13, v23
    v_lshl_add_u32 v23, v3, 4, v23
    s_lshl_b32 s30, s4, 8
    v_add_u32 v23, s30, v23
    """)
    for j in range(18):
        a(f"s_mov_b32 s31, {j*32768}")
        a(f"buffer_load_dwordx4 v[{WB+4*j}:{WB+4*j+3}], v23, s[36:39], s31 offen {NT}")
    make_masks(20, 21)
    a("s_waitcnt vmcnt(18)")
    ln_compute()
    job4(WB, 18, 0)
    a(f"""
    s_waitcnt lgkmcnt(0)
    s_mul_i32 s6, s6, 0x9E3779B1
    s_add_u32 s6, s6, 0x7F4A7C15
    v_lshl_add_u32 v24, v2, 5, v3
    v_lshlrev_b32 v24, 3, v24
    s_lshl_b32 s30, s2, 10
    s_add_u32 s30, s30, {QG}
    v_add_u32 v24, s30, v24
    v_mov_b32 v21, s6
    v_mov_b32 v23, s6
    buffer_store_dwordx2 v[20:21], v24, s[44:47], 0 offen sc1
    buffer_store_dwordx2 v[22:23], v24, s[44:47], 0 offen offset:128 sc1
    """)
    stamp(1)
    a(f"""
    s_mov_b32 s36, s16
    s_mov_b32 s37, s17
    s_mov_b32 s38, {4096*1152}
    s_mov_b32 s39, 0x20000
    v_lshrrev_b32 v24, 3, v3
    v_lshl_add_u32 v24, v2, 1, v24
    s_lshl_b32 s30, s2, 4
    v_add_u32 v24, s30, v24
    s_movk_i32 s31, 1152
    v_mul_lo_u32 v24, v24, s31
    v_and_b32 v25, 7, v3
    v_lshl_add_u32 v24, v25, 4, v24
    v_add_u32 v25, 9216, v24
    """)
    for bb in range(2):
        for blk in range(9):
            j = bb * 9 + blk
            a(f"buffer_load_dwordx4 v[{WB+4*j}:{WB+4*j+3}], v{24+bb}, s[36:39], 0 offen offset:{blk*128} {NT}")
    a(f"""
    s_lshl_b32 s30, s4, 13
    s_add_u32 s30, s30, {QG}
    v_lshlrev_b32 v4, 4, v0
    v_add_u32 v4, s30, v4
    v_add_u32 v5, 4096, v4
    """)
    poll_begin("q")
    for p in range(8):
        a(f"buffer_load_dwordx4 v[{24+4*p}:{24+4*p+3}], v{4 + (p >> 2)}, s[44:47], 0 offen offset:{(p & 3) * 1024} sc1")
    a("s_waitcnt vmcnt(0)")
    tagcheck(6, [24 + 4*p + o for p in range(8) for o in (1, 3)])
    poll_end("q", 6, code=1)
    for o in (0, 2):
        a(f"v_add_f32 v{24+o}, v{24+o}, v{28+o}")
        a(f"v_add_f32 v{32+o}, v{32+o}, v{36+o}")
        a(f"v_add_f32 v{40+o}, v{40+o}, v{44+o}")
        a(f"v_add_f32 v{48+o}, v{48+o}, v{52+o}")
        a(f"v_add_f32 v{24+o}, v{24+o}, v{32+o}")
        a(f"v_add_f32 v{40+o}, v{40+o}, v{48+o}")
        a(f"v_add_f32 v{24+o}, v{24+o}, v{40+o}")
    a("v_cvt_pk_bf16_f32 v24, v24, v26")
    a("v_lshlrev_b32 v25, 2, v0")
    a(f"ds_write_b32 v25, v24 offset:{L_Q}")
    a("s_waitcnt lgkmcnt(0)")
    stamp(2)
    a("s_barrier")
    a("s_barrier")
    stamp(3)
    a(f"""
    v_mov_b32 v4, 0
    v_lshlrev_b32 v5, 3, v0
    ds_read_b128 v[24:27], v4 offset:{L_ML}
    ds_read_b128 v[28:31], v4 offset:{L_ML + 16}
    ds_read_b64 v[32:33], v5 offset:{L_O}
    ds_read_b64 v[34:35], v5 offset:{L_O + 512}
    ds_read_b64 v[36:37], v5 offset:{L_O + 1024}
    ds_read_b64 v[38:39], v5 offset:{L_O + 1536}
    s_mov_b32 s60, {LOG2E:#x}
    s_waitcnt lgkmcnt(4)
    v_max_f32 v40, v24, v26
    v_max3_f32 v40, v40, v28, v30
    v_sub_f32 v24, v24, v40
    v_sub_f32 v26, v26, v40
    v_sub_f32 v28, v28, v40
    v_sub_f32 v30, v30, v40
    v_mul_f32 v24, s60, v24
    v_mul_f32 v26, s60, v26
    v_mul_f32 v28, s60, v28
    v_mul_f32 v30, s60, v30
    v_exp_f32 v24, v24
    v_exp_f32 v26, v26
    v_exp_f32 v28, v28
    v_exp_f32 v30, v30
    s_waitcnt lgkmcnt(0)
    v_mul_f32 v42, v24, v25
    v_mul_f32 v44, v24, v32
    v_mul_f32 v46, v24, v33
    v_fmac_f32 v42, v26, v27
    v_fmac_f32 v44, v26, v34
    v_fmac_f32 v46, v26, v35
    v_fmac_f32 v42, v28, v29
    v_fmac_f32 v44, v28, v36
    v_fmac_f32 v46, v28, v37
    v_fmac_f32 v42, v30, v31
    v_fmac_f32 v44, v30, v38
    v_fmac_f32 v46, v30, v39
    v_mov_b32 v41, s6
    v_mov_b32 v43, s6
    v_mov_b32 v45, s6
    v_mov_b32 v47, s6
    s_lshl_b32 s30, s2, 11
    s_add_u32 s30, s30, {AG}
    v_lshlrev_b32 v4, 4, v0
    v_add_u32 v4, s30, v4
    v_mov_b32 v5, s30
    buffer_store_dwordx4 v[44:47], v4, s[44:47], 0 offen sc1
    s_mov_b64 exec, 1
    buffer_store_dwordx4 v[40:43], v5, s[44:47], 0 offen offset:1024 sc1
    s_mov_b64 exec, -1
    """)
    a(f"""
    s_lshl_b32 s30, s4, 14
    s_add_u32 s30, s30, {AG}
    v_lshlrev_b32 v4, 11, v2
    v_add_u32 v4, s30, v4
    v_add_u32 v5, 8192, v4
    s_lshl_b32 s31, s5, 7
    v_lshl_add_u32 v6, v3, 3, s31
    v_add_u32 v7, v5, v6
    v_add_u32 v6, v4, v6
    """)
    poll_begin("ag")
    a(f"""
    buffer_load_dwordx2 v[24:25], v6, s[44:47], 0 offen sc1
    buffer_load_dwordx2 v[26:27], v7, s[44:47], 0 offen sc1
    buffer_load_dwordx4 v[28:31], v4, s[44:47], 0 offen offset:1024 sc1
    buffer_load_dwordx4 v[32:35], v5, s[44:47], 0 offen offset:1024 sc1
    s_waitcnt vmcnt(0)
    """)
    tagcheck(8, [25, 27, 29, 31, 33, 35])
    poll_end("ag", 8, code=2)
    stamp(4)
    a("v_max_f32 v36, v28, v32")
    allreduce("v_max_f32", 36, 37, rors=())
    a(f"""
    v_sub_f32 v28, v28, v36
    v_sub_f32 v32, v32, v36
    v_mul_f32 v28, s60, v28
    v_mul_f32 v32, s60, v32
    v_exp_f32 v28, v28
    v_exp_f32 v32, v32
    s_nop 0
    v_mul_f32 v38, v28, v30
    v_mul_f32 v39, v28, v24
    v_fmac_f32 v38, v32, v34
    v_fmac_f32 v39, v32, v26
    """)
    allreduce("v_add_f32", 38, 37, rors=())
    allreduce("v_add_f32", 39, 37, rors=())
    a("v_rcp_f32 v40, v38")
    a.nop(1)
    div_refined(41, 39, 38, 40, 37)
    a("v_cvt_pk_bf16_f32 v41, v41, v41")
    a(f"""
    v_lshrrev_b32 v42, 3, v3
    v_lshl_add_u32 v42, v2, 1, v42
    v_lshl_add_u32 v42, v2, 4, v42
    v_lshlrev_b32 v42, 2, v42
    v_add_u32 v43, 32, v42
    ds_bpermute_b32 v44, v42, v41
    ds_bpermute_b32 v45, v43, v41
    s_waitcnt lgkmcnt(0)
    """)
    job8(WB, 2, [44, 45], 140)
    job8_publish(140, YA, 176)
    stamp(5)
    stamp_store(6)
    a("s_endpgm")

    a("L_helperB:")
    a(f"""
    s_mul_i32 s50, s2, 43691
    s_lshr_b32 s50, s50, 18
    s_mul_i32 s30, s50, 6
    s_sub_u32 s51, s2, s30           ; rs
    s_mul_i32 s48, s51, 96
    """)
    ln_loads(48)
    a(f"""
    s_mov_b32 s36, s20
    s_mov_b32 s37, s21
    s_mov_b32 s38, {576*9216}
    s_mov_b32 s39, 0x20000
    v_add_u32 v23, s48, v2
    s_movk_i32 s31, 9216
    v_mul_lo_u32 v23, v23, s31
    v_lshl_add_u32 v23, v3, 4, v23
    s_lshl_b32 s30, s50, 8
    v_add_u32 v23, s30, v23
    s_cmp_lt_u32 s2, 216
    s_cbranch_scc1 L_hasw1
    v_mov_b32 v23, 0x7f000000
    L_hasw1:
    """)
    for j in range(24):
        a(f"s_mov_b32 s31, {j*36864}")
        a(f"buffer_load_dwordx4 v[{WB+4*j}:{WB+4*j+3}], v23, s[36:39], s31 offen {NT}")
    make_masks(20, 21)
    a("s_barrier")
    a("s_waitcnt vmcnt(24)")
    ln_compute()
    job4(WB, 24, 0)
    a(f"""
    s_waitcnt lgkmcnt(0)
    s_mul_i32 s6, s6, 0x9E3779B1
    s_add_u32 s6, s6, 0x7F4A7C15
    v_lshl_add_u32 v24, v2, 5, v3
    v_lshlrev_b32 v24, 3, v24
    s_mul_i32 s30, s51, {4608*8}
    s_lshl_b32 s31, s50, 10
    s_add_u32 s30, s30, s31
    s_add_u32 s30, s30, {HG}
    v_add_u32 v24, s30, v24
    v_mov_b32 v21, s6
    v_mov_b32 v23, s6
    s_cmp_lt_u32 s2, 216
    s_cbranch_scc0 L_nopubh
    buffer_store_dwordx2 v[20:21], v24, s[44:47], 0 offen sc1
    buffer_store_dwordx2 v[22:23], v24, s[44:47], 0 offen offset:128 sc1
    L_nopubh:
    """)
    stamp(1)
    a(f"""
    s_mul_i32 s50, s2, 9
    s_lshr_b32 s51, s50, 2           ; b0
    s_add_u32 s50, s50, 9
    s_lshr_b32 s50, s50, 2
    s_sub_u32 s50, s50, s51          ; cnt
    s_mov_b32 s36, s22
    s_mov_b32 s37, s23
    s_mov_b32 s38, {4608*1152}
    s_mov_b32 s39, 0x20000
    v_lshrrev_b32 v24, 3, v3
    v_lshl_add_u32 v24, v2, 1, v24
    s_lshl_b32 s30, s51, 3
    v_add_u32 v24, s30, v24
    s_movk_i32 s31, 1152
    v_mul_lo_u32 v24, v24, s31
    v_and_b32 v25, 7, v3
    v_lshl_add_u32 v24, v25, 4, v24
    v_add_u32 v25, 9216, v24
    v_add_u32 v26, 18432, v24
    s_cmp_eq_u32 s50, 3
    s_cbranch_scc1 L_cnt3
    v_mov_b32 v26, 0x7f000000
    L_cnt3:
    """)
    for bb in range(3):
        for blk in range(9):
            j = bb * 9 + blk
            a(f"buffer_load_dwordx4 v[{WB+4*j}:{WB+4*j+3}], v{24+bb}, s[36:39], 0 offen offset:{blk*128} {NT}")
    a(f"""
    v_lshrrev_b32 v4, 5, v0
    s_mov_b32 s31, {4608*8}
    v_mul_lo_u32 v4, v4, s31
    v_and_b32 v5, 31, v0
    s_lshl_b32 s30, s50, 3
    v_cmp_gt_u32 s[54:55], s30, v5
    v_lshl_add_u32 v4, v5, 3, v4
    s_lshl_b32 s30, s51, 6
    s_add_u32 s30, s30, {HG}
    v_add_u32 v4, s30, v4
    v_add_u32 v5, {2*4608*8}, v4
    v_add_u32 v6, {4*4608*8}, v4
    """)
    poll_begin("h")
    a(f"""
    buffer_load_dwordx2 v[28:29], v4, s[44:47], 0 offen sc1
    buffer_load_dwordx2 v[30:31], v5, s[44:47], 0 offen sc1
    buffer_load_dwordx2 v[32:33], v6, s[44:47], 0 offen sc1
    s_waitcnt vmcnt(0)
    """)
    tagcheck(8, [29, 31, 33])
    a("v_cndmask_b32 v8, 0, v8, s[54:55]")
    poll_end("h", 8, sleep=8, code=3)
    a(f"""
    v_add_f32 v28, v28, v30
    v_add_f32 v28, v28, v32
    v_cndmask_b32 v28, 0, v28, s[54:55]
    v_mov_b32 v29, v28
    s_nop 1
    v_permlane32_swap_b32 v28, v29
    v_add_f32 v28, v28, v29
    """)
    to_bf16f(28, 28)
    a(f"""
    s_mov_b32 s60, {LOG2E:#x}
    v_mul_f32 v29, s60, v28
    v_exp_f32 v29, -v29
    s_nop 0
    v_add_f32 v29, 1.0, v29
    v_rcp_f32 v30, v29
    s_nop 0
    """)
    a("v_mul_f32 v31, v28, v30")
    a("v_cvt_pk_bf16_f32 v31, v31, v31")
    a(f"""
    v_lshrrev_b32 v32, 3, v3
    v_lshl_add_u32 v32, v2, 1, v32
    v_lshlrev_b32 v32, 2, v32
    v_add_u32 v33, 32, v32
    v_add_u32 v34, 64, v32
    ds_bpermute_b32 v36, v32, v31
    ds_bpermute_b32 v37, v33, v31
    ds_bpermute_b32 v38, v34, v31
    s_waitcnt lgkmcnt(0)
    """)
    job8(WB, 3, [36, 37, 38], 176)
    job8_publish(176, YB, 64)
    stamp(2)
    def ygather(name, base, code, sleep):
        a(f"""
        s_lshl_b32 s30, s2, 14
        s_add_u32 s30, s30, {base}
        v_lshlrev_b32 v4, 4, v0
        v_add_u32 v4, s30, v4
        v_add_u32 v5, 4096, v4
        v_add_u32 v6, 8192, v4
        v_add_u32 v7, 12288, v4
        """)
        poll_begin(name)
        for i in range(16):
            a(f"buffer_load_dwordx4 v[{96+4*i}:{96+4*i+3}], v{4 + (i >> 2)}, s[44:47], 0 offen offset:{(i & 3)*1024} sc1")
        a("s_waitcnt vmcnt(0)")
        tagcheck(8, [96 + 4*i + o for i in range(16) for o in (1, 3)])
        poll_end(name, 8, sleep=sleep, code=code)
    def ysum(d0, d1):
        for o, d in ((0, d0), (2, d1)):
            n = 16; st = 1
            while n > 1:
                for i in range(0, 16, 2 * st):
                    a(f"v_add_f32 v{96+4*i+o}, v{96+4*i+o}, v{96+4*(i+st)+o}")
                st *= 2; n //= 2
            a(f"v_mov_b32 v{d}, v{96+o}")
        for d in (d0, d1):
            allreduce("v_add_f32", d, 9, rors=(4, 8))
    a("s_cmp_lt_u32 s2, 72")
    a("s_cbranch_scc0 L_notred1")
    ygather("yb", YB, 4, 16)
    ysum(40, 41)
    a("L_notred1:")
    stamp(3)
    a("s_barrier")
    a("s_cmp_lt_u32 s2, 72")
    a("s_cbranch_scc0 L_notred2")
    a(f"""
    s_mov_b32 s32, s8
    s_mov_b32 s33, s9
    s_mov_b32 s34, 1152
    s_mov_b32 s35, 0x20000
    v_and_b32 v10, 3, v0
    v_lshlrev_b32 v10, 2, v10
    s_lshl_b32 s30, s2, 4
    v_add_u32 v10, s30, v10
    buffer_load_dword v11, v10, s[32:35], 0 offen
    """)
    ygather("ya", YA, 5, 0)
    stamp(4)
    ysum(42, 43)
    a("v_cvt_pk_bf16_f32 v42, v42, v43")
    a("v_cvt_pk_bf16_f32 v40, v40, v41")
    a(f"""
    v_lshlrev_b32 v44, 16, v11
    v_and_b32 v45, 0xffff0000, v11
    v_lshlrev_b32 v46, 16, v42
    v_and_b32 v47, 0xffff0000, v42
    v_add_f32 v44, v44, v46
    v_add_f32 v45, v45, v47
    v_cvt_pk_bf16_f32 v44, v44, v45
    v_lshlrev_b32 v46, 16, v44
    v_and_b32 v47, 0xffff0000, v44
    v_lshlrev_b32 v48, 16, v40
    v_and_b32 v49, 0xffff0000, v40
    v_add_f32 v46, v46, v48
    v_add_f32 v47, v47, v49
    v_cvt_pk_bf16_f32 v46, v46, v47
    s_mov_b32 s32, s24
    s_mov_b32 s33, s25
    s_mov_b64 exec, 15
    buffer_store_dword v46, v10, s[32:35], 0 offen
    s_mov_b64 exec, -1
    s_cmp_eq_u32 s2, 0
    s_cbranch_scc0 L_notred2
    v_mov_b32 v4, {EPOCH}
    v_mov_b32 v5, s6
    s_mov_b64 exec, 1
    buffer_store_dword v5, v4, s[44:47], 0 offen sc1
    s_mov_b64 exec, -1
    L_notred2:
    """)
    stamp(5)
    stamp_store(6)
    a("L_end:")
    a("s_endpgm")
    body = a.text()
    txt = f"""{HEADER}; @launch grid=(256,1,1) block=(384,1,1) lds={LDS}
.amdgcn_target "amdgcn-amd-amdhsa--gfx950"
.text
.globl {KN}
.p2align 8
.type {KN},@function
{KN}:
{body}
.section .rodata,"a"
.p2align 6
.amdhsa_kernel {KN}
  .amdhsa_next_free_vgpr 216
  .amdhsa_next_free_sgpr 96
  .amdhsa_accum_offset 216
  .amdhsa_group_segment_fixed_size 0
  .amdhsa_kernarg_size 88
  .amdhsa_user_sgpr_count 2
  .amdhsa_user_sgpr_kernarg_segment_ptr 1
  .amdhsa_system_sgpr_workgroup_id_x 1
.end_amdhsa_kernel
"""
    return txt

if __name__ == "__main__":
    import argparse
    ap = argparse.ArgumentParser()
    ap.add_argument("out")
    ap.add_argument("--nstat", type=int, default=32)
    ap.add_argument("--nohilo", action="store_true")
    ap.add_argument("--ts", action="store_true")
    ap.add_argument("--dbg", action="store_true")
    args = ap.parse_args()
    t = gen(NSTAT=args.nstat, HILO=not args.nohilo, TSTAMP=args.ts, dbg=args.dbg)
    errs = hazard.check(t)
    for e in errs: print("HAZARD", e)
    open(args.out, "w").write(t)
```

```python
import sys
from asmlib import A, NAME, KN
import hazard

WS_SIZE = 0x1000000
EPOCH = 0
CNT   = 0x1000
QG    = 0x10000
HG    = 0x60000
AG    = 0xA0000
SG    = 0x140000
YA    = 0x600000
YB    = 0x740000
TS    = 0x900000
L_Q   = 0
L_ML  = 256
L_FLAG = 320
L_O   = 512
L_S   = 4096
L_ID  = 53248
SSTR  = 12288
LOG2E = 0x3FB8AA3B
SCALE = 0x3DB504F3

HEADER = """; Fused decode step: out = x + MHA(LN(x)) + FFN(LN(x))     (gfx950; hand written, emitted by my own generator script)
; Hand-offs between workgroups are 8-byte {value, tag} granules in d_ws; the tag is derived from
"""

class K(A):
    def nop(self, n):
        while n > 0:
            m = min(n, 16); self(f"s_nop {m-1}"); n -= m

def gen(NV=24, HILO=True, TSTAMP=False, NT="nt", POLLMAX=40000, LDS=86016, dbg=False, W=8, PROG=False,
        W2EARLY=True, WOLATE=False, PF=True, TLB=0, NOPUB=False, NOYB=False, PUBF='sc1 nt', SLF='sc1 nt', YBSF='sc1', YBLF='sc1', HF='sc1 nt', QSF='sc1', QLF='sc1', AGF='sc1', YAF='sc1', B0=False, WOG=False):
    a = K()
    DYN = NV < 32
    NP = 32 - NV; POOL0 = 32 * NV; NPOOL = 32 * NP
    MAXD = 48 - NV if NV < 32 else 0
    MAXD -= MAXD & 1
    MAXD = min(MAXD, 32)
    assert 32 * MAXD >= NPOOL
    assert SG + 32 * NPOOL * 128 + 65536 <= YA
    T0 = [60]

    def stamp(i):
        if TSTAMP:
            a(f"s_memrealtime s[{70+2*i}:{71+2*i}]")
            a("s_waitcnt lgkmcnt(0)")
    def stamp_store(nst, t=60):
        if TSTAMP:
            a("s_waitcnt vmcnt(0)")
            a("s_lshl_b32 s30, s2, 3\ns_add_u32 s30, s30, s3\ns_lshl_b32 s30, s30, 6")
            a(f"s_add_u32 s30, s30, {TS}")
            a("s_mov_b64 exec, 1")
            a(f"v_mov_b32 v{t}, s30")
            for i in range(nst):
                a(f"v_mov_b32 v{t+1}, s{70+2*i}")
                a(f"buffer_store_dword v{t+1}, v{t}, s[44:47], 0 offen offset:{4*i}")
            a("s_getreg_b32 s31, hwreg(HW_REG_XCC_ID)")
            a(f"v_mov_b32 v{t+1}, s31")
            a(f"buffer_store_dword v{t+1}, v{t}, s[44:47], 0 offen offset:60")
            a("s_waitcnt vmcnt(0)")
            a("s_mov_b64 exec, -1")

    def make_masks(tmp1, tmp2):
        a(f"v_and_b32 v{tmp1}, 7, v3")
        a(f"v_and_b32 v{tmp2}, 1, v3")
        a(f"v_lshlrev_b32 v{tmp2}, 4, v{tmp2}")
        a(f"v_mov_b32 v12, 0xffff")
        a(f"v_lshlrev_b32 v{tmp2}, v{tmp2}, v12")
        a(f"v_lshrrev_b32 v{tmp1}, 1, v{tmp1}")
        for w in range(4):
            a(f"v_cmp_eq_u32 vcc, {w}, v{tmp1}")
            a.nop(2)
            a(f"v_cndmask_b32 v{12+w}, 0, v{tmp2}, vcc")

    def allreduce(op, v, t, rors=(8, 4, 2, 1), cross=True):
        for n in rors:
            a.nop(2)
            a(f"{op}_dpp v{v}, v{v}, v{v} row_ror:{n} row_mask:0xf bank_mask:0xf")
        if cross:
            for sw in ("16", "32"):
                a(f"v_mov_b32 v{t}, v{v}")
                a.nop(2)
                a(f"v_permlane{sw}_swap_b32 v{v}, v{t}")
                a(f"{op} v{v}, v{v}, v{t}")

    def to_bf16f(dst, src):
        a(f"v_cvt_pk_bf16_f32 v{dst}, v{src}, v{src}")
        a(f"v_and_b32 v{dst}, 0xffff0000, v{dst}")

    def div_refined(dst, num, den, rcp, t):
        a(f"v_mul_f32 v{dst}, v{num}, v{rcp}")
        a(f"v_fma_f32 v{t}, -v{dst}, v{den}, v{num}")
        a(f"v_fma_f32 v{dst}, v{t}, v{rcp}, v{dst}")

    def poll_begin(name):
        a(f"s_mov_b32 s49, 0")
        a(f"L_{name}_poll:")
    def poll_end(name, acc, sleep=0, code=1):
        a(f"v_cmp_ne_u32 vcc, 0, v{acc}")
        a(f"s_cbranch_vccz L_{name}_ok")
        a(f"s_add_u32 s49, s49, 1")
        if sleep: a(f"s_sleep {sleep}")
        a(f"s_cmp_lt_u32 s49, {POLLMAX}")
        a(f"s_cbranch_scc1 L_{name}_poll")
        if dbg:
            t = T0[0]
            a(f"v_mov_b32 v{t}, {code}\nv_mov_b32 v{t+1}, {4*code}\nglobal_atomic_or v{t+1}, v{t}, s[26:27]")
        a(f"L_{name}_ok:")
    def tagcheck(acc, tagregs):
        it = list(tagregs); tmp = T0[0]
        for i in range(0, len(it), 2):
            pair = it[i:i+2]
            if i == 0:
                a(f"v_xor_b32 v{acc}, s6, v{pair[0]}")
                if len(pair) > 1:
                    a(f"v_xor_b32 v{tmp}, s6, v{pair[1]}")
                    a(f"v_or_b32 v{acc}, v{acc}, v{tmp}")
            else:
                a(f"v_xor_b32 v{tmp}, s6, v{pair[0]}")
                if len(pair) > 1:
                    a(f"v_xor_b32 v{tmp+1}, s6, v{pair[1]}")
                    a(f"v_or3_b32 v{acc}, v{acc}, v{tmp}, v{tmp+1}")
                else:
                    a(f"v_or_b32 v{acc}, v{acc}, v{tmp}")
    def wait_kdone(name, v):
        a(f"v_mov_b32 v{v}, {L_FLAG}")
        a("s_mov_b32 s49, 0")
        a(f"L_{name}_kw:")
        a(f"ds_read_b32 v{v+1}, v{v}")
        a("s_waitcnt lgkmcnt(0)")
        a(f"v_readfirstlane_b32 s30, v{v+1}")
        a("s_add_u32 s49, s49, 1")
        a("s_cmp_ge_u32 s30, 256")
        a(f"s_cbranch_scc1 L_{name}_kd")
        a("s_sleep 16")
        a(f"s_cmp_lt_u32 s49, {POLLMAX * 4}")
        a(f"s_cbranch_scc1 L_{name}_kw")
        a(f"L_{name}_kd:")
    def make_tag():
        a("s_mul_i32 s6, s6, 0x9E3779B1\ns_add_u32 s6, s6, 0x7F4A7C15")

    def ln_loads(row0_sgpr):
        a(f"""
        s_mov_b32 s32, s8
        s_mov_b32 s33, s9
        s_mov_b32 s34, 1152
        s_mov_b32 s35, 0x20000
        v_lshlrev_b32 v20, 3, v0
        v_lshlrev_b32 v21, 1, v0
        v_lshl_add_u32 v22, v3, 2, v2
        v_add_u32 v22, s{row0_sgpr}, v22
        v_lshlrev_b32 v22, 1, v22
        buffer_load_dwordx2 v[4:5], v20, s[32:35], 0 offen
        buffer_load_dwordx2 v[6:7], v20, s[32:35], 0 offen offset:512
        buffer_load_ushort v8, v21, s[32:35], 0 offen offset:1024
        buffer_load_ushort v9, v22, s[32:35], 0 offen
        buffer_load_ushort v10, v22, s[32:35], 0 offen offset:128
        """)
    def ln_compute():
        for i, r in enumerate((4, 5, 6, 7)):
            a(f"v_lshlrev_b32 v{24+2*i}, 16, v{r}")
            a(f"v_and_b32 v{25+2*i}, 0xffff0000, v{r}")
        a("v_lshlrev_b32 v32, 16, v8")
        a("v_add_f32 v33, v24, v25\nv_add_f32 v34, v26, v27\nv_add_f32 v35, v28, v29\nv_add_f32 v36, v30, v31")
        a("v_add_f32 v33, v33, v34\nv_add_f32 v35, v35, v36\nv_add_f32 v33, v33, v32\nv_add_f32 v33, v33, v35")
        allreduce("v_add_f32", 33, 34)
        a("v_mov_b32 v36, 0x44100000")
        a("v_mov_b32 v37, 0x3ae38e39")
        div_refined(38, 33, 36, 37, 34)
        for i in range(9):
            a(f"v_sub_f32 v{24+i}, v{24+i}, v38")
        a("v_mul_f32 v33, v24, v24")
        for i in range(1, 9):
            a(f"v_fmac_f32 v33, v{24+i}, v{24+i}")
        allreduce("v_add_f32", 33, 34)
        div_refined(39, 33, 36, 37, 34)
        to_bf16f(38, 38)
        to_bf16f(39, 39)
        a("v_add_f32 v39, 0x3727c5ac, v39")
        to_bf16f(39, 39)
        a("v_sqrt_f32 v39, v39")
        a.nop(1)
        to_bf16f(39, 39)
        a("v_rcp_f32 v37, v39")
        for r in (9, 10):
            a(f"v_lshlrev_b32 v{r}, 16, v{r}")
            a(f"v_sub_f32 v{r}, v{r}, v38")
            to_bf16f(r, r)
        for r in (9, 10):
            div_refined(33, r, 39, 37, 34)
            a(f"v_cvt_pk_bf16_f32 v{r}, v33, v33")

    def job4(wb, n, nyounger):
        a("v_mov_b32 v16, 0\nv_mov_b32 v17, 0\nv_mov_b32 v18, 0\nv_mov_b32 v19, 0")
        def prep(j):
            src = 9 if j < 16 else 10
            b = 24 + 4 * (j & 1)
            for w in range(4):
                a(f"v_and_b32_dpp v{b+w}, v{src}, v{12+w} row_newbcast:{j & 15} row_mask:0xf bank_mask:0xf")
        a.nop(2)
        prep(0)
        for j in range(n):
            if j + 1 < n: prep(j + 1)
            else: a.nop(2)
            a(f"s_waitcnt vmcnt({min(63, n - 1 - j + nyounger)})")
            b = 24 + 4 * (j & 1)
            a(f"v_mfma_f32_16x16x32_bf16 v[16:19], v[{wb+4*j}:{wb+4*j+3}], v[{b}:{b+3}], v[16:19]")
        a.nop(8)
        a("s_mov_b32 s52, 0xff00ff00\ns_mov_b32 s53, 0xff00ff00")
        a("v_cndmask_b32 v20, v16, v18, s[52:53]")
        a("v_cndmask_b32 v22, v17, v19, s[52:53]")

    def job8_zero(ab):
        for i in range(36): a(f"v_mov_b32 v{ab+i}, 0")
    def job8(wb, nb, mult, ab):
        for bb in range(nb):
            for w in range(4):
                a(f"v_and_b32 v{24+w}, v{mult[bb]}, v{12+w}")
            a.nop(2)
            for blk in range(9):
                j = bb * 9 + blk
                a(f"v_mfma_f32_16x16x32_bf16 v[{ab+4*blk}:{ab+4*blk+3}], v[{wb+4*j}:{wb+4*j+3}], v[24:27], v[{ab+4*blk}:{ab+4*blk+3}]")
        a.nop(6)
    def job8_addr(ybase, v):
        a(f"v_and_b32 v{v}, 1, v2\nv_lshlrev_b32 v{v}, 2, v{v}")
        a(f"v_lshrrev_b32 v21, 3, v3\nv_lshlrev_b32 v21, 1, v21\nv_add_u32 v{v}, v{v}, v21")
        a(f"v_lshrrev_b32 v21, 1, v2\nv_add_u32 v{v}, v{v}, v21")
        a(f"v_lshlrev_b32 v{v}, 1, v{v}\nv_bfe_u32 v21, v3, 2, 1\nv_add_u32 v{v}, v{v}, v21")
        a(f"v_lshlrev_b32 v{v}, 14, v{v}")
        a(f"v_and_b32 v21, 3, v3\nv_lshl_add_u32 v{v}, v21, 4, v{v}")
        a(f"s_lshl_b32 s30, s2, 6\ns_add_u32 s30, s30, {ybase}")
        a(f"v_add_u32 v{v}, s30, v{v}")
    def job8_finish(ab, pairbase):
        for blk in range(9):
            y = ab + 4 * blk
            a(f"v_permlane32_swap_b32 v{y}, v{y+1}")
            a(f"v_permlane32_swap_b32 v{y+2}, v{y+3}")
        for t in range(3):
            for k in range(3):
                blk = 3 * t + k
                y = ab + 4 * blk; pr = pairbase + 4 * t + k
                a(f"v_add_f32_dpp v{pr}, v{y+1}, v{y} row_ror:8 row_mask:0xf bank_mask:0x3")
                a(f"v_add_f32_dpp v{pr}, v{y+2}, v{y+3} row_ror:8 row_mask:0xf bank_mask:0xc")
    def job8_store(pairbase, vaddr, fl):
        for t in range(3):
            a(f"s_mov_b32 s31, {t * 16 * 16384}")
            a(f"buffer_store_dwordx4 v[{pairbase+4*t}:{pairbase+4*t+3}], v{vaddr}, s[44:47], s31 offen {fl}")
    def job8_publish(ab, pairbase, vaddr, fl='sc1'):
        for blk in range(9):
            y = ab + 4 * blk
            a(f"v_permlane32_swap_b32 v{y}, v{y+1}")
            a(f"v_permlane32_swap_b32 v{y+2}, v{y+3}")
        for t in range(3):
            for k in range(3):
                blk = 3 * t + k
                y = ab + 4 * blk; pr = pairbase + 4 * t + k
                a(f"v_add_f32_dpp v{pr}, v{y+1}, v{y} row_ror:8 row_mask:0xf bank_mask:0x3")
                a(f"v_add_f32_dpp v{pr}, v{y+2}, v{y+3} row_ror:8 row_mask:0xf bank_mask:0xc")
            a(f"s_mov_b32 s31, {t * 16 * 16384}")
            a(f"buffer_store_dwordx4 v[{pairbase+4*t}:{pairbase+4*t+3}], v{vaddr}, s[44:47], s31 offen {fl}")

    a(f"""
    s_cmp_ge_u32 s2, 256
    s_cbranch_scc1 L_end
    s_load_dwordx16 s[8:23], s[0:1], 0
    s_load_dwordx4 s[24:27], s[0:1], 64
    s_load_dwordx2 s[28:29], s[0:1], 80
    """)
    if TSTAMP: a("s_memrealtime s[70:71]")
    a(f"""
    v_lshrrev_b32 v1, 6, v0
    v_and_b32 v0, 63, v0
    v_readfirstlane_b32 s3, v1
    s_lshr_b32 s4, s2, 3
    s_and_b32 s5, s2, 7
    v_lshrrev_b32 v2, 4, v0
    v_and_b32 v3, 15, v0
    """)
    if PF:
        a(f"""
        s_cmp_eq_u32 s3, 5
        s_cbranch_scc0 L_nopf
        L_pc:
        s_getpc_b64 s[30:31]
        v_lshlrev_b32 v4, 7, v0
        v_add_u32 v5, 8192, v4
        v_min_u32 v4, L_end-L_pc, v4
        v_min_u32 v5, L_end-L_pc, v5
        global_load_dword v50, v4, s[30:31]
        global_load_dword v51, v5, s[30:31]
        L_nopf:
        """)
    a(f"""
    s_waitcnt lgkmcnt(0)
    s_load_dword s6, s[28:29], {EPOCH}
    s_mov_b32 s44, s28
    s_mov_b32 s45, s29
    s_mov_b32 s46, {WS_SIZE}
    s_mov_b32 s47, 0x20000
    s_cmp_eq_u32 s3, 4
    s_cbranch_scc1 L_helperA
    s_cmp_eq_u32 s3, 5
    s_cbranch_scc1 L_helperB
    """)

    SL = 64
    T0[0] = 62
    def issue(pos, nxt, srd_cur, srd_nxt):
        j = pos & 7
        vo = ((7, 46) if nxt else (5, 6))[j >> 2]
        srd = srd_nxt if nxt else srd_cur
        a(f"buffer_load_dwordx4 v[{SL+4*j}:{SL+4*j+3}], v{vo}, {srd}, 0 offen offset:{(j & 3) * 1024} {NT}")
    def issue_after(n, srd_cur, srd_nxt):
        m = n + W
        issue(m & 7, m >= 8, srd_cur, srd_nxt)
    a(f"""
    s_lshl_b32 s30, s4, 23
    s_add_u32 s32, s10, s30
    s_addc_u32 s33, s11, 0
    s_mov_b32 s34, 0x800000
    s_mov_b32 s35, 0x20000
    s_mul_i32 s56, s5, {4 * NV}
    s_add_u32 s56, s56, s3
    s_lshl_b32 s31, s56, 13
    v_lshlrev_b32 v4, 4, v0
    v_add_u32 v5, s31, v4
    v_add_u32 v6, 4096, v5
    """)
    if B0: a("s_barrier")
    for n in range(W): issue(n, False, "s[32:35]", None)
    a(f"""
    s_add_u32 s36, s12, s30
    s_addc_u32 s37, s13, 0
    s_mov_b32 s38, 0x800000
    s_mov_b32 s39, 0x20000
    s_mov_b32 s42, 0x800000
    s_mov_b32 s43, 0x20000
    s_mov_b32 s57, s56
    s_lshl_b32 s30, s4, 8
    s_add_u32 s30, s30, {CNT}
    s_add_u32 s64, s28, s30
    s_addc_u32 s65, s29, 0
    s_mul_i32 s84, s4, {NPOOL * 128}
    s_add_u32 s84, s84, {SG}
    s_mov_b32 s58, 0                   ; i
    s_mov_b32 s59, 0
    s_mov_b32 s60, {LOG2E:#x}
    s_mov_b32 s61, {SCALE:#x}
    s_mov_b32 s52, 0xcccccccc
    s_mov_b32 s53, 0xcccccccc
    s_mov_b32 s54, 0xaaaaaaaa
    s_mov_b32 s55, 0xaaaaaaaa
    """)
    make_masks(20, 21)
    a(f"""
    v_mov_b32 v16, 0
    v_mov_b32 v17, 0
    v_mov_b32 v18, 0
    v_mov_b32 v19, 0
    v_mov_b32 v20, 0
    v_mov_b32 v22, 0xff800000
    v_lshlrev_b32 v23, 4, v3
    s_mul_i32 s30, s3, {SSTR}
    s_add_u32 s30, s30, {L_S}
    v_lshl_add_u32 v47, v0, 2, s30
    s_lshl_b32 s30, s3, 7
    s_add_u32 s30, s30, {L_ID - 4*NV - 4}
    v_mov_b32 v43, s30
    v_mov_b32 v56, v47
    v_lshrrev_b32 v57, 1, v3
    v_lshlrev_b32 v57, 1, v57
    v_lshrrev_b32 v59, 1, v2
    v_add_u32 v57, v57, v59
    v_lshlrev_b32 v57, 3, v57
    v_and_b32 v59, 1, v2
    v_lshlrev_b32 v59, 4, v59
    v_sub_u32 v59, 16, v59
    s_waitcnt lgkmcnt(0)
    """)
    make_tag()
    stamp(1)
    a("s_barrier")
    a(f"ds_read_b128 v[8:11], v23 offset:{L_Q}")
    a("s_waitcnt lgkmcnt(0)")
    stamp(2)
    a("L_ktile:")
    if PROG:
        a("s_memrealtime s[86:87]\ns_waitcnt lgkmcnt(0)\ns_mov_b32 m0, s58\ns_nop 0\nv_writelane_b32 v100, s86, m0")
    a("s_add_u32 s58, s58, 1")
    a("s_lshl_b32 s31, s58, 2")
    a("s_add_u32 s30, s31, s56")
    if DYN:
        a("s_waitcnt lgkmcnt(0)")
        a(f"s_add_u32 s31, s59, {POOL0}")
        a(f"s_cmp_lt_u32 s58, {NV}")
        a("s_cselect_b32 s62, s30, s31")
        a("s_mov_b32 s59, 0x10000")
        a(f"s_cmp_lt_u32 s58, {NV-1}")
        a("s_cbranch_scc1 L_knotk")
        a(f"s_cmp_ge_u32 s58, {NV + MAXD - 1}")
        a("s_cbranch_scc1 L_knotk")
        a("s_cmp_ge_u32 s62, 1024")
        a("s_cbranch_scc1 L_knotk")
        a("s_mov_b32 s59, 1")
        a("s_atomic_add s59, s[64:65], 0 glc")
        a("L_knotk:")
        a("s_cmp_lt_u32 s62, 1024")
    else:
        a("s_mov_b32 s62, s30")
        a(f"s_cmp_lt_u32 s58, {NV}")
    a("s_cselect_b32 s83, 1, 0")
    a("s_cselect_b32 s62, s62, s56")
    a("s_cselect_b32 s40, s32, s36")
    a("s_cselect_b32 s41, s33, s37")
    a("s_lshl_b32 s63, s62, 13")
    a("v_add_u32 v7, s63, v4\nv_add_u32 v46, 4096, v7")
    for j in range(8):
        a(f"s_waitcnt vmcnt({W-1})")
        P = 24 + j; sl = SL + 4 * j
        a(f"v_dot2_f32_bf16 v{P}, v{sl}, v8, 0")
        a(f"v_dot2_f32_bf16 v{P}, v{sl+1}, v9, v{P}")
        a(f"v_dot2_f32_bf16 v{P}, v{sl+2}, v10, v{P}")
        a(f"v_dot2_f32_bf16 v{P}, v{sl+3}, v11, v{P}")
        issue_after(j, "s[32:35]", "s[40:43]")
    for j in range(4):
        a(f"v_add_f32_dpp v{32+j}, v{24+j}, v{24+j} row_ror:8 row_mask:0xf bank_mask:0x3")
        a(f"v_add_f32_dpp v{32+j}, v{28+j}, v{28+j} row_ror:8 row_mask:0xf bank_mask:0xc")
    for j in range(2):
        a(f"v_add_f32_dpp v{36+j}, v{32+j}, v{32+j} row_shl:4 row_mask:0xf bank_mask:0x5")
        a(f"v_add_f32_dpp v{36+j}, v{34+j}, v{34+j} row_shr:4 row_mask:0xf bank_mask:0xa")
    a("v_mov_b32 v5, v7")
    a("v_add_f32_dpp v38, v36, v36 quad_perm:[2,3,0,1] row_mask:0xf bank_mask:0xf")
    a("v_add_f32_dpp v39, v37, v37 quad_perm:[2,3,0,1] row_mask:0xf bank_mask:0xf")
    a("v_cndmask_b32 v40, v38, v39, s[52:53]")
    a("v_mov_b32 v6, v46")
    if DYN: a("v_mov_b32 v41, s57")
    else: a("s_nop 0")
    a("v_add_f32_dpp v40, v40, v40 quad_perm:[1,0,3,2] row_mask:0xf bank_mask:0xf")
    a("v_cvt_pk_bf16_f32 v40, v40, v40")
    a("v_and_b32 v40, 0xffff0000, v40")
    a("v_mul_f32 v40, s61, v40")
    a("v_cvt_pk_bf16_f32 v40, v40, v40")
    a("v_and_b32 v40, 0xffff0000, v40")
    a("ds_write_b32 v56, v40")
    if DYN:
        a(f"s_cmp_gt_u32 s58, {NV}")
        a("s_cbranch_scc0 L_noid")
        a("s_lshl_b32 s30, s58, 2")
        a("v_add_u32 v42, s30, v43")
        a("ds_write_b32 v42, v41 offset:0")
        a("L_noid:")
    a("v_max_f32 v22, v22, v40")
    a("v_add_u32 v56, 256, v56")
    a("s_mov_b32 s57, s62")
    a("s_cmp_eq_u32 s83, 1")
    a("s_cbranch_scc1 L_ktile")
    stamp(5)
    a(f"v_mov_b32 v41, {L_FLAG}")
    a("v_mov_b32 v42, 1")
    a("s_waitcnt lgkmcnt(0)")
    a("ds_add_u32 v41, v42")
    a("ds_read_b32 v58, v47")
    allreduce("v_max_f32", 22, 41, rors=(8, 4, 2))
    a("v_mul_f32 v21, s60, v22")
    a("v_add_u32 v56, 256, v47")
    a("s_mov_b32 s58, 0")
    a("s_mov_b64 s[66:67], -1")
    a("s_mov_b32 s82, 0x7f000000")
    a("s_add_u32 s64, s64, 128\ns_addc_u32 s65, s65, 0")
    a("L_vtile:")
    a(f"s_waitcnt vmcnt({W}) lgkmcnt(0)")
    if PROG:
        a("s_memrealtime s[86:87]\ns_waitcnt lgkmcnt(0)\ns_mov_b32 m0, s58\ns_nop 0\nv_writelane_b32 v101, s86, m0")
    a("s_add_u32 s58, s58, 1")
    a("s_lshl_b32 s30, s58, 2")
    a("s_add_u32 s30, s30, s56")
    if DYN:
        a("v_lshlrev_b32 v60, v59, v60")
        a("v_cmp_ne_u32 vcc, s6, v61")
        a("v_and_b32 v60, 0xffff0000, v60")
        a("v_cndmask_b32 v40, v60, v58, s[66:67]")
        a(f"s_add_u32 s31, s59, {POOL0}")
        a("s_andn2_b64 s[68:69], vcc, s[66:67]")
        if not NOPUB: a("s_cbranch_scc1 L_retry")
        a("L_retry_back:")
        a(f"s_cmp_lt_u32 s58, {NV}")
        a("s_cselect_b32 s62, s30, s31")
        a("s_cselect_b64 s[66:67], -1, 0")
        a(f"s_cmp_lt_u32 s58, {NV-1}")
        a("s_cbranch_scc1 L_notk")
        a("s_mov_b32 s59, 1")
        a("s_atomic_add s59, s[64:65], 0 glc")
        a("L_notk:")
        a(f"s_sub_u32 s83, s62, {POOL0}")
        a("s_cselect_b32 s31, 1, 0")
        a("s_lshl_b32 s83, s83, 7")
        a("s_add_u32 s83, s83, s84")
        a("s_cmp_eq_u32 s31, 1")
        a("s_cselect_b32 s83, 0x7f000000, s83")
        a(f"buffer_load_dwordx2 v[60:61], v57, s[44:47], s83 offen {SLF}")
    else:
        a("v_mov_b32 v40, v58")
        a(f"s_cmp_lt_u32 s58, {NV}")
        a("s_cselect_b32 s62, s30, 1024")
    a("ds_read_b32 v58, v56")
    a("v_add_u32 v56, 256, v56")
    a("s_lshl_b32 s63, s62, 13")
    a("v_add_u32 v7, s63, v4\nv_add_u32 v46, 4096, v7")
    a("v_cmp_lt_f32 vcc, v22, v40")
    a("s_cbranch_vccnz L_rare")
    a("L_back:")
    a("v_fma_f32 v41, v40, s60, -v21")
    a("v_exp_f32 v41, v41")
    a("s_nop 0")
    a("v_add_f32 v20, v20, v41")
    a("v_cvt_pk_bf16_f32 v42, v41, v41")
    if HILO:
        a("v_and_b32 v43, 0xffff0000, v42")
        a("v_sub_f32 v43, v41, v43")
        a("v_cvt_pk_bf16_f32 v43, v43, v43")
        a("v_cndmask_b32 v42, v42, v43, s[54:55]")
    a.nop(2)
    def prepB(j):
        b = 48 + 4 * (j & 1)
        if HILO:
            y = 44 + (j & 1)
            a(f"v_mov_b32_dpp v{y}, v42 row_newbcast:{2*j} row_mask:0xf bank_mask:0x3")
            a(f"v_mov_b32_dpp v{y}, v42 row_newbcast:{2*j+1} row_mask:0xf bank_mask:0xc")
            for w in range(4): a(f"v_and_b32 v{b+w}, v{y}, v{12+w}")
        else:
            for w in range(4):
                a(f"v_and_b32_dpp v{b+w}, v42, v{12+w} row_newbcast:{2*j} row_mask:0xf bank_mask:0xf")
    prepB(0)
    for j in range(8):
        if j < 7: prepB(j + 1)
        else: a.nop(1)
        n = (W if j < W else W - 1) if DYN else W - 1
        a(f"s_waitcnt vmcnt({n})")
        b = 48 + 4 * (j & 1); sl = SL + 4 * j
        a(f"v_mfma_f32_16x16x32_bf16 v[16:19], v[{sl}:{sl+3}], v[{b}:{b+3}], v[16:19]")
        issue_after(j, "s[36:39]", "s[36:39]")
    a("v_mov_b32 v5, v7\nv_mov_b32 v6, v46")
    if DYN: a("s_mov_b32 s82, s83")
    a("s_cmp_lt_u32 s62, 1024")
    a("s_cbranch_scc1 L_vtile")
    stamp(3)
    allreduce("v_add_f32", 20, 27)
    a("v_mul_f32 v23, 0.5, v20")
    if HILO:
        for r in range(4):
            a(f"v_add_f32_dpp v{16+r}, v{16+r}, v{16+r} row_ror:8 row_mask:0xf bank_mask:0xf")
    a("s_mov_b32 s52, 0xff00ff00\ns_mov_b32 s53, 0xff00ff00")
    a("v_lshl_add_u32 v26, v2, 5, v3")
    a("v_lshlrev_b32 v26, 2, v26")
    a(f"s_lshl_b32 s30, s3, 9")
    a("v_add_u32 v26, s30, v26")
    a("v_cndmask_b32 v24, v16, v17, s[52:53]")
    a("v_cndmask_b32 v25, v18, v19, s[52:53]")
    a("s_lshl_b32 s30, s3, 3")
    a("v_mov_b32 v27, s30")
    a(f"ds_write_b32 v26, v24 offset:{L_O}")
    a(f"ds_write_b32 v26, v25 offset:{L_O + 64}")
    a("s_mov_b64 exec, 1")
    a(f"ds_write_b64 v27, v[22:23] offset:{L_ML}")
    a("s_mov_b64 exec, -1")
    a("s_waitcnt lgkmcnt(0)")
    a("s_barrier")
    stamp(4)
    if PROG:
        a("s_waitcnt vmcnt(0)")
        a("s_lshl_b32 s30, s2, 3\ns_add_u32 s30, s30, s3\ns_lshl_b32 s30, s30, 9")
        a(f"s_add_u32 s30, s30, {TS + 0x100000}")
        a("v_lshl_add_u32 v62, v0, 2, s30")
        a("buffer_store_dword v100, v62, s[44:47], 0 offen")
        a("buffer_store_dword v101, v62, s[44:47], 0 offen offset:256")
        a("s_mov_b32 s72, s58")
    stamp_store(6)
    a("s_endpgm")
    a("L_rare:")
    a("v_mov_b32 v41, v40")
    for n in (8, 4, 2):
        a.nop(2)
        a(f"v_max_f32_dpp v41, v41, v41 row_ror:{n} row_mask:0xf bank_mask:0xf")
    a.nop(2)
    a("v_max_f32_dpp v41, v41, v41 row_bcast:15 row_mask:0xa bank_mask:0xf")
    a.nop(2)
    a("v_max_f32_dpp v41, v41, v41 row_bcast:31 row_mask:0xc bank_mask:0xf")
    a.nop(1)
    a("v_readlane_b32 s30, v41, 63")
    a.nop(2)
    a("v_mov_b32 v22, s30")
    a("v_mul_f32 v42, s60, v22")
    a("v_sub_f32 v43, v21, v42")
    a("v_exp_f32 v43, v43")
    a("v_mov_b32 v21, v42")
    for r in (16, 17, 18, 19, 20):
        a(f"v_mul_f32 v{r}, v{r}, v43")
    a("s_branch L_back")
    if DYN:
        a("L_retry:")
        a("s_mov_b32 s49, 0")
        a("L_retry_loop:")
        a("buffer_load_dwordx2 v[60:61], v57, s[44:47], s82 offen sc1")
        a("s_waitcnt vmcnt(0)")
        a("v_cmp_ne_u32 vcc, s6, v61")
        a("s_cbranch_vccz L_retry_done")
        a("s_add_u32 s49, s49, 1")
        a("s_sleep 2")
        a(f"s_cmp_lt_u32 s49, {POLLMAX}")
        a("s_cbranch_scc1 L_retry_loop")
        if dbg: a("v_mov_b32 v62, 6\nv_mov_b32 v63, 24\nglobal_atomic_or v63, v62, s[26:27]")
        a("L_retry_done:")
        a("v_lshlrev_b32 v60, v59, v60")
        a("v_and_b32 v40, 0xffff0000, v60")
        a("s_branch L_retry_back")

    a("L_helperA:")
    T0[0] = 60
    WB = 64
    if DYN:
        a(f"""
        s_cmp_eq_u32 s5, 0
        s_cbranch_scc0 L_nozero
        s_lshl_b32 s30, s4, 8
        s_add_u32 s30, s30, {CNT}
        v_lshl_add_u32 v4, v0, 7, s30
        v_mov_b32 v5, 0
        s_mov_b64 exec, 3
        buffer_store_dword v5, v4, s[44:47], 0 offen sc1
        s_mov_b64 exec, -1
        L_nozero:
        v_lshlrev_b32 v4, 3, v0
        v_mov_b32 v6, -1
        v_mov_b32 v7, -1
        ds_write_b64 v4, v[6:7] offset:{L_ID}
        """)
    a(f"v_mov_b32 v4, {L_FLAG}\nv_mov_b32 v5, 0\nds_write_b32 v4, v5")
    a("s_mul_i32 s48, s5, 72")
    ln_loads(48)
    a(f"""
    s_mov_b32 s36, s14
    s_mov_b32 s37, s15
    s_mov_b32 s38, {576*8192}
    s_mov_b32 s39, 0x20000
    v_add_u32 v23, s48, v2
    v_lshlrev_b32 v23, 13, v23
    v_lshl_add_u32 v23, v3, 4, v23
    s_lshl_b32 s30, s4, 8
    v_add_u32 v23, s30, v23
    """)
    for j in range(18):
        a(f"s_mov_b32 s31, {j*32768}")
        a(f"buffer_load_dwordx4 v[{WB+4*j}:{WB+4*j+3}], v23, s[36:39], s31 offen {NT}")
    if B0: a("s_barrier")
    make_masks(20, 21)
    a("s_waitcnt vmcnt(18)")
    ln_compute()
    job4(WB, 18, 0)
    a(f"s_waitcnt lgkmcnt(0)")
    make_tag()
    a(f"""
    v_lshlrev_b32 v24, 4, v0
    s_lshl_b32 s30, s2, 10
    s_add_u32 s30, s30, {QG}
    v_add_u32 v24, s30, v24
    v_mov_b32 v21, s6
    v_mov_b32 v23, s6
    buffer_store_dwordx4 v[20:23], v24, s[44:47], 0 offen {QSF}
    """)
    stamp(1)
    def wo_loads():
        a(f"""
        s_mov_b32 s36, s16
        s_mov_b32 s37, s17
        s_mov_b32 s38, {4096*1152}
        s_mov_b32 s39, 0x20000
        v_lshrrev_b32 v58, 3, v3
        v_lshl_add_u32 v58, v2, 1, v58
        s_lshl_b32 s30, s2, 4
        v_add_u32 v58, s30, v58
        s_movk_i32 s31, 1152
        v_mul_lo_u32 v58, v58, s31
        v_and_b32 v59, 7, v3
        v_lshl_add_u32 v58, v59, 4, v58
        v_add_u32 v59, 9216, v58
        """)
        for bb in range(2):
            for blk in range(9):
                j = bb * 9 + blk
                a(f"buffer_load_dwordx4 v[{WB+4*j}:{WB+4*j+3}], v{58+bb}, s[36:39], 0 offen offset:{blk*128} {NT}")
    if not WOLATE and not WOG: wo_loads()
    a(f"""
    s_lshl_b32 s30, s4, 13
    s_add_u32 s30, s30, {QG}
    v_lshlrev_b32 v4, 4, v0
    v_add_u32 v4, s30, v4
    v_add_u32 v5, 4096, v4
    """)
    def qloads():
        for p in range(8):
            a(f"buffer_load_dwordx4 v[{24+4*p}:{24+4*p+3}], v{4 + (p >> 2)}, s[44:47], 0 offen offset:{(p & 3) * 1024} {QLF}")
    if WOG:
        qloads()
        wo_loads()
        a("s_mov_b32 s49, 0")
        a("s_waitcnt vmcnt(18)")
        a("s_branch L_q_chk")
        a("L_q_poll:")
        qloads()
        a("s_waitcnt vmcnt(0)")
        a("L_q_chk:")
    else:
        poll_begin("q")
        qloads()
        a("s_waitcnt vmcnt(0)")
    tagcheck(6, [24 + 4*p + o for p in range(8) for o in (1, 3)])
    poll_end("q", 6, code=1)
    for o in (0, 2):
        a(f"v_add_f32 v{24+o}, v{24+o}, v{28+o}")
        a(f"v_add_f32 v{32+o}, v{32+o}, v{36+o}")
        a(f"v_add_f32 v{40+o}, v{40+o}, v{44+o}")
        a(f"v_add_f32 v{48+o}, v{48+o}, v{52+o}")
        a(f"v_add_f32 v{24+o}, v{24+o}, v{32+o}")
        a(f"v_add_f32 v{40+o}, v{40+o}, v{48+o}")
        a(f"v_add_f32 v{24+o}, v{24+o}, v{40+o}")
    a("v_cvt_pk_bf16_f32 v24, v24, v26")
    a("v_and_b32 v25, 8, v3\nv_add_u32 v25, v25, v3\nv_lshl_add_u32 v25, v2, 5, v25\nv_lshlrev_b32 v25, 1, v25")
    a(f"ds_write_b16 v25, v24 offset:{L_Q}")
    a(f"ds_write_b16_d16_hi v25, v24 offset:{L_Q + 16}")
    a("s_waitcnt lgkmcnt(0)")
    stamp(2)
    a("s_barrier")
    if WOLATE and not WOG: wo_loads()
    if TLB:
        a(f"""
        s_lshl_b32 s30, s4, 23
        s_add_u32 s32, s10, s30
        s_addc_u32 s33, s11, 0
        s_mov_b32 s34, 0x800000
        s_mov_b32 s35, 0x20000
        s_add_u32 s40, s12, s30
        s_addc_u32 s41, s13, 0
        s_mov_b32 s42, 0x800000
        s_mov_b32 s43, 0x20000
        s_mul_i32 s31, s5, {4*NV*8192}
        v_lshlrev_b32 v4, {TLB}, v0
        s_mul_i32 s30, s2, 0x1500
        s_and_b32 s30, s30, 0x7f00
        v_mul_u32_u24 v5, 0x1100, v0
        v_add_u32 v5, s30, v5
        v_and_b32 v5, 0x7f00, v5
        v_add_u32 v4, v4, v5
        v_add_u32 v5, s31, v4
        v_mov_b32 v7, 0x7f000000
        v_cmp_gt_u32 vcc, {4*NV*8192}, v4
        v_add_u32 v6, {POOL0*8192}, v4
        s_nop 0
        v_cndmask_b32 v5, v7, v5, vcc
        buffer_load_dword v196, v5, s[40:43], 0 offen {NT}
        buffer_load_dword v197, v6, s[40:43], 0 offen {NT}
        buffer_load_dword v198, v6, s[32:35], 0 offen {NT}
        """)
    AB = 140; PR = 176
    job8_zero(AB)
    for t in range(3): a(f"v_mov_b32 v{PR+4*t+3}, s6")
    job8_addr(YA, 20)
    a(f"""
    v_lshrrev_b32 v56, 3, v3
    v_lshl_add_u32 v56, v2, 1, v56
    v_lshl_add_u32 v56, v2, 4, v56
    v_lshlrev_b32 v56, 2, v56
    v_add_u32 v57, 32, v56
    s_mov_b32 s60, {LOG2E:#x}
    """)
    if DYN and not NOPUB:
        wait_kdone("ha", 4)
        a(f"""
        v_lshrrev_b32 v4, 3, v0
        v_and_b32 v4, 3, v4                  ; w
        s_movk_i32 s30, {SSTR}
        v_mul_lo_u32 v5, v4, s30
        v_lshrrev_b32 v6, 5, v0
        v_lshl_add_u32 v5, v6, 8, v5
        v_and_b32 v7, 7, v0
        v_lshl_add_u32 v5, v7, 3, v5
        v_lshlrev_b32 v4, 7, v4
        v_lshl_add_u32 v4, v6, 2, v4
        v_lshlrev_b32 v7, 4, v7              ; j*16
        s_mul_i32 s30, s4, {NPOOL*128}
        s_add_u32 s30, s30, {SG - POOL0*128}
        v_add_u32 v7, s30, v7
        v_mov_b32 v9, 0x7f000000
        s_mov_b32 s62, 0x07060302
        v_mov_b32 v25, s6
        v_mov_b32 v27, s6
        s_mov_b32 s49, 0
        L_pub:
        ds_read_b32 v8, v4 offset:{L_ID}
        ds_read_b32 v28, v5 offset:{L_S + NV*256}
        ds_read_b32 v29, v5 offset:{L_S + NV*256 + 64}
        ds_read_b32 v30, v5 offset:{L_S + NV*256 + 128}
        ds_read_b32 v31, v5 offset:{L_S + NV*256 + 192}
        s_waitcnt lgkmcnt(0)
        v_cmp_gt_u32 vcc, 1024, v8
        s_cbranch_vccz L_pub_done
        v_lshl_add_u32 v6, v8, 7, v7
        v_perm_b32 v24, v29, v28, s62
        v_perm_b32 v26, v31, v30, s62
        v_cndmask_b32 v6, v9, v6, vcc
        buffer_store_dwordx4 v[24:27], v6, s[44:47], 0 offen {PUBF}
        v_add_u32 v4, 8, v4
        v_add_u32 v5, 512, v5
        s_add_u32 s49, s49, 1
        s_waitcnt vmcnt(0)
        s_cmp_lt_u32 s49, {MAXD//2}
        s_cbranch_scc1 L_pub
        L_pub_done:
        """)
    a(f"""
    s_lshl_b32 s30, s2, 11
    s_add_u32 s30, s30, {AG}
    v_lshlrev_b32 v10, 4, v0
    v_add_u32 v10, s30, v10
    v_mov_b32 v11, s30
    s_lshl_b32 s30, s4, 14
    s_add_u32 s30, s30, {AG}
    v_lshlrev_b32 v4, 11, v2
    v_add_u32 v4, s30, v4
    v_add_u32 v5, 8192, v4
    s_lshl_b32 s31, s5, 7
    v_lshl_add_u32 v6, v3, 3, s31
    v_add_u32 v7, v5, v6
    v_add_u32 v6, v4, v6
    v_mov_b32 v8, 0
    v_lshlrev_b32 v9, 3, v0
    v_mov_b32 v41, s6
    v_mov_b32 v43, s6
    v_mov_b32 v45, s6
    v_mov_b32 v47, s6
    s_waitcnt vmcnt(0)
    """)
    a("s_barrier")
    stamp(3)
    a(f"""
    ds_read_b128 v[24:27], v8 offset:{L_ML}
    ds_read_b128 v[28:31], v8 offset:{L_ML + 16}
    ds_read_b64 v[32:33], v9 offset:{L_O}
    ds_read_b64 v[34:35], v9 offset:{L_O + 512}
    ds_read_b64 v[36:37], v9 offset:{L_O + 1024}
    ds_read_b64 v[38:39], v9 offset:{L_O + 1536}
    s_waitcnt lgkmcnt(4)
    v_max_f32 v40, v24, v26
    v_max3_f32 v40, v40, v28, v30
    v_sub_f32 v24, v24, v40
    v_sub_f32 v26, v26, v40
    v_sub_f32 v28, v28, v40
    v_sub_f32 v30, v30, v40
    v_mul_f32 v24, s60, v24
    v_mul_f32 v26, s60, v26
    v_mul_f32 v28, s60, v28
    v_mul_f32 v30, s60, v30
    v_exp_f32 v24, v24
    v_exp_f32 v26, v26
    v_exp_f32 v28, v28
    v_exp_f32 v30, v30
    s_waitcnt lgkmcnt(0)
    v_mul_f32 v42, v24, v25
    v_mul_f32 v44, v24, v32
    v_mul_f32 v46, v24, v33
    v_fmac_f32 v42, v26, v27
    v_fmac_f32 v44, v26, v34
    v_fmac_f32 v46, v26, v35
    v_fmac_f32 v42, v28, v29
    v_fmac_f32 v44, v28, v36
    v_fmac_f32 v46, v28, v37
    v_fmac_f32 v42, v30, v31
    v_fmac_f32 v44, v30, v38
    v_fmac_f32 v46, v30, v39
    buffer_store_dwordx4 v[44:47], v10, s[44:47], 0 offen {AGF}
    s_mov_b64 exec, 1
    buffer_store_dwordx4 v[40:43], v11, s[44:47], 0 offen offset:1024 {AGF}
    s_mov_b64 exec, -1
    """)
    poll_begin("ag")
    a(f"""
    buffer_load_dwordx2 v[24:25], v6, s[44:47], 0 offen {AGF}
    buffer_load_dwordx2 v[26:27], v7, s[44:47], 0 offen {AGF}
    buffer_load_dwordx4 v[28:31], v4, s[44:47], 0 offen offset:1024 {AGF}
    buffer_load_dwordx4 v[32:35], v5, s[44:47], 0 offen offset:1024 {AGF}
    s_waitcnt vmcnt(0)
    """)
    tagcheck(8, [25, 27, 29, 31, 33, 35])
    poll_end("ag", 8, code=2)
    stamp(4)
    a("v_max_f32 v36, v28, v32")
    allreduce("v_max_f32", 36, 37, rors=())
    a(f"""
    v_sub_f32 v28, v28, v36
    v_sub_f32 v32, v32, v36
    v_mul_f32 v28, s60, v28
    v_mul_f32 v32, s60, v32
    v_exp_f32 v28, v28
    v_exp_f32 v32, v32
    s_nop 0
    v_mul_f32 v38, v28, v30
    v_mul_f32 v39, v28, v24
    v_fmac_f32 v38, v32, v34
    v_fmac_f32 v39, v32, v26
    v_mov_b32 v36, v38
    v_mov_b32 v37, v39
    s_nop 0
    v_permlane16_swap_b32 v38, v36
    v_permlane16_swap_b32 v39, v37
    v_add_f32 v38, v38, v36
    v_add_f32 v39, v39, v37
    v_mov_b32 v36, v38
    v_mov_b32 v37, v39
    s_nop 0
    v_permlane32_swap_b32 v38, v36
    v_permlane32_swap_b32 v39, v37
    v_add_f32 v38, v38, v36
    v_add_f32 v39, v39, v37
    v_rcp_f32 v40, v38
    s_nop 0
    """)
    div_refined(41, 39, 38, 40, 37)
    a("v_cvt_pk_bf16_f32 v41, v41, v41")
    a(f"""
    ds_bpermute_b32 v44, v56, v41
    ds_bpermute_b32 v45, v57, v41
    s_waitcnt lgkmcnt(0)
    """)
    job8(WB, 2, [44, 45], AB)
    job8_publish(AB, PR, 20, YAF)
    stamp(5)
    stamp_store(6)
    a("s_endpgm")

    a("L_helperB:")
    T0[0] = 46
    W1B = 52; W2B = 148
    a(f"""
    s_mul_i32 s50, s2, 43691
    s_lshr_b32 s50, s50, 18
    s_mul_i32 s30, s50, 6
    s_sub_u32 s51, s2, s30           ; rs
    s_mul_i32 s48, s51, 96
    """)
    ln_loads(48)
    a(f"""
    s_mov_b32 s36, s20
    s_mov_b32 s37, s21
    s_mov_b32 s38, {576*9216}
    s_mov_b32 s39, 0x20000
    v_add_u32 v23, s48, v2
    s_movk_i32 s31, 9216
    v_mul_lo_u32 v23, v23, s31
    v_lshl_add_u32 v23, v3, 4, v23
    s_lshl_b32 s30, s50, 8
    v_add_u32 v23, s30, v23
    s_cmp_lt_u32 s2, 216
    s_cbranch_scc1 L_hasw1
    v_mov_b32 v23, 0x7f000000
    L_hasw1:
    """)
    if B0: a("s_barrier")
    for j in range(24):
        a(f"s_mov_b32 s31, {j*36864}")
        a(f"buffer_load_dwordx4 v[{W1B+4*j}:{W1B+4*j+3}], v23, s[36:39], s31 offen {NT}")
    def w2_loads():
        a(f"""
        s_mul_i32 s86, s2, 9
        s_lshr_b32 s87, s86, 2           ; b0
        s_add_u32 s86, s86, 9
        s_lshr_b32 s86, s86, 2
        s_sub_u32 s86, s86, s87          ; cnt
        s_mov_b32 s40, s22
        s_mov_b32 s41, s23
        s_mov_b32 s42, {4608*1152}
        s_mov_b32 s43, 0x20000
        v_lshrrev_b32 v40, 3, v3
        v_lshl_add_u32 v40, v2, 1, v40
        s_lshl_b32 s30, s87, 3
        v_add_u32 v40, s30, v40
        s_movk_i32 s31, 1152
        v_mul_lo_u32 v40, v40, s31
        v_and_b32 v41, 7, v3
        v_lshl_add_u32 v40, v41, 4, v40
        v_add_u32 v41, 9216, v40
        v_add_u32 v42, 18432, v40
        s_cmp_eq_u32 s86, 3
        s_cbranch_scc1 L_cnt3
        v_mov_b32 v42, 0x7f000000
        L_cnt3:
        """)
        for bb in range(3):
            for blk in range(9):
                j = bb * 9 + blk
                a(f"buffer_load_dwordx4 v[{W2B+4*j}:{W2B+4*j+3}], v{40+bb}, s[40:43], 0 offen offset:{blk*128} {NT}")
    if W2EARLY: w2_loads()
    make_masks(20, 21)
    a("s_barrier")
    nyo = 27 if W2EARLY else 0
    a(f"s_waitcnt vmcnt({24 + nyo})")
    ln_compute()
    job4(W1B, 24, nyo)
    a(f"s_waitcnt lgkmcnt(0)")
    make_tag()
    a(f"""
    v_lshlrev_b32 v24, 4, v0
    s_mul_i32 s30, s51, {4608*8}
    s_lshl_b32 s31, s50, 10
    s_add_u32 s30, s30, s31
    s_add_u32 s30, s30, {HG}
    v_add_u32 v24, s30, v24
    v_mov_b32 v21, s6
    v_mov_b32 v23, s6
    s_cmp_lt_u32 s2, 216
    s_cbranch_scc0 L_nopubh
    buffer_store_dwordx4 v[20:23], v24, s[44:47], 0 offen {HF}
    L_nopubh:
    """)
    stamp(1)
    if not W2EARLY: w2_loads()
    a(f"""
    v_lshrrev_b32 v4, 5, v0
    s_mov_b32 s31, {4608*8}
    v_mul_lo_u32 v4, v4, s31
    v_and_b32 v5, 31, v0
    s_lshl_b32 s30, s86, 3
    v_cmp_gt_u32 s[54:55], s30, v5
    s_lshl_b32 s30, s87, 3
    v_add_u32 v5, s30, v5
    v_lshrrev_b32 v6, 4, v5
    v_lshlrev_b32 v6, 3, v6                 ; *8 lanes
    v_and_b32 v7, 7, v5
    v_add_u32 v6, v6, v7
    v_lshlrev_b32 v6, 4, v6
    v_bfe_u32 v7, v5, 3, 1
    v_lshl_add_u32 v6, v7, 3, v6
    v_add_u32 v4, v4, v6
    v_add_u32 v4, {HG}, v4
    v_add_u32 v5, {2*4608*8}, v4
    v_add_u32 v6, {4*4608*8}, v4
    """)
    AB = 52; PR = 88
    job8_zero(AB)
    for t in range(3): a(f"v_mov_b32 v{PR+4*t+3}, s6")
    job8_addr(YB, 20)
    poll_begin("h")
    a(f"""
    buffer_load_dwordx2 v[28:29], v4, s[44:47], 0 offen {HF}
    buffer_load_dwordx2 v[30:31], v5, s[44:47], 0 offen {HF}
    buffer_load_dwordx2 v[32:33], v6, s[44:47], 0 offen {HF}
    s_waitcnt vmcnt(0)
    """)
    tagcheck(8, [29, 31, 33])
    a("v_cndmask_b32 v8, 0, v8, s[54:55]")
    poll_end("h", 8, sleep=16, code=3)
    a(f"""
    v_add_f32 v28, v28, v30
    v_add_f32 v28, v28, v32
    v_cndmask_b32 v28, 0, v28, s[54:55]
    v_mov_b32 v29, v28
    s_nop 1
    v_permlane32_swap_b32 v28, v29
    v_add_f32 v28, v28, v29
    """)
    to_bf16f(28, 28)
    a(f"""
    s_mov_b32 s60, {LOG2E:#x}
    v_mul_f32 v29, s60, v28
    v_exp_f32 v29, -v29
    s_nop 0
    v_add_f32 v29, 1.0, v29
    v_rcp_f32 v30, v29
    s_nop 0
    v_mul_f32 v31, v28, v30
    v_cvt_pk_bf16_f32 v31, v31, v31
    v_lshrrev_b32 v32, 3, v3
    v_lshl_add_u32 v32, v2, 1, v32
    v_lshlrev_b32 v32, 2, v32
    v_add_u32 v33, 32, v32
    v_add_u32 v34, 64, v32
    ds_bpermute_b32 v36, v32, v31
    ds_bpermute_b32 v37, v33, v31
    ds_bpermute_b32 v38, v34, v31
    s_waitcnt lgkmcnt(0)
    """)
    job8(W2B, 3, [36, 37, 38], AB)
    job8_finish(AB, PR)
    stamp(2)
    GB = 148
    def yaddr(base):
        a(f"""
        s_lshl_b32 s30, s2, 14
        s_add_u32 s30, s30, {base}
        v_lshlrev_b32 v4, 4, v0
        v_add_u32 v4, s30, v4
        v_add_u32 v5, 4096, v4
        v_add_u32 v6, 8192, v4
        v_add_u32 v7, 12288, v4
        """)
    def ygather(name, code, sleep, fl='sc1'):
        poll_begin(name)
        for i in range(16):
            a(f"buffer_load_dwordx4 v[{GB+4*i}:{GB+4*i+3}], v{4 + (i >> 2)}, s[44:47], 0 offen offset:{(i & 3)*1024} {fl}")
        a("s_waitcnt vmcnt(0)")
        tagcheck(8, [GB + 4*i + 3 for i in range(16)])
        poll_end(name, 8, sleep=sleep, code=code)
    def ysum(d):
        st = 1
        while st < 16:
            for i in range(0, 16, 2 * st):
                for o in range(3):
                    a(f"v_add_f32 v{GB+4*i+o}, v{GB+4*i+o}, v{GB+4*(i+st)+o}")
            st *= 2
        R = [GB, GB + 1, GB + 2]; Tm = [GB + 4, GB + 5, GB + 6]
        for n in (4, 8):
            for x in R: a(f"v_add_f32_dpp v{x}, v{x}, v{x} row_ror:{n} row_mask:0xf bank_mask:0xf")
        for sw in ("16", "32"):
            for x, t in zip(R, Tm): a(f"v_mov_b32 v{t}, v{x}")
            for x, t in zip(R, Tm): a(f"v_permlane{sw}_swap_b32 v{x}, v{t}")
            for x, t in zip(R, Tm): a(f"v_add_f32 v{x}, v{x}, v{t}")
        for k, x in enumerate(R): a(f"v_cvt_pk_bf16_f32 v{d+k}, v{x}, v{x}")
        for k in range(3): a(f"v_and_b32 v{d+k}, 0xffff0000, v{d+k}")
    a(f"""
    s_mov_b32 s32, s8
    s_mov_b32 s33, s9
    s_mov_b32 s34, 1152
    s_mov_b32 s35, 0x20000
    s_lshr_b32 s30, s2, 4
    s_mul_i32 s30, s30, 192
    s_and_b32 s31, s2, 15
    s_lshl_b32 s31, s31, 2
    s_add_u32 s30, s30, s31
    v_and_b32 v10, 3, v0
    v_add_u32 v10, s30, v10
    v_lshlrev_b32 v10, 1, v10
    buffer_load_ushort v12, v10, s[32:35], 0 offen
    buffer_load_ushort v13, v10, s[32:35], 0 offen offset:128
    buffer_load_ushort v14, v10, s[32:35], 0 offen offset:256
    s_mov_b32 s36, s24
    s_mov_b32 s37, s25
    s_mov_b32 s38, 1152
    s_mov_b32 s39, 0x20000
    """)
    yaddr(YB)
    a("s_waitcnt vmcnt(0)")
    a("v_lshlrev_b32 v12, 16, v12\nv_lshlrev_b32 v13, 16, v13\nv_lshlrev_b32 v14, 16, v14")
    stamp(3)
    a("s_barrier")
    job8_store(PR, 20, YBSF)
    a("s_cmp_lt_u32 s2, 48")
    a("s_cbranch_scc0 L_notred2")
    ygather("yb", 4, 2, YBLF)
    ysum(40)
    yaddr(YA)
    ygather("ya", 5, 0, YAF)
    stamp(4)
    ysum(24)
    for k in range(3): a(f"v_add_f32 v{24+k}, v{12+k}, v{24+k}")
    for k in range(3): a(f"v_cvt_pk_bf16_f32 v{24+k}, v{24+k}, v{24+k}")
    for k in range(3): a(f"v_and_b32 v{24+k}, 0xffff0000, v{24+k}")
    for k in range(3): a(f"v_add_f32 v{24+k}, v{24+k}, v{40+k}")
    for k in range(3): a(f"v_cvt_pk_bf16_f32 v{24+k}, v{24+k}, v{24+k}")
    a(f"""
    s_mov_b64 exec, 15
    buffer_store_short v24, v10, s[36:39], 0 offen
    buffer_store_short v25, v10, s[36:39], 0 offen offset:128
    buffer_store_short v26, v10, s[36:39], 0 offen offset:256
    s_mov_b64 exec, -1
    s_cmp_eq_u32 s2, 0
    s_cbranch_scc0 L_notred2
    v_mov_b32 v4, {EPOCH}
    v_mov_b32 v5, s6
    s_mov_b64 exec, 1
    buffer_store_dword v5, v4, s[44:47], 0 offen sc1
    s_mov_b64 exec, -1
    L_notred2:
    """)
    stamp(5)
    stamp_store(6, t=46)
    a("L_end:")
    a("s_endpgm")
    body = a.text()
    txt = f"""{HEADER}; @launch grid=(256,1,1) block=(384,1,1) lds={LDS}
.amdgcn_target "amdgcn-amd-amdhsa--gfx950"
.text
.globl {KN}
.p2align 8
.type {KN},@function
{KN}:
{body}
.section .rodata,"a"
.p2align 6
.amdhsa_kernel {KN}
  .amdhsa_next_free_vgpr 256
  .amdhsa_next_free_sgpr 96
  .amdhsa_accum_offset 256
  .amdhsa_group_segment_fixed_size 0
  .amdhsa_kernarg_size 88
  .amdhsa_user_sgpr_count 2
  .amdhsa_user_sgpr_kernarg_segment_ptr 1
  .amdhsa_system_sgpr_workgroup_id_x 1
.end_amdhsa_kernel
"""
    return txt

if __name__ == "__main__":
    import argparse
    ap = argparse.ArgumentParser()
    ap.add_argument("out")
    ap.add_argument("--nv", type=int, default=24)
    ap.add_argument("--w", type=int, default=8)
    ap.add_argument("--nohilo", action="store_true")
    ap.add_argument("--ts", action="store_true")
    ap.add_argument("--dbg", action="store_true")
    ap.add_argument("--prog", action="store_true")
    ap.add_argument("--w2late", action="store_true")
    ap.add_argument("--wolate", action="store_true")
    ap.add_argument("--nopf", action="store_true")
    ap.add_argument("--hf", default="sc1 nt"); ap.add_argument("--qsf", default="sc1"); ap.add_argument("--qlf", default="sc1"); ap.add_argument("--agf", default="sc1"); ap.add_argument("--yaf", default="sc1")
    ap.add_argument("--b0", action="store_true"); ap.add_argument("--wog", action="store_true")
    ap.add_argument("--pubf", default="sc1 nt"); ap.add_argument("--slf", default="sc1 nt"); ap.add_argument("--ybsf", default="sc1"); ap.add_argument("--yblf", default="sc1")
    ap.add_argument("--nopub", action="store_true")
    ap.add_argument("--noyb", action="store_true")
    ap.add_argument("--tlb", type=int, default=0)
    args = ap.parse_args()
    t = gen(NV=args.nv, HILO=not args.nohilo, TSTAMP=args.ts, dbg=args.dbg, W=args.w, PROG=args.prog,
            W2EARLY=not args.w2late, WOLATE=args.wolate, PF=not args.nopf, TLB=args.tlb, NOPUB=args.nopub, NOYB=args.noyb, PUBF=args.pubf, SLF=args.slf, YBSF=args.ybsf, YBLF=args.yblf, HF=args.hf, QSF=args.qsf, QLF=args.qlf, AGF=args.agf, YAF=args.yaf, B0=args.b0, WOG=args.wog)
    errs = hazard.check(t)
    for e in errs: print("HAZARD", e)
    open(args.out, "w").write(t)
```

```python
import sys
from asmlib import A, NAME, KN
import hazard

WS_SIZE = 0x1000000
EPOCH = 0
CNT   = 0x1000
QG    = 0x10000
HG    = 0x60000
AG    = 0xA0000
SG    = 0x140000
YA    = 0x600000
YB    = 0x740000
TS    = 0x900000
L_Q   = 0
L_ML  = 256
L_FLAG = 320
L_O   = 512
L_S   = 4096
L_ID  = 53248
SSTR  = 12288
LOG2E = 0x3FB8AA3B
SCALE = 0x3DB504F3

HEADER = """; Fused decode step: out = x + MHA(LN(x)) + FFN(LN(x))     (gfx950; hand written, emitted by my own generator script)
;   waves 0-3 stream K (scores -> LDS), then V (softmax weights x V on MFMA) of head h; the last V tiles
; Hand-offs between workgroups are 8-byte {value, tag} granules in d_ws; the tag is derived from
"""

class K(A):
    def nop(self, n):
        while n > 0:
            m = min(n, 16); self(f"s_nop {m-1}"); n -= m

def gen(NV=24, HILO=True, TSTAMP=False, NT="nt", POLLMAX=40000, LDS=86016, dbg=False, W=8, PROG=False,
        W2EARLY=True, WOLATE=False, PF=True, TLB=0, NOPUB=False, NOYB=False, PUBF='sc1 nt', SLF='sc1 nt', YBSF='sc1', YBLF='sc1', HF='sc1 nt', QSF='sc1', QLF='sc1', AGF='sc1', YAF='sc1', B0=False, WOG=False, AGG=False):
    a = K()
    DYN = NV < 32
    NP = 32 - NV; POOL0 = 32 * NV; NPOOL = 32 * NP
    MAXD = 48 - NV if NV < 32 else 0
    MAXD -= MAXD & 1
    MAXD = min(MAXD, 32)
    assert 32 * MAXD >= NPOOL
    assert SG + 32 * NPOOL * 128 + 65536 <= YA
    T0 = [60]

    def stamp(i):
        if TSTAMP:
            a(f"s_memrealtime s[{70+2*i}:{71+2*i}]")
            a("s_waitcnt lgkmcnt(0)")
    def stamp_store(nst, t=60):
        if TSTAMP:
            a("s_waitcnt vmcnt(0)")
            a("s_lshl_b32 s30, s2, 3\ns_add_u32 s30, s30, s3\ns_lshl_b32 s30, s30, 6")
            a(f"s_add_u32 s30, s30, {TS}")
            a("s_mov_b64 exec, 1")
            a(f"v_mov_b32 v{t}, s30")
            for i in range(nst):
                a(f"v_mov_b32 v{t+1}, s{70+2*i}")
                a(f"buffer_store_dword v{t+1}, v{t}, s[44:47], 0 offen offset:{4*i}" + (" sc1" if AGG else ""))
            a("s_getreg_b32 s31, hwreg(HW_REG_XCC_ID)")
            a(f"v_mov_b32 v{t+1}, s31")
            a(f"buffer_store_dword v{t+1}, v{t}, s[44:47], 0 offen offset:60")
            a("s_waitcnt vmcnt(0)")
            a("s_mov_b64 exec, -1")

    def make_masks(tmp1, tmp2):
        a(f"v_and_b32 v{tmp1}, 7, v3")
        a(f"v_and_b32 v{tmp2}, 1, v3")
        a(f"v_lshlrev_b32 v{tmp2}, 4, v{tmp2}")
        a(f"v_mov_b32 v12, 0xffff")
        a(f"v_lshlrev_b32 v{tmp2}, v{tmp2}, v12")
        a(f"v_lshrrev_b32 v{tmp1}, 1, v{tmp1}")
        for w in range(4):
            a(f"v_cmp_eq_u32 vcc, {w}, v{tmp1}")
            a.nop(2)
            a(f"v_cndmask_b32 v{12+w}, 0, v{tmp2}, vcc")

    def allreduce(op, v, t, rors=(8, 4, 2, 1), cross=True):
        for n in rors:
            a.nop(2)
            a(f"{op}_dpp v{v}, v{v}, v{v} row_ror:{n} row_mask:0xf bank_mask:0xf")
        if cross:
            for sw in ("16", "32"):
                a(f"v_mov_b32 v{t}, v{v}")
                a.nop(2)
                a(f"v_permlane{sw}_swap_b32 v{v}, v{t}")
                a(f"{op} v{v}, v{v}, v{t}")

    def to_bf16f(dst, src):
        a(f"v_cvt_pk_bf16_f32 v{dst}, v{src}, v{src}")
        a(f"v_and_b32 v{dst}, 0xffff0000, v{dst}")

    def div_refined(dst, num, den, rcp, t):
        a(f"v_mul_f32 v{dst}, v{num}, v{rcp}")
        a(f"v_fma_f32 v{t}, -v{dst}, v{den}, v{num}")
        a(f"v_fma_f32 v{dst}, v{t}, v{rcp}, v{dst}")

    def poll_begin(name):
        a(f"s_mov_b32 s49, 0")
        a(f"L_{name}_poll:")
    def poll_end(name, acc, sleep=0, code=1):
        a(f"v_cmp_ne_u32 vcc, 0, v{acc}")
        a(f"s_cbranch_vccz L_{name}_ok")
        a(f"s_add_u32 s49, s49, 1")
        if sleep: a(f"s_sleep {sleep}")
        a(f"s_cmp_lt_u32 s49, {POLLMAX}")
        a(f"s_cbranch_scc1 L_{name}_poll")
        if dbg:
            t = T0[0]
            a(f"v_mov_b32 v{t}, {code}\nv_mov_b32 v{t+1}, {4*code}\nglobal_atomic_or v{t+1}, v{t}, s[26:27]")
        a(f"L_{name}_ok:")
    def tagcheck(acc, tagregs):
        it = list(tagregs); tmp = T0[0]
        for i in range(0, len(it), 2):
            pair = it[i:i+2]
            if i == 0:
                a(f"v_xor_b32 v{acc}, s6, v{pair[0]}")
                if len(pair) > 1:
                    a(f"v_xor_b32 v{tmp}, s6, v{pair[1]}")
                    a(f"v_or_b32 v{acc}, v{acc}, v{tmp}")
            else:
                a(f"v_xor_b32 v{tmp}, s6, v{pair[0]}")
                if len(pair) > 1:
                    a(f"v_xor_b32 v{tmp+1}, s6, v{pair[1]}")
                    a(f"v_or3_b32 v{acc}, v{acc}, v{tmp}, v{tmp+1}")
                else:
                    a(f"v_or_b32 v{acc}, v{acc}, v{tmp}")
    def wait_kdone(name, v):
        a(f"v_mov_b32 v{v}, {L_FLAG}")
        a("s_mov_b32 s49, 0")
        a(f"L_{name}_kw:")
        a(f"ds_read_b32 v{v+1}, v{v}")
        a("s_waitcnt lgkmcnt(0)")
        a(f"v_readfirstlane_b32 s30, v{v+1}")
        a("s_add_u32 s49, s49, 1")
        a("s_cmp_ge_u32 s30, 256")
        a(f"s_cbranch_scc1 L_{name}_kd")
        a("s_sleep 16")
        a(f"s_cmp_lt_u32 s49, {POLLMAX * 4}")
        a(f"s_cbranch_scc1 L_{name}_kw")
        a(f"L_{name}_kd:")
    def make_tag():
        a("s_mul_i32 s6, s6, 0x9E3779B1\ns_add_u32 s6, s6, 0x7F4A7C15")

    def ln_loads(row0_sgpr):
        a(f"""
        s_mov_b32 s32, s8
        s_mov_b32 s33, s9
        s_mov_b32 s34, 1152
        s_mov_b32 s35, 0x20000
        v_lshlrev_b32 v20, 3, v0
        v_lshlrev_b32 v21, 1, v0
        v_lshl_add_u32 v22, v3, 2, v2
        v_add_u32 v22, s{row0_sgpr}, v22
        v_lshlrev_b32 v22, 1, v22
        buffer_load_dwordx2 v[4:5], v20, s[32:35], 0 offen
        buffer_load_dwordx2 v[6:7], v20, s[32:35], 0 offen offset:512
        buffer_load_ushort v8, v21, s[32:35], 0 offen offset:1024
        buffer_load_ushort v9, v22, s[32:35], 0 offen
        buffer_load_ushort v10, v22, s[32:35], 0 offen offset:128
        """)
    def ln_compute():
        for i, r in enumerate((4, 5, 6, 7)):
            a(f"v_lshlrev_b32 v{24+2*i}, 16, v{r}")
            a(f"v_and_b32 v{25+2*i}, 0xffff0000, v{r}")
        a("v_lshlrev_b32 v32, 16, v8")
        a("v_add_f32 v33, v24, v25\nv_add_f32 v34, v26, v27\nv_add_f32 v35, v28, v29\nv_add_f32 v36, v30, v31")
        a("v_add_f32 v33, v33, v34\nv_add_f32 v35, v35, v36\nv_add_f32 v33, v33, v32\nv_add_f32 v33, v33, v35")
        allreduce("v_add_f32", 33, 34)
        a("v_mov_b32 v36, 0x44100000")
        a("v_mov_b32 v37, 0x3ae38e39")
        div_refined(38, 33, 36, 37, 34)
        for i in range(9):
            a(f"v_sub_f32 v{24+i}, v{24+i}, v38")
        a("v_mul_f32 v33, v24, v24")
        for i in range(1, 9):
            a(f"v_fmac_f32 v33, v{24+i}, v{24+i}")
        allreduce("v_add_f32", 33, 34)
        div_refined(39, 33, 36, 37, 34)
        to_bf16f(38, 38)
        to_bf16f(39, 39)
        a("v_add_f32 v39, 0x3727c5ac, v39")
        to_bf16f(39, 39)
        a("v_sqrt_f32 v39, v39")
        a.nop(1)
        to_bf16f(39, 39)
        a("v_rcp_f32 v37, v39")
        for r in (9, 10):
            a(f"v_lshlrev_b32 v{r}, 16, v{r}")
            a(f"v_sub_f32 v{r}, v{r}, v38")
            to_bf16f(r, r)
        for r in (9, 10):
            div_refined(33, r, 39, 37, 34)
            a(f"v_cvt_pk_bf16_f32 v{r}, v33, v33")

    def job4(wb, n, nyounger):
        a("v_mov_b32 v16, 0\nv_mov_b32 v17, 0\nv_mov_b32 v18, 0\nv_mov_b32 v19, 0")
        def prep(j):
            src = 9 if j < 16 else 10
            b = 24 + 4 * (j & 1)
            for w in range(4):
                a(f"v_and_b32_dpp v{b+w}, v{src}, v{12+w} row_newbcast:{j & 15} row_mask:0xf bank_mask:0xf")
        a.nop(2)
        prep(0)
        for j in range(n):
            if j + 1 < n: prep(j + 1)
            else: a.nop(2)
            a(f"s_waitcnt vmcnt({min(63, n - 1 - j + nyounger)})")
            b = 24 + 4 * (j & 1)
            a(f"v_mfma_f32_16x16x32_bf16 v[16:19], v[{wb+4*j}:{wb+4*j+3}], v[{b}:{b+3}], v[16:19]")
        a.nop(8)
        a("s_mov_b32 s52, 0xff00ff00\ns_mov_b32 s53, 0xff00ff00")
        a("v_cndmask_b32 v20, v16, v18, s[52:53]")
        a("v_cndmask_b32 v22, v17, v19, s[52:53]")

    def job8_zero(ab):
        for i in range(36): a(f"v_mov_b32 v{ab+i}, 0")
    def job8(wb, nb, mult, ab):
        for bb in range(nb):
            for w in range(4):
                a(f"v_and_b32 v{24+w}, v{mult[bb]}, v{12+w}")
            a.nop(2)
            for blk in range(9):
                j = bb * 9 + blk
                a(f"v_mfma_f32_16x16x32_bf16 v[{ab+4*blk}:{ab+4*blk+3}], v[{wb+4*j}:{wb+4*j+3}], v[24:27], v[{ab+4*blk}:{ab+4*blk+3}]")
        a.nop(6)
    def job8_addr(ybase, v):
        a(f"v_and_b32 v{v}, 1, v2\nv_lshlrev_b32 v{v}, 2, v{v}")
        a(f"v_lshrrev_b32 v21, 3, v3\nv_lshlrev_b32 v21, 1, v21\nv_add_u32 v{v}, v{v}, v21")
        a(f"v_lshrrev_b32 v21, 1, v2\nv_add_u32 v{v}, v{v}, v21")
        a(f"v_lshlrev_b32 v{v}, 1, v{v}\nv_bfe_u32 v21, v3, 2, 1\nv_add_u32 v{v}, v{v}, v21")
        a(f"v_lshlrev_b32 v{v}, 14, v{v}")
        a(f"v_and_b32 v21, 3, v3\nv_lshl_add_u32 v{v}, v21, 4, v{v}")
        a(f"s_lshl_b32 s30, s2, 6\ns_add_u32 s30, s30, {ybase}")
        a(f"v_add_u32 v{v}, s30, v{v}")
    def job8_finish(ab, pairbase):
        for blk in range(9):
            y = ab + 4 * blk
            a(f"v_permlane32_swap_b32 v{y}, v{y+1}")
            a(f"v_permlane32_swap_b32 v{y+2}, v{y+3}")
        for t in range(3):
            for k in range(3):
                blk = 3 * t + k
                y = ab + 4 * blk; pr = pairbase + 4 * t + k
                a(f"v_add_f32_dpp v{pr}, v{y+1}, v{y} row_ror:8 row_mask:0xf bank_mask:0x3")
                a(f"v_add_f32_dpp v{pr}, v{y+2}, v{y+3} row_ror:8 row_mask:0xf bank_mask:0xc")
    def job8_store(pairbase, vaddr, fl):
        for t in range(3):
            a(f"s_mov_b32 s31, {t * 16 * 16384}")
            a(f"buffer_store_dwordx4 v[{pairbase+4*t}:{pairbase+4*t+3}], v{vaddr}, s[44:47], s31 offen {fl}")
    def job8_publish(ab, pairbase, vaddr, fl='sc1'):
        for blk in range(9):
            y = ab + 4 * blk
            a(f"v_permlane32_swap_b32 v{y}, v{y+1}")
            a(f"v_permlane32_swap_b32 v{y+2}, v{y+3}")
        for t in range(3):
            for k in range(3):
                blk = 3 * t + k
                y = ab + 4 * blk; pr = pairbase + 4 * t + k
                a(f"v_add_f32_dpp v{pr}, v{y+1}, v{y} row_ror:8 row_mask:0xf bank_mask:0x3")
                a(f"v_add_f32_dpp v{pr}, v{y+2}, v{y+3} row_ror:8 row_mask:0xf bank_mask:0xc")
            a(f"s_mov_b32 s31, {t * 16 * 16384}")
            a(f"buffer_store_dwordx4 v[{pairbase+4*t}:{pairbase+4*t+3}], v{vaddr}, s[44:47], s31 offen {fl}")

    a(f"""
    s_cmp_ge_u32 s2, 256
    s_cbranch_scc1 L_end
    s_load_dwordx16 s[8:23], s[0:1], 0
    s_load_dwordx4 s[24:27], s[0:1], 64
    s_load_dwordx2 s[28:29], s[0:1], 80
    """)
    if TSTAMP: a("s_memrealtime s[70:71]")
    a(f"""
    v_lshrrev_b32 v1, 6, v0
    v_and_b32 v0, 63, v0
    v_readfirstlane_b32 s3, v1
    s_lshr_b32 s4, s2, 3
    s_and_b32 s5, s2, 7
    v_lshrrev_b32 v2, 4, v0
    v_and_b32 v3, 15, v0
    """)
    if PF:
        a(f"""
        s_cmp_eq_u32 s3, 5
        s_cbranch_scc0 L_nopf
        L_pc:
        s_getpc_b64 s[30:31]
        v_lshlrev_b32 v4, 7, v0
        v_add_u32 v5, 8192, v4
        v_min_u32 v4, L_end-L_pc, v4
        v_min_u32 v5, L_end-L_pc, v5
        global_load_dword v50, v4, s[30:31]
        global_load_dword v51, v5, s[30:31]
        L_nopf:
        """)
    a(f"""
    s_waitcnt lgkmcnt(0)
    s_load_dword s6, s[28:29], {EPOCH}
    s_mov_b32 s44, s28
    s_mov_b32 s45, s29
    s_mov_b32 s46, {WS_SIZE}
    s_mov_b32 s47, 0x20000
    s_cmp_eq_u32 s3, 4
    s_cbranch_scc1 L_helperA
    s_cmp_eq_u32 s3, 5
    s_cbranch_scc1 L_helperB
    """)

    SL = 64
    T0[0] = 62
    def issue(pos, nxt, srd_cur, srd_nxt):
        j = pos & 7
        vo = ((7, 46) if nxt else (5, 6))[j >> 2]
        srd = srd_nxt if nxt else srd_cur
        a(f"buffer_load_dwordx4 v[{SL+4*j}:{SL+4*j+3}], v{vo}, {srd}, 0 offen offset:{(j & 3) * 1024} {NT}")
    def issue_after(n, srd_cur, srd_nxt):
        m = n + W
        issue(m & 7, m >= 8, srd_cur, srd_nxt)
    a(f"""
    s_lshl_b32 s30, s4, 23
    s_add_u32 s32, s10, s30
    s_addc_u32 s33, s11, 0
    s_mov_b32 s34, 0x800000
    s_mov_b32 s35, 0x20000
    s_mul_i32 s56, s5, {4 * NV}
    s_add_u32 s56, s56, s3
    s_lshl_b32 s31, s56, 13
    v_lshlrev_b32 v4, 4, v0
    v_add_u32 v5, s31, v4
    v_add_u32 v6, 4096, v5
    """)
    if B0: a("s_barrier")
    for n in range(W): issue(n, False, "s[32:35]", None)
    a(f"""
    s_add_u32 s36, s12, s30
    s_addc_u32 s37, s13, 0
    s_mov_b32 s38, 0x800000
    s_mov_b32 s39, 0x20000
    s_mov_b32 s42, 0x800000
    s_mov_b32 s43, 0x20000
    s_mov_b32 s57, s56
    s_lshl_b32 s30, s4, 8
    s_add_u32 s30, s30, {CNT}
    s_add_u32 s64, s28, s30
    s_addc_u32 s65, s29, 0
    s_mul_i32 s84, s4, {NPOOL * 128}
    s_add_u32 s84, s84, {SG}
    s_mov_b32 s58, 0                   ; i
    s_mov_b32 s59, 0
    s_mov_b32 s60, {LOG2E:#x}
    s_mov_b32 s61, {SCALE:#x}
    s_mov_b32 s52, 0xcccccccc
    s_mov_b32 s53, 0xcccccccc
    s_mov_b32 s54, 0xaaaaaaaa
    s_mov_b32 s55, 0xaaaaaaaa
    """)
    make_masks(20, 21)
    a(f"""
    v_mov_b32 v16, 0
    v_mov_b32 v17, 0
    v_mov_b32 v18, 0
    v_mov_b32 v19, 0
    v_mov_b32 v20, 0
    v_mov_b32 v22, 0xff800000
    v_lshlrev_b32 v23, 4, v3
    s_mul_i32 s30, s3, {SSTR}
    s_add_u32 s30, s30, {L_S}
    v_lshl_add_u32 v47, v0, 2, s30
    s_lshl_b32 s30, s3, 7
    s_add_u32 s30, s30, {L_ID - 4*NV - 4}
    v_mov_b32 v43, s30
    v_mov_b32 v56, v47
    v_lshrrev_b32 v57, 1, v3
    v_lshlrev_b32 v57, 1, v57
    v_lshrrev_b32 v59, 1, v2
    v_add_u32 v57, v57, v59
    v_lshlrev_b32 v57, 3, v57
    v_and_b32 v59, 1, v2
    v_lshlrev_b32 v59, 4, v59
    v_sub_u32 v59, 16, v59
    s_waitcnt lgkmcnt(0)
    """)
    make_tag()
    stamp(1)
    a("s_barrier")
    a(f"ds_read_b128 v[8:11], v23 offset:{L_Q}")
    a("s_waitcnt lgkmcnt(0)")
    stamp(2)
    a("L_ktile:")
    if PROG:
        a("s_memrealtime s[86:87]\ns_waitcnt lgkmcnt(0)\ns_mov_b32 m0, s58\ns_nop 0\nv_writelane_b32 v100, s86, m0")
    a("s_add_u32 s58, s58, 1")
    a("s_lshl_b32 s31, s58, 2")
    a("s_add_u32 s30, s31, s56")
    if DYN:
        a("s_waitcnt lgkmcnt(0)")
        a(f"s_add_u32 s31, s59, {POOL0}")
        a(f"s_cmp_lt_u32 s58, {NV}")
        a("s_cselect_b32 s62, s30, s31")
        a("s_mov_b32 s59, 0x10000")
        a(f"s_cmp_lt_u32 s58, {NV-1}")
        a("s_cbranch_scc1 L_knotk")
        a(f"s_cmp_ge_u32 s58, {NV + MAXD - 1}")
        a("s_cbranch_scc1 L_knotk")
        a("s_cmp_ge_u32 s62, 1024")
        a("s_cbranch_scc1 L_knotk")
        a("s_mov_b32 s59, 1")
        a("s_atomic_add s59, s[64:65], 0 glc")
        a("L_knotk:")
        a("s_cmp_lt_u32 s62, 1024")
    else:
        a("s_mov_b32 s62, s30")
        a(f"s_cmp_lt_u32 s58, {NV}")
    a("s_cselect_b32 s83, 1, 0")
    a("s_cselect_b32 s62, s62, s56")
    a("s_cselect_b32 s40, s32, s36")
    a("s_cselect_b32 s41, s33, s37")
    a("s_lshl_b32 s63, s62, 13")
    a("v_add_u32 v7, s63, v4\nv_add_u32 v46, 4096, v7")
    for j in range(8):
        a(f"s_waitcnt vmcnt({W-1})")
        P = 24 + j; sl = SL + 4 * j
        a(f"v_dot2_f32_bf16 v{P}, v{sl}, v8, 0")
        a(f"v_dot2_f32_bf16 v{P}, v{sl+1}, v9, v{P}")
        a(f"v_dot2_f32_bf16 v{P}, v{sl+2}, v10, v{P}")
        a(f"v_dot2_f32_bf16 v{P}, v{sl+3}, v11, v{P}")
        issue_after(j, "s[32:35]", "s[40:43]")
    for j in range(4):
        a(f"v_add_f32_dpp v{32+j}, v{24+j}, v{24+j} row_ror:8 row_mask:0xf bank_mask:0x3")
        a(f"v_add_f32_dpp v{32+j}, v{28+j}, v{28+j} row_ror:8 row_mask:0xf bank_mask:0xc")
    for j in range(2):
        a(f"v_add_f32_dpp v{36+j}, v{32+j}, v{32+j} row_shl:4 row_mask:0xf bank_mask:0x5")
        a(f"v_add_f32_dpp v{36+j}, v{34+j}, v{34+j} row_shr:4 row_mask:0xf bank_mask:0xa")
    a("v_mov_b32 v5, v7")
    a("v_add_f32_dpp v38, v36, v36 quad_perm:[2,3,0,1] row_mask:0xf bank_mask:0xf")
    a("v_add_f32_dpp v39, v37, v37 quad_perm:[2,3,0,1] row_mask:0xf bank_mask:0xf")
    a("v_cndmask_b32 v40, v38, v39, s[52:53]")
    a("v_mov_b32 v6, v46")
    if DYN: a("v_mov_b32 v41, s57")
    else: a("s_nop 0")
    a("v_add_f32_dpp v40, v40, v40 quad_perm:[1,0,3,2] row_mask:0xf bank_mask:0xf")
    a("v_cvt_pk_bf16_f32 v40, v40, v40")
    a("v_and_b32 v40, 0xffff0000, v40")
    a("v_mul_f32 v40, s61, v40")
    a("v_cvt_pk_bf16_f32 v40, v40, v40")
    a("v_and_b32 v40, 0xffff0000, v40")
    a("ds_write_b32 v56, v40")
    if DYN:
        a(f"s_cmp_gt_u32 s58, {NV}")
        a("s_cbranch_scc0 L_noid")
        a("s_lshl_b32 s30, s58, 2")
        a("v_add_u32 v42, s30, v43")
        a("ds_write_b32 v42, v41 offset:0")
        a("L_noid:")
    a("v_max_f32 v22, v22, v40")
    a("v_add_u32 v56, 256, v56")
    a("s_mov_b32 s57, s62")
    a("s_cmp_eq_u32 s83, 1")
    a("s_cbranch_scc1 L_ktile")
    stamp(5)
    a(f"v_mov_b32 v41, {L_FLAG}")
    a("v_mov_b32 v42, 1")
    a("s_waitcnt lgkmcnt(0)")
    a("ds_add_u32 v41, v42")
    a("ds_read_b32 v58, v47")
    allreduce("v_max_f32", 22, 41, rors=(8, 4, 2))
    a("v_mul_f32 v21, s60, v22")
    a("v_add_u32 v56, 256, v47")
    a("s_mov_b32 s58, 0")
    a("s_mov_b64 s[66:67], -1")
    a("s_mov_b32 s82, 0x7f000000")
    a("s_add_u32 s64, s64, 128\ns_addc_u32 s65, s65, 0")
    a("L_vtile:")
    a(f"s_waitcnt vmcnt({W}) lgkmcnt(0)")
    if PROG:
        a("s_memrealtime s[86:87]\ns_waitcnt lgkmcnt(0)\ns_mov_b32 m0, s58\ns_nop 0\nv_writelane_b32 v101, s86, m0")
    a("s_add_u32 s58, s58, 1")
    a("s_lshl_b32 s30, s58, 2")
    a("s_add_u32 s30, s30, s56")
    if DYN:
        a("v_lshlrev_b32 v60, v59, v60")
        a("v_cmp_ne_u32 vcc, s6, v61")
        a("v_and_b32 v60, 0xffff0000, v60")
        a("v_cndmask_b32 v40, v60, v58, s[66:67]")
        a(f"s_add_u32 s31, s59, {POOL0}")
        a("s_andn2_b64 s[68:69], vcc, s[66:67]")
        if not NOPUB: a("s_cbranch_scc1 L_retry")
        a("L_retry_back:")
        a(f"s_cmp_lt_u32 s58, {NV}")
        a("s_cselect_b32 s62, s30, s31")
        a("s_cselect_b64 s[66:67], -1, 0")
        a(f"s_cmp_lt_u32 s58, {NV-1}")
        a("s_cbranch_scc1 L_notk")
        a("s_mov_b32 s59, 1")
        a("s_atomic_add s59, s[64:65], 0 glc")
        a("L_notk:")
        a(f"s_sub_u32 s83, s62, {POOL0}")
        a("s_cselect_b32 s31, 1, 0")
        a("s_lshl_b32 s83, s83, 7")
        a("s_add_u32 s83, s83, s84")
        a("s_cmp_eq_u32 s31, 1")
        a("s_cselect_b32 s83, 0x7f000000, s83")
        a(f"buffer_load_dwordx2 v[60:61], v57, s[44:47], s83 offen {SLF}")
    else:
        a("v_mov_b32 v40, v58")
        a(f"s_cmp_lt_u32 s58, {NV}")
        a("s_cselect_b32 s62, s30, 1024")
    a("ds_read_b32 v58, v56")
    a("v_add_u32 v56, 256, v56")
    a("s_lshl_b32 s63, s62, 13")
    a("v_add_u32 v7, s63, v4\nv_add_u32 v46, 4096, v7")
    a("v_cmp_lt_f32 vcc, v22, v40")
    a("s_cbranch_vccnz L_rare")
    a("L_back:")
    a("v_fma_f32 v41, v40, s60, -v21")
    a("v_exp_f32 v41, v41")
    a("s_nop 0")
    a("v_add_f32 v20, v20, v41")
    a("v_cvt_pk_bf16_f32 v42, v41, v41")
    if HILO:
        a("v_and_b32 v43, 0xffff0000, v42")
        a("v_sub_f32 v43, v41, v43")
        a("v_cvt_pk_bf16_f32 v43, v43, v43")
        a("v_cndmask_b32 v42, v42, v43, s[54:55]")
    a.nop(2)
    def prepB(j):
        b = 48 + 4 * (j & 1)
        if HILO:
            y = 44 + (j & 1)
            a(f"v_mov_b32_dpp v{y}, v42 row_newbcast:{2*j} row_mask:0xf bank_mask:0x3")
            a(f"v_mov_b32_dpp v{y}, v42 row_newbcast:{2*j+1} row_mask:0xf bank_mask:0xc")
            for w in range(4): a(f"v_and_b32 v{b+w}, v{y}, v{12+w}")
        else:
            for w in range(4):
                a(f"v_and_b32_dpp v{b+w}, v42, v{12+w} row_newbcast:{2*j} row_mask:0xf bank_mask:0xf")
    prepB(0)
    for j in range(8):
        if j < 7: prepB(j + 1)
        else: a.nop(1)
        n = (W if j < W else W - 1) if DYN else W - 1
        a(f"s_waitcnt vmcnt({n})")
        b = 48 + 4 * (j & 1); sl = SL + 4 * j
        a(f"v_mfma_f32_16x16x32_bf16 v[16:19], v[{sl}:{sl+3}], v[{b}:{b+3}], v[16:19]")
        issue_after(j, "s[36:39]", "s[36:39]")
    a("v_mov_b32 v5, v7\nv_mov_b32 v6, v46")
    if DYN: a("s_mov_b32 s82, s83")
    a("s_cmp_lt_u32 s62, 1024")
    a("s_cbranch_scc1 L_vtile")
    stamp(3)
    allreduce("v_add_f32", 20, 27)
    a("v_mul_f32 v23, 0.5, v20")
    if HILO:
        for r in range(4):
            a(f"v_add_f32_dpp v{16+r}, v{16+r}, v{16+r} row_ror:8 row_mask:0xf bank_mask:0xf")
    a("s_mov_b32 s52, 0xff00ff00\ns_mov_b32 s53, 0xff00ff00")
    a("v_lshl_add_u32 v26, v2, 5, v3")
    a("v_lshlrev_b32 v26, 2, v26")
    a(f"s_lshl_b32 s30, s3, 9")
    a("v_add_u32 v26, s30, v26")
    a("v_cndmask_b32 v24, v16, v17, s[52:53]")
    a("v_cndmask_b32 v25, v18, v19, s[52:53]")
    a("s_lshl_b32 s30, s3, 3")
    a("v_mov_b32 v27, s30")
    a(f"ds_write_b32 v26, v24 offset:{L_O}")
    a(f"ds_write_b32 v26, v25 offset:{L_O + 64}")
    a("s_mov_b64 exec, 1")
    a(f"ds_write_b64 v27, v[22:23] offset:{L_ML}")
    a("s_mov_b64 exec, -1")
    a("s_waitcnt lgkmcnt(0)")
    a("s_barrier")
    stamp(4)
    if PROG:
        a("s_waitcnt vmcnt(0)")
        a("s_lshl_b32 s30, s2, 3\ns_add_u32 s30, s30, s3\ns_lshl_b32 s30, s30, 9")
        a(f"s_add_u32 s30, s30, {TS + 0x100000}")
        a("v_lshl_add_u32 v62, v0, 2, s30")
        a("buffer_store_dword v100, v62, s[44:47], 0 offen")
        a("buffer_store_dword v101, v62, s[44:47], 0 offen offset:256")
        a("s_mov_b32 s72, s58")
    stamp_store(6)
    a("s_endpgm")
    a("L_rare:")
    a("v_mov_b32 v41, v40")
    for n in (8, 4, 2):
        a.nop(2)
        a(f"v_max_f32_dpp v41, v41, v41 row_ror:{n} row_mask:0xf bank_mask:0xf")
    a.nop(2)
    a("v_max_f32_dpp v41, v41, v41 row_bcast:15 row_mask:0xa bank_mask:0xf")
    a.nop(2)
    a("v_max_f32_dpp v41, v41, v41 row_bcast:31 row_mask:0xc bank_mask:0xf")
    a.nop(1)
    a("v_readlane_b32 s30, v41, 63")
    a.nop(2)
    a("v_mov_b32 v22, s30")
    a("v_mul_f32 v42, s60, v22")
    a("v_sub_f32 v43, v21, v42")
    a("v_exp_f32 v43, v43")
    a("v_mov_b32 v21, v42")
    for r in (16, 17, 18, 19, 20):
        a(f"v_mul_f32 v{r}, v{r}, v43")
    a("s_branch L_back")
    if DYN:
        a("L_retry:")
        a("s_mov_b32 s49, 0")
        a("L_retry_loop:")
        a("buffer_load_dwordx2 v[60:61], v57, s[44:47], s82 offen sc1")
        a("s_waitcnt vmcnt(0)")
        a("v_cmp_ne_u32 vcc, s6, v61")
        a("s_cbranch_vccz L_retry_done")
        a("s_add_u32 s49, s49, 1")
        a("s_sleep 2")
        a(f"s_cmp_lt_u32 s49, {POLLMAX}")
        a("s_cbranch_scc1 L_retry_loop")
        if dbg: a("v_mov_b32 v62, 6\nv_mov_b32 v63, 24\nglobal_atomic_or v63, v62, s[26:27]")
        a("L_retry_done:")
        a("v_lshlrev_b32 v60, v59, v60")
        a("v_and_b32 v40, 0xffff0000, v60")
        a("s_branch L_retry_back")

    a("L_helperA:")
    T0[0] = 60
    WB = 64
    if DYN:
        a(f"""
        s_cmp_eq_u32 s5, 0
        s_cbranch_scc0 L_nozero
        s_lshl_b32 s30, s4, 8
        s_add_u32 s30, s30, {CNT}
        v_lshl_add_u32 v4, v0, 7, s30
        v_mov_b32 v5, 0
        s_mov_b64 exec, 3
        buffer_store_dword v5, v4, s[44:47], 0 offen sc1
        s_mov_b64 exec, -1
        L_nozero:
        v_lshlrev_b32 v4, 3, v0
        v_mov_b32 v6, -1
        v_mov_b32 v7, -1
        ds_write_b64 v4, v[6:7] offset:{L_ID}
        """)
    a(f"v_mov_b32 v4, {L_FLAG}\nv_mov_b32 v5, 0\nds_write_b32 v4, v5")
    a("s_mul_i32 s48, s5, 72")
    ln_loads(48)
    a(f"""
    s_mov_b32 s36, s14
    s_mov_b32 s37, s15
    s_mov_b32 s38, {576*8192}
    s_mov_b32 s39, 0x20000
    v_add_u32 v23, s48, v2
    v_lshlrev_b32 v23, 13, v23
    v_lshl_add_u32 v23, v3, 4, v23
    s_lshl_b32 s30, s4, 8
    v_add_u32 v23, s30, v23
    """)
    for j in range(18):
        a(f"s_mov_b32 s31, {j*32768}")
        a(f"buffer_load_dwordx4 v[{WB+4*j}:{WB+4*j+3}], v23, s[36:39], s31 offen {NT}")
    if B0: a("s_barrier")
    make_masks(20, 21)
    a("s_waitcnt vmcnt(18)")
    ln_compute()
    job4(WB, 18, 0)
    a(f"s_waitcnt lgkmcnt(0)")
    make_tag()
    a(f"""
    v_lshlrev_b32 v24, 4, v0
    s_lshl_b32 s30, s2, 10
    s_add_u32 s30, s30, {QG}
    v_add_u32 v24, s30, v24
    v_mov_b32 v21, s6
    v_mov_b32 v23, s6
    buffer_store_dwordx4 v[20:23], v24, s[44:47], 0 offen {QSF}
    """)
    stamp(1)
    def wo_loads():
        a(f"""
        s_mov_b32 s36, s16
        s_mov_b32 s37, s17
        s_mov_b32 s38, {4096*1152}
        s_mov_b32 s39, 0x20000
        v_lshrrev_b32 v58, 3, v3
        v_lshl_add_u32 v58, v2, 1, v58
        s_lshl_b32 s30, s2, 4
        v_add_u32 v58, s30, v58
        s_movk_i32 s31, 1152
        v_mul_lo_u32 v58, v58, s31
        v_and_b32 v59, 7, v3
        v_lshl_add_u32 v58, v59, 4, v58
        v_add_u32 v59, 9216, v58
        """)
        for bb in range(2):
            for blk in range(9):
                j = bb * 9 + blk
                a(f"buffer_load_dwordx4 v[{WB+4*j}:{WB+4*j+3}], v{58+bb}, s[36:39], 0 offen offset:{blk*128} {NT}")
    if not WOLATE and not WOG: wo_loads()
    a(f"""
    s_lshl_b32 s30, s4, 13
    s_add_u32 s30, s30, {QG}
    v_lshlrev_b32 v4, 4, v0
    v_add_u32 v4, s30, v4
    v_add_u32 v5, 4096, v4
    """)
    def qloads():
        for p in range(8):
            a(f"buffer_load_dwordx4 v[{24+4*p}:{24+4*p+3}], v{4 + (p >> 2)}, s[44:47], 0 offen offset:{(p & 3) * 1024} {QLF}")
    if WOG:
        qloads()
        wo_loads()
        a("s_mov_b32 s49, 0")
        a("s_waitcnt vmcnt(18)")
        a("s_branch L_q_chk")
        a("L_q_poll:")
        qloads()
        a("s_waitcnt vmcnt(0)")
        a("L_q_chk:")
    else:
        poll_begin("q")
        qloads()
        a("s_waitcnt vmcnt(0)")
    tagcheck(6, [24 + 4*p + o for p in range(8) for o in (1, 3)])
    poll_end("q", 6, code=1)
    for o in (0, 2):
        a(f"v_add_f32 v{24+o}, v{24+o}, v{28+o}")
        a(f"v_add_f32 v{32+o}, v{32+o}, v{36+o}")
        a(f"v_add_f32 v{40+o}, v{40+o}, v{44+o}")
        a(f"v_add_f32 v{48+o}, v{48+o}, v{52+o}")
        a(f"v_add_f32 v{24+o}, v{24+o}, v{32+o}")
        a(f"v_add_f32 v{40+o}, v{40+o}, v{48+o}")
        a(f"v_add_f32 v{24+o}, v{24+o}, v{40+o}")
    a("v_cvt_pk_bf16_f32 v24, v24, v26")
    a("v_and_b32 v25, 8, v3\nv_add_u32 v25, v25, v3\nv_lshl_add_u32 v25, v2, 5, v25\nv_lshlrev_b32 v25, 1, v25")
    a(f"ds_write_b16 v25, v24 offset:{L_Q}")
    a(f"ds_write_b16_d16_hi v25, v24 offset:{L_Q + 16}")
    a("s_waitcnt lgkmcnt(0)")
    stamp(2)
    a("s_barrier")
    if WOLATE and not WOG: wo_loads()
    if TLB:
        a(f"""
        s_lshl_b32 s30, s4, 23
        s_add_u32 s32, s10, s30
        s_addc_u32 s33, s11, 0
        s_mov_b32 s34, 0x800000
        s_mov_b32 s35, 0x20000
        s_add_u32 s40, s12, s30
        s_addc_u32 s41, s13, 0
        s_mov_b32 s42, 0x800000
        s_mov_b32 s43, 0x20000
        s_mul_i32 s31, s5, {4*NV*8192}
        v_lshlrev_b32 v4, {TLB}, v0
        s_mul_i32 s30, s2, 0x1500
        s_and_b32 s30, s30, 0x7f00
        v_mul_u32_u24 v5, 0x1100, v0
        v_add_u32 v5, s30, v5
        v_and_b32 v5, 0x7f00, v5
        v_add_u32 v4, v4, v5
        v_add_u32 v5, s31, v4
        v_mov_b32 v7, 0x7f000000
        v_cmp_gt_u32 vcc, {4*NV*8192}, v4
        v_add_u32 v6, {POOL0*8192}, v4
        s_nop 0
        v_cndmask_b32 v5, v7, v5, vcc
        buffer_load_dword v196, v5, s[40:43], 0 offen {NT}
        buffer_load_dword v197, v6, s[40:43], 0 offen {NT}
        buffer_load_dword v198, v6, s[32:35], 0 offen {NT}
        """)
    AB = 140; PR = 176
    job8_zero(AB)
    for t in range(3): a(f"v_mov_b32 v{PR+4*t+3}, s6")
    job8_addr(YA, 20)
    a(f"""
    v_lshrrev_b32 v56, 3, v3
    v_lshl_add_u32 v56, v2, 1, v56
    v_lshl_add_u32 v56, v2, 4, v56
    v_lshlrev_b32 v56, 2, v56
    v_add_u32 v57, 32, v56
    s_mov_b32 s60, {LOG2E:#x}
    """)
    if DYN and not NOPUB:
        wait_kdone("ha", 4)
        a(f"""
        v_lshrrev_b32 v4, 3, v0
        v_and_b32 v4, 3, v4                  ; w
        s_movk_i32 s30, {SSTR}
        v_mul_lo_u32 v5, v4, s30
        v_lshrrev_b32 v6, 5, v0
        v_lshl_add_u32 v5, v6, 8, v5
        v_and_b32 v7, 7, v0
        v_lshl_add_u32 v5, v7, 3, v5         ; LDS score address (minus L_S + NV*256)
        v_lshlrev_b32 v4, 7, v4
        v_lshl_add_u32 v4, v6, 2, v4         ; LDS id address (minus L_ID)
        v_lshlrev_b32 v7, 4, v7              ; j*16
        s_mul_i32 s30, s4, {NPOOL*128}
        s_add_u32 s30, s30, {SG - POOL0*128}
        v_add_u32 v7, s30, v7
        v_mov_b32 v9, 0x7f000000
        s_mov_b32 s62, 0x07060302
        v_mov_b32 v25, s6
        v_mov_b32 v27, s6
        s_mov_b32 s49, 0
        L_pub:
        ds_read_b32 v8, v4 offset:{L_ID}
        ds_read_b32 v28, v5 offset:{L_S + NV*256}
        ds_read_b32 v29, v5 offset:{L_S + NV*256 + 64}
        ds_read_b32 v30, v5 offset:{L_S + NV*256 + 128}
        ds_read_b32 v31, v5 offset:{L_S + NV*256 + 192}
        s_waitcnt lgkmcnt(0)
        v_cmp_gt_u32 vcc, 1024, v8
        s_cbranch_vccz L_pub_done
        v_lshl_add_u32 v6, v8, 7, v7
        v_perm_b32 v24, v29, v28, s62
        v_perm_b32 v26, v31, v30, s62
        v_cndmask_b32 v6, v9, v6, vcc
        buffer_store_dwordx4 v[24:27], v6, s[44:47], 0 offen {PUBF}
        v_add_u32 v4, 8, v4
        v_add_u32 v5, 512, v5
        s_add_u32 s49, s49, 1
        s_waitcnt vmcnt(0)
        s_cmp_lt_u32 s49, {MAXD//2}
        s_cbranch_scc1 L_pub
        L_pub_done:
        """)
    a(f"""
    s_lshl_b32 s30, s2, 11
    s_add_u32 s30, s30, {AG}
    v_lshlrev_b32 v10, 4, v0
    v_add_u32 v10, s30, v10
    v_mov_b32 v11, s30
    s_lshl_b32 s30, s4, 14
    s_add_u32 s30, s30, {AG}
    v_lshlrev_b32 v4, 11, v2
    v_add_u32 v4, s30, v4
    v_add_u32 v5, 8192, v4
    s_lshl_b32 s31, s5, 7
    v_lshl_add_u32 v6, v3, 3, s31
    v_add_u32 v7, v5, v6
    v_add_u32 v6, v4, v6
    v_mov_b32 v8, 0
    v_lshlrev_b32 v9, 3, v0
    v_mov_b32 v41, s6
    v_mov_b32 v43, s6
    v_mov_b32 v45, s6
    v_mov_b32 v47, s6
    s_waitcnt vmcnt(0)
    """)
    a("s_barrier")
    stamp(3)
    a(f"""
    ds_read_b128 v[24:27], v8 offset:{L_ML}
    ds_read_b128 v[28:31], v8 offset:{L_ML + 16}
    ds_read_b64 v[32:33], v9 offset:{L_O}
    ds_read_b64 v[34:35], v9 offset:{L_O + 512}
    ds_read_b64 v[36:37], v9 offset:{L_O + 1024}
    ds_read_b64 v[38:39], v9 offset:{L_O + 1536}
    s_waitcnt lgkmcnt(4)
    v_max_f32 v40, v24, v26
    v_max3_f32 v40, v40, v28, v30
    v_sub_f32 v24, v24, v40
    v_sub_f32 v26, v26, v40
    v_sub_f32 v28, v28, v40
    v_sub_f32 v30, v30, v40
    v_mul_f32 v24, s60, v24
    v_mul_f32 v26, s60, v26
    v_mul_f32 v28, s60, v28
    v_mul_f32 v30, s60, v30
    v_exp_f32 v24, v24
    v_exp_f32 v26, v26
    v_exp_f32 v28, v28
    v_exp_f32 v30, v30
    s_waitcnt lgkmcnt(0)
    v_mul_f32 v42, v24, v25
    v_mul_f32 v44, v24, v32
    v_mul_f32 v46, v24, v33
    v_fmac_f32 v42, v26, v27
    v_fmac_f32 v44, v26, v34
    v_fmac_f32 v46, v26, v35
    v_fmac_f32 v42, v28, v29
    v_fmac_f32 v44, v28, v36
    v_fmac_f32 v46, v28, v37
    v_fmac_f32 v42, v30, v31
    v_fmac_f32 v44, v30, v38
    v_fmac_f32 v46, v30, v39
    buffer_store_dwordx4 v[44:47], v10, s[44:47], 0 offen {AGF}
    s_mov_b64 exec, 1
    buffer_store_dwordx4 v[40:43], v11, s[44:47], 0 offen offset:1024 {AGF}
    s_mov_b64 exec, -1
    """)
    poll_begin("ag")
    a(f"""
    buffer_load_dwordx2 v[24:25], v6, s[44:47], 0 offen {AGF}
    buffer_load_dwordx2 v[26:27], v7, s[44:47], 0 offen {AGF}
    buffer_load_dwordx4 v[28:31], v4, s[44:47], 0 offen offset:1024 {AGF}
    buffer_load_dwordx4 v[32:35], v5, s[44:47], 0 offen offset:1024 {AGF}
    s_waitcnt vmcnt(0)
    """)
    tagcheck(8, [25, 27, 29, 31, 33, 35])
    poll_end("ag", 8, code=2)
    stamp(4)
    a("v_max_f32 v36, v28, v32")
    allreduce("v_max_f32", 36, 37, rors=())
    a(f"""
    v_sub_f32 v28, v28, v36
    v_sub_f32 v32, v32, v36
    v_mul_f32 v28, s60, v28
    v_mul_f32 v32, s60, v32
    v_exp_f32 v28, v28
    v_exp_f32 v32, v32
    s_nop 0
    v_mul_f32 v38, v28, v30
    v_mul_f32 v39, v28, v24
    v_fmac_f32 v38, v32, v34
    v_fmac_f32 v39, v32, v26
    v_mov_b32 v36, v38
    v_mov_b32 v37, v39
    s_nop 0
    v_permlane16_swap_b32 v38, v36
    v_permlane16_swap_b32 v39, v37
    v_add_f32 v38, v38, v36
    v_add_f32 v39, v39, v37
    v_mov_b32 v36, v38
    v_mov_b32 v37, v39
    s_nop 0
    v_permlane32_swap_b32 v38, v36
    v_permlane32_swap_b32 v39, v37
    v_add_f32 v38, v38, v36
    v_add_f32 v39, v39, v37
    v_rcp_f32 v40, v38
    s_nop 0
    """)
    div_refined(41, 39, 38, 40, 37)
    a("v_cvt_pk_bf16_f32 v41, v41, v41")
    a(f"""
    ds_bpermute_b32 v44, v56, v41
    ds_bpermute_b32 v45, v57, v41
    s_waitcnt lgkmcnt(0)
    """)
    job8(WB, 2, [44, 45], AB)
    job8_publish(AB, PR, 20, YAF)
    stamp(5)
    stamp_store(6)
    a("s_endpgm")

    a("L_helperB:")
    T0[0] = 46
    W1B = 52; W2B = 148
    a(f"""
    s_mul_i32 s50, s2, 43691
    s_lshr_b32 s50, s50, 18
    s_mul_i32 s30, s50, 6
    s_sub_u32 s51, s2, s30           ; rs
    s_mul_i32 s48, s51, 96
    """)
    ln_loads(48)
    a(f"""
    s_mov_b32 s36, s20
    s_mov_b32 s37, s21
    s_mov_b32 s38, {576*9216}
    s_mov_b32 s39, 0x20000
    v_add_u32 v23, s48, v2
    s_movk_i32 s31, 9216
    v_mul_lo_u32 v23, v23, s31
    v_lshl_add_u32 v23, v3, 4, v23
    s_lshl_b32 s30, s50, 8
    v_add_u32 v23, s30, v23
    s_cmp_lt_u32 s2, 216
    s_cbranch_scc1 L_hasw1
    v_mov_b32 v23, 0x7f000000
    L_hasw1:
    """)
    if B0: a("s_barrier")
    for j in range(24):
        a(f"s_mov_b32 s31, {j*36864}")
        a(f"buffer_load_dwordx4 v[{W1B+4*j}:{W1B+4*j+3}], v23, s[36:39], s31 offen {NT}")
    def w2_loads():
        a(f"""
        s_mul_i32 s86, s2, 9
        s_lshr_b32 s87, s86, 2           ; b0
        s_add_u32 s86, s86, 9
        s_lshr_b32 s86, s86, 2
        s_sub_u32 s86, s86, s87          ; cnt
        s_mov_b32 s40, s22
        s_mov_b32 s41, s23
        s_mov_b32 s42, {4608*1152}
        s_mov_b32 s43, 0x20000
        v_lshrrev_b32 v40, 3, v3
        v_lshl_add_u32 v40, v2, 1, v40
        s_lshl_b32 s30, s87, 3
        v_add_u32 v40, s30, v40
        s_movk_i32 s31, 1152
        v_mul_lo_u32 v40, v40, s31
        v_and_b32 v41, 7, v3
        v_lshl_add_u32 v40, v41, 4, v40
        v_add_u32 v41, 9216, v40
        v_add_u32 v42, 18432, v40
        s_cmp_eq_u32 s86, 3
        s_cbranch_scc1 L_cnt3
        v_mov_b32 v42, 0x7f000000
        L_cnt3:
        """)
        for bb in range(3):
            for blk in range(9):
                j = bb * 9 + blk
                a(f"buffer_load_dwordx4 v[{W2B+4*j}:{W2B+4*j+3}], v{40+bb}, s[40:43], 0 offen offset:{blk*128} {NT}")
    if W2EARLY: w2_loads()
    make_masks(20, 21)
    a("s_barrier")
    nyo = 27 if W2EARLY else 0
    a(f"s_waitcnt vmcnt({24 + nyo})")
    ln_compute()
    job4(W1B, 24, nyo)
    a(f"s_waitcnt lgkmcnt(0)")
    make_tag()
    a(f"""
    v_lshlrev_b32 v24, 4, v0
    s_mul_i32 s30, s51, {4608*8}
    s_lshl_b32 s31, s50, 10
    s_add_u32 s30, s30, s31
    s_add_u32 s30, s30, {HG}
    v_add_u32 v24, s30, v24
    v_mov_b32 v21, s6
    v_mov_b32 v23, s6
    s_cmp_lt_u32 s2, 216
    s_cbranch_scc0 L_nopubh
    buffer_store_dwordx4 v[20:23], v24, s[44:47], 0 offen {HF}
    L_nopubh:
    """)
    stamp(1)
    if not W2EARLY: w2_loads()
    a(f"""
    v_lshrrev_b32 v4, 5, v0
    s_mov_b32 s31, {4608*8}
    v_mul_lo_u32 v4, v4, s31
    v_and_b32 v5, 31, v0
    s_lshl_b32 s30, s86, 3
    v_cmp_gt_u32 s[54:55], s30, v5
    s_lshl_b32 s30, s87, 3
    v_add_u32 v5, s30, v5
    v_lshrrev_b32 v6, 4, v5
    v_lshlrev_b32 v6, 3, v6                 ; *8 lanes
    v_and_b32 v7, 7, v5
    v_add_u32 v6, v6, v7
    v_lshlrev_b32 v6, 4, v6
    v_bfe_u32 v7, v5, 3, 1
    v_lshl_add_u32 v6, v7, 3, v6
    v_add_u32 v4, v4, v6
    v_add_u32 v4, {HG}, v4
    v_add_u32 v5, {2*4608*8}, v4
    v_add_u32 v6, {4*4608*8}, v4
    """)
    AB = 52; PR = 88
    job8_zero(AB)
    for t in range(3): a(f"v_mov_b32 v{PR+4*t+3}, s6")
    job8_addr(YB, 20)
    poll_begin("h")
    a(f"""
    buffer_load_dwordx2 v[28:29], v4, s[44:47], 0 offen {HF}
    buffer_load_dwordx2 v[30:31], v5, s[44:47], 0 offen {HF}
    buffer_load_dwordx2 v[32:33], v6, s[44:47], 0 offen {HF}
    s_waitcnt vmcnt(0)
    """)
    tagcheck(8, [29, 31, 33])
    a("v_cndmask_b32 v8, 0, v8, s[54:55]")
    poll_end("h", 8, sleep=16, code=3)
    a(f"""
    v_add_f32 v28, v28, v30
    v_add_f32 v28, v28, v32
    v_cndmask_b32 v28, 0, v28, s[54:55]
    v_mov_b32 v29, v28
    s_nop 1
    v_permlane32_swap_b32 v28, v29
    v_add_f32 v28, v28, v29
    """)
    to_bf16f(28, 28)
    a(f"""
    s_mov_b32 s60, {LOG2E:#x}
    v_mul_f32 v29, s60, v28
    v_exp_f32 v29, -v29
    s_nop 0
    v_add_f32 v29, 1.0, v29
    v_rcp_f32 v30, v29
    s_nop 0
    v_mul_f32 v31, v28, v30
    v_cvt_pk_bf16_f32 v31, v31, v31
    v_lshrrev_b32 v32, 3, v3
    v_lshl_add_u32 v32, v2, 1, v32
    v_lshlrev_b32 v32, 2, v32
    v_add_u32 v33, 32, v32
    v_add_u32 v34, 64, v32
    ds_bpermute_b32 v36, v32, v31
    ds_bpermute_b32 v37, v33, v31
    ds_bpermute_b32 v38, v34, v31
    s_waitcnt lgkmcnt(0)
    """)
    job8(W2B, 3, [36, 37, 38], AB)
    job8_finish(AB, PR)
    stamp(2)
    GB = 148
    def yaddr(base):
        a(f"""
        s_lshl_b32 s30, s2, 14
        s_add_u32 s30, s30, {base}
        v_lshlrev_b32 v4, 4, v0
        v_add_u32 v4, s30, v4
        v_add_u32 v5, 4096, v4
        v_add_u32 v6, 8192, v4
        v_add_u32 v7, 12288, v4
        """)
    def ygather(name, code, sleep, fl='sc1'):
        poll_begin(name)
        for i in range(16):
            a(f"buffer_load_dwordx4 v[{GB+4*i}:{GB+4*i+3}], v{4 + (i >> 2)}, s[44:47], 0 offen offset:{(i & 3)*1024} {fl}")
        a("s_waitcnt vmcnt(0)")
        tagcheck(8, [GB + 4*i + 3 for i in range(16)])
        poll_end(name, 8, sleep=sleep, code=code)
    def ysum(d):
        st = 1
        while st < 16:
            for i in range(0, 16, 2 * st):
                for o in range(3):
                    a(f"v_add_f32 v{GB+4*i+o}, v{GB+4*i+o}, v{GB+4*(i+st)+o}")
            st *= 2
        R = [GB, GB + 1, GB + 2]; Tm = [GB + 4, GB + 5, GB + 6]
        for n in (4, 8):
            for x in R: a(f"v_add_f32_dpp v{x}, v{x}, v{x} row_ror:{n} row_mask:0xf bank_mask:0xf")
        for sw in ("16", "32"):
            for x, t in zip(R, Tm): a(f"v_mov_b32 v{t}, v{x}")
            for x, t in zip(R, Tm): a(f"v_permlane{sw}_swap_b32 v{x}, v{t}")
            for x, t in zip(R, Tm): a(f"v_add_f32 v{x}, v{x}, v{t}")
        for k, x in enumerate(R): a(f"v_cvt_pk_bf16_f32 v{d+k}, v{x}, v{x}")
        for k in range(3): a(f"v_and_b32 v{d+k}, 0xffff0000, v{d+k}")
    a(f"""
    s_mov_b32 s32, s8
    s_mov_b32 s33, s9
    s_mov_b32 s34, 1152
    s_mov_b32 s35, 0x20000
    s_lshr_b32 s30, s2, 4
    s_mul_i32 s30, s30, 192
    s_and_b32 s31, s2, 15
    s_lshl_b32 s31, s31, 2
    s_add_u32 s30, s30, s31
    v_and_b32 v10, 3, v0
    v_add_u32 v10, s30, v10
    v_lshlrev_b32 v10, 1, v10
    buffer_load_ushort v12, v10, s[32:35], 0 offen
    buffer_load_ushort v13, v10, s[32:35], 0 offen offset:128
    buffer_load_ushort v14, v10, s[32:35], 0 offen offset:256
    s_mov_b32 s36, s24
    s_mov_b32 s37, s25
    s_mov_b32 s38, 1152
    s_mov_b32 s39, 0x20000
    """)
    yaddr(YB)
    a("s_waitcnt vmcnt(0)")
    a("v_lshlrev_b32 v12, 16, v12\nv_lshlrev_b32 v13, 16, v13\nv_lshlrev_b32 v14, 16, v14")
    stamp(3)
    a("s_barrier")
    job8_store(PR, 20, YBSF)
    a("s_cmp_lt_u32 s2, 48")
    a("s_cbranch_scc0 L_notred2")
    ygather("yb", 4, 2, YBLF)
    ysum(40)
    yaddr(YA)
    ygather("ya", 5, 0, YAF)
    stamp(4)
    ysum(24)
    for k in range(3): a(f"v_add_f32 v{24+k}, v{12+k}, v{24+k}")
    for k in range(3): a(f"v_cvt_pk_bf16_f32 v{24+k}, v{24+k}, v{24+k}")
    for k in range(3): a(f"v_and_b32 v{24+k}, 0xffff0000, v{24+k}")
    for k in range(3): a(f"v_add_f32 v{24+k}, v{24+k}, v{40+k}")
    for k in range(3): a(f"v_cvt_pk_bf16_f32 v{24+k}, v{24+k}, v{24+k}")
    a(f"""
    s_mov_b64 exec, 15
    buffer_store_short v24, v10, s[36:39], 0 offen
    buffer_store_short v25, v10, s[36:39], 0 offen offset:128
    buffer_store_short v26, v10, s[36:39], 0 offen offset:256
    s_mov_b64 exec, -1
    s_cmp_eq_u32 s2, 0
    s_cbranch_scc0 L_notred2
    v_mov_b32 v4, {EPOCH}
    v_mov_b32 v5, s6
    s_mov_b64 exec, 1
    buffer_store_dword v5, v4, s[44:47], 0 offen sc1
    s_mov_b64 exec, -1
    L_notred2:
    """)
    stamp(5)
    stamp_store(6, t=46)
    if AGG:
        a("s_cmp_eq_u32 s2, 0\ns_cbranch_scc0 L_end")
        a("s_mov_b32 s49, 0\nL_aggw:\ns_sleep 64\ns_add_u32 s49, s49, 1\ns_cmp_lt_u32 s49, 40\ns_cbranch_scc1 L_aggw")
        Q = [("all", 0, "min"), ("s", 1, "max"), ("s", 2, "max"), ("s", 5, "min"), ("s", 5, "max"), ("s", 3, "min"), ("s", 3, "max"), ("s", 3, "sum"),
             ("a", 1, "max"), ("a", 4, "max"), ("a", 5, "max"), ("b", 4, "max"), ("b", 5, "max"), ("s", 2, "sum"), ("a", 1, "sum"), ("all", 0, "max")]
        a("v_and_b32 v4, 7, v0")
        a("v_cmp_gt_u32 s[52:53], 4, v4\nv_cmp_eq_u32 s[54:55], 4, v4\nv_cmp_eq_u32 s[56:57], 5, v4\nv_cmp_gt_u32 s[58:59], 6, v4")
        for i, (r, idx, op) in enumerate(Q):
            a(f"v_mov_b32 v{100+i}, {'0x7fffffff' if op == 'min' else ('0x80000000' if op == 'max' else 0)}")
        a(f"v_lshlrev_b32 v5, 6, v0\nv_add_u32 v5, {TS}, v5\ns_mov_b32 s49, 0")
        a("L_agg:")
        a("buffer_load_dwordx4 v[8:11], v5, s[44:47], 0 offen sc1\nbuffer_load_dwordx4 v[12:15], v5, s[44:47], 0 offen offset:16 sc1")
        a("s_lshl_b32 s30, s49, 3\nv_lshrrev_b32 v6, 3, v0\nv_add_u32 v6, s30, v6\nv_cmp_gt_u32 s[60:61], 48, v6\ns_and_b64 s[60:61], s[60:61], s[56:57]")
        a("s_waitcnt vmcnt(0)")
        for k in range(8): a(f"v_subrev_u32 v{8+k}, s70, v{8+k}")
        masks = {"all": "s[58:59]", "s": "s[52:53]", "a": "s[54:55]", "b": "s[60:61]"}
        for i, (r, idx, op) in enumerate(Q):
            neutral = {"min": "0x7fffffff", "max": "0x80000000", "sum": "0"}[op]
            a(f"v_mov_b32 v16, {neutral}")
            a(f"v_cndmask_b32 v16, v16, v{8+idx}, {masks[r]}")
            a({"min": f"v_min_i32 v{100+i}, v{100+i}, v16", "max": f"v_max_i32 v{100+i}, v{100+i}, v16", "sum": f"v_add_u32 v{100+i}, v{100+i}, v16"}[op])
        a("v_add_u32 v5, 4096, v5\ns_add_u32 s49, s49, 1\ns_cmp_lt_u32 s49, 32\ns_cbranch_scc1 L_agg")
        for i, (r, idx, op) in enumerate(Q):
            allreduce({"min": "v_min_i32", "max": "v_max_i32", "sum": "v_add_u32"}[op], 100 + i, 16)
        a("s_mov_b32 s32, s26\ns_mov_b32 s33, s27\ns_mov_b32 s34, 256\ns_mov_b32 s35, 0x20000\nv_mov_b32 v4, 0\ns_mov_b64 exec, 1")
        for i in range(len(Q)): a(f"buffer_store_dword v{100+i}, v4, s[32:35], 0 offen offset:{4*i}")
        a("s_waitcnt vmcnt(0)")
    a("L_end:")
    a("s_endpgm")
    body = a.text()
    txt = f"""{HEADER}; @launch grid=(256,1,1) block=(384,1,1) lds={LDS}
.amdgcn_target "amdgcn-amd-amdhsa--gfx950"
.text
.globl {KN}
.p2align 8
.type {KN},@function
{KN}:
{body}
.section .rodata,"a"
.p2align 6
.amdhsa_kernel {KN}
  .amdhsa_next_free_vgpr 256
  .amdhsa_next_free_sgpr 96
  .amdhsa_accum_offset 256
  .amdhsa_group_segment_fixed_size 0
  .amdhsa_kernarg_size 88
  .amdhsa_user_sgpr_count 2
  .amdhsa_user_sgpr_kernarg_segment_ptr 1
  .amdhsa_system_sgpr_workgroup_id_x 1
.end_amdhsa_kernel
"""
    return txt

if __name__ == "__main__":
    import argparse
    ap = argparse.ArgumentParser()
    ap.add_argument("out")
    ap.add_argument("--nv", type=int, default=24)
    ap.add_argument("--w", type=int, default=8)
    ap.add_argument("--nohilo", action="store_true")
    ap.add_argument("--ts", action="store_true")
    ap.add_argument("--dbg", action="store_true")
    ap.add_argument("--prog", action="store_true")
    ap.add_argument("--w2late", action="store_true")
    ap.add_argument("--wolate", action="store_true")
    ap.add_argument("--nopf", action="store_true")
    ap.add_argument("--agg", action="store_true")
    ap.add_argument("--hf", default="sc1 nt"); ap.add_argument("--qsf", default="sc1"); ap.add_argument("--qlf", default="sc1"); ap.add_argument("--agf", default="sc1"); ap.add_argument("--yaf", default="sc1")
    ap.add_argument("--b0", action="store_true"); ap.add_argument("--wog", action="store_true")
    ap.add_argument("--pubf", default="sc1 nt"); ap.add_argument("--slf", default="sc1 nt"); ap.add_argument("--ybsf", default="sc1"); ap.add_argument("--yblf", default="sc1")
    ap.add_argument("--nopub", action="store_true")
    ap.add_argument("--noyb", action="store_true")
    ap.add_argument("--tlb", type=int, default=0)
    args = ap.parse_args()
    t = gen(NV=args.nv, HILO=not args.nohilo, TSTAMP=args.ts, dbg=args.dbg, W=args.w, PROG=args.prog,
            W2EARLY=not args.w2late, WOLATE=args.wolate, PF=not args.nopf, TLB=args.tlb, NOPUB=args.nopub, NOYB=args.noyb, PUBF=args.pubf, SLF=args.slf, YBSF=args.ybsf, YBLF=args.yblf, HF=args.hf, QSF=args.qsf, QLF=args.qlf, AGF=args.agf, YAF=args.yaf, B0=args.b0, WOG=args.wog, AGG=args.agg)
    errs = hazard.check(t)
    for e in errs: print("HAZARD", e)
    open(args.out, "w").write(t)
```

```python
import sys
from asmlib import A, NAME, KN
import hazard

WS_SIZE = 0x1000000
EPOCH = 0
CNT   = 0x1000
QG    = 0x10000
HG    = 0x60000
AG    = 0xA0000
SG    = 0x140000
YA    = 0x600000
YB    = 0x740000
TS    = 0x900000
L_Q   = 0
L_ML  = 256
L_FLAG = 320
L_QF  = 324
L_O   = 512
L_S   = 4096
L_ID  = 53248
SSTR  = 12288
L_TQ  = 53760
LOG2E = 0x3FB8AA3B
SCALE = 0x3DB504F3

HEADER = """; Fused decode step: out = x + MHA(LN(x)) + FFN(LN(x))     (gfx950; hand written, emitted by my own generator script)
;   waves 0-3 stream K (scores -> LDS), then V (softmax weights x V on MFMA) of head h; the last V tiles
; Hand-offs between workgroups are 8-byte {value, tag} granules in d_ws; the tag is derived from
"""

class K(A):
    noatom = False
    atomrepl = None
    def __call__(self, s=''):
        if self.noatom: s = '\n'.join(l for l in s.split('\n') if 's_atomic_add' not in l)
        if self.atomrepl: s = '\n'.join((self.atomrepl if 's_atomic_add' in l else l) for l in s.split('\n'))
        super().__call__(s)
    def nop(self, n):
        while n > 0:
            m = min(n, 16); self(f"s_nop {m-1}"); n -= m

def gen(NV=24, HILO=True, TSTAMP=False, NT="nt", POLLMAX=40000, LDS=86016, dbg=False, W=8, PROG=False,
        W2EARLY=True, WOLATE=False, PF=True, TLB=0, NOPUB=False, NOYB=False, PUBF='sc1 nt', SLF='sc1 nt', YBSF='sc1', YBLF='sc1', HF='sc1', QSF='sc1', QLF='sc1', AGF='sc1', YAF='sc1', B0=False, WOG=False, AGG=False, SD=False, ORD2=False, BURST=False, RQ=-1, BATCH=0, THR=96, FAKE=False, NOATOM=False, NOSL=False, WGT=True, ATOMREPL=None, CSTR=256, CBASE=None, ORD3=False, ACKW=True, PRE=0, NOFFN=False, NOWO=False, HSLEEP=16, QF=True, HLATE=True):
    a = K()
    VOFF = 128 if CSTR >= 256 else 4
    a.noatom = NOATOM
    a.atomrepl = ATOMREPL
    DYN = NV < 32
    NP = 32 - NV; POOL0 = 32 * NV; NPOOL = 32 * NP
    MAXD = 48 - NV if NV < 32 else 0
    MAXD -= MAXD & 1
    MAXD = min(MAXD, 32)
    assert 32 * MAXD >= NPOOL
    assert SG + 32 * NPOOL * 128 + 65536 <= YA
    T0 = [60]

    def stamp(i):
        if TSTAMP:
            a(f"s_memrealtime s[{70+2*i}:{71+2*i}]")
            a("s_waitcnt lgkmcnt(0)")
    def stamp_store(nst, t=60):
        if TSTAMP:
            a("s_waitcnt vmcnt(0)")
            a("s_lshl_b32 s30, s2, 3\ns_add_u32 s30, s30, s3\ns_lshl_b32 s30, s30, 6")
            a(f"s_add_u32 s30, s30, {TS}")
            a("s_mov_b64 exec, 1")
            a(f"v_mov_b32 v{t}, s30")
            for i in range(nst):
                a(f"v_mov_b32 v{t+1}, s{70+2*i}")
                a(f"buffer_store_dword v{t+1}, v{t}, s[44:47], 0 offen offset:{4*i}" + (" sc1" if AGG else ""))
            a("s_getreg_b32 s31, hwreg(HW_REG_XCC_ID)")
            a(f"v_mov_b32 v{t+1}, s31")
            a(f"buffer_store_dword v{t+1}, v{t}, s[44:47], 0 offen offset:60")
            a("s_waitcnt vmcnt(0)")
            a("s_mov_b64 exec, -1")

    def make_masks(tmp1, tmp2):
        a(f"v_and_b32 v{tmp1}, 7, v3")
        a(f"v_and_b32 v{tmp2}, 1, v3")
        a(f"v_lshlrev_b32 v{tmp2}, 4, v{tmp2}")
        a(f"v_mov_b32 v12, 0xffff")
        a(f"v_lshlrev_b32 v{tmp2}, v{tmp2}, v12")
        a(f"v_lshrrev_b32 v{tmp1}, 1, v{tmp1}")
        for w in range(4):
            a(f"v_cmp_eq_u32 vcc, {w}, v{tmp1}")
            a.nop(2)
            a(f"v_cndmask_b32 v{12+w}, 0, v{tmp2}, vcc")

    def allreduce(op, v, t, rors=(8, 4, 2, 1), cross=True):
        for n in rors:
            a.nop(2)
            a(f"{op}_dpp v{v}, v{v}, v{v} row_ror:{n} row_mask:0xf bank_mask:0xf")
        if cross:
            for sw in ("16", "32"):
                a(f"v_mov_b32 v{t}, v{v}")
                a.nop(2)
                a(f"v_permlane{sw}_swap_b32 v{v}, v{t}")
                a(f"{op} v{v}, v{v}, v{t}")

    def to_bf16f(dst, src):
        a(f"v_cvt_pk_bf16_f32 v{dst}, v{src}, v{src}")
        a(f"v_and_b32 v{dst}, 0xffff0000, v{dst}")

    def div_refined(dst, num, den, rcp, t):
        a(f"v_mul_f32 v{dst}, v{num}, v{rcp}")
        a(f"v_fma_f32 v{t}, -v{dst}, v{den}, v{num}")
        a(f"v_fma_f32 v{dst}, v{t}, v{rcp}, v{dst}")

    def poll_begin(name):
        a(f"s_mov_b32 s49, 0")
        a(f"L_{name}_poll:")
    def poll_end(name, acc, sleep=0, code=1):
        a(f"v_cmp_ne_u32 vcc, 0, v{acc}")
        a(f"s_cbranch_vccz L_{name}_ok")
        a(f"s_add_u32 s49, s49, 1")
        if sleep: a(f"s_sleep {sleep}")
        a(f"s_cmp_lt_u32 s49, {POLLMAX}")
        a(f"s_cbranch_scc1 L_{name}_poll")
        if dbg:
            t = T0[0]
            a(f"v_mov_b32 v{t}, {code}\nv_mov_b32 v{t+1}, {4*code}\nglobal_atomic_or v{t+1}, v{t}, s[26:27]")
        a(f"L_{name}_ok:")
    def tagcheck(acc, tagregs):
        it = list(tagregs); tmp = T0[0]
        for i in range(0, len(it), 2):
            pair = it[i:i+2]
            if i == 0:
                a(f"v_xor_b32 v{acc}, s6, v{pair[0]}")
                if len(pair) > 1:
                    a(f"v_xor_b32 v{tmp}, s6, v{pair[1]}")
                    a(f"v_or_b32 v{acc}, v{acc}, v{tmp}")
            else:
                a(f"v_xor_b32 v{tmp}, s6, v{pair[0]}")
                if len(pair) > 1:
                    a(f"v_xor_b32 v{tmp+1}, s6, v{pair[1]}")
                    a(f"v_or3_b32 v{acc}, v{acc}, v{tmp}, v{tmp+1}")
                else:
                    a(f"v_or_b32 v{acc}, v{acc}, v{tmp}")
    def wait_kdone(name, v):
        a(f"v_mov_b32 v{v}, {L_FLAG}")
        a("s_mov_b32 s49, 0")
        a(f"L_{name}_kw:")
        a(f"ds_read_b32 v{v+1}, v{v}")
        a("s_waitcnt lgkmcnt(0)")
        a(f"v_readfirstlane_b32 s30, v{v+1}")
        a("s_add_u32 s49, s49, 1")
        a("s_cmp_ge_u32 s30, 256")
        a(f"s_cbranch_scc1 L_{name}_kd")
        a("s_sleep 16")
        a(f"s_cmp_lt_u32 s49, {POLLMAX * 4}")
        a(f"s_cbranch_scc1 L_{name}_kw")
        a(f"L_{name}_kd:")
    def ticket_init():
        a("s_mov_b32 s88, 0x10000\ns_mov_b32 s89, 0")
    def ticket_first():
        a("s_mov_b32 s89, 2\ns_mov_b32 s59, 2\ns_atomic_add s59, s[64:65], 0 glc")
    def ticket_top(tag, thr, capslot=None):
        a("s_cmp_lt_u32 s88, 0x10000")
        a(f"s_cbranch_scc1 L_tq{tag}")
        a("s_waitcnt lgkmcnt(0)")
        a("s_cmp_eq_u32 s89, 0")
        a("s_cselect_b32 s90, 0x10000, s59")
        a("s_add_u32 s88, s90, 1")
        a("s_cmp_eq_u32 s89, 2")
        a("s_cselect_b32 s88, s88, 0x10000")
        a("s_mov_b32 s89, 0")
        a(f"s_cmp_ge_u32 s90, {NPOOL}")
        a(f"s_cbranch_scc1 L_td{tag}")
        if capslot is not None:
            a(f"s_cmp_gt_u32 s58, {capslot}")
            a(f"s_cbranch_scc1 L_td{tag}")
        a(f"s_cmp_lt_u32 s90, {max(0, NPOOL - thr)}")
        a("s_cselect_b32 s89, 2, 1")
        a("s_mov_b32 s59, s89")
        a("s_atomic_add s59, s[64:65], 0 glc")
        a(f"s_branch L_td{tag}")
        a(f"L_tq{tag}:")
        a("s_mov_b32 s90, s88")
        a("s_mov_b32 s88, 0x10000")
        a(f"L_td{tag}:")
    NS = NPOOL // 4
    def wg_ticket(tag, allow):
        a("s_lshl_b32 s30, s93, 2")
        a(f"s_add_u32 s30, s30, {L_TQ}")
        a("v_mov_b32 v41, s30")
        a("s_cmp_eq_u32 s3, 0")
        a(f"s_cbranch_scc0 L_wr{tag}")
        a("s_waitcnt lgkmcnt(0)")
        a("s_min_u32 s31, s59, 0xfffe")
        a("s_add_u32 s91, s31, 1")
        a("v_mov_b32 v42, s91")
        a("ds_write_b32 v41, v42")
        a("s_mov_b32 s59, 0x10000")
        a(f"s_cmp_ge_u32 s31, {NS}")
        a(f"s_cbranch_scc1 L_wd{tag}")
        allow(f"L_wd{tag}")
        a("s_mov_b32 s59, 1")
        a("s_atomic_add s59, s[64:65], 0 glc")
        a(f"s_branch L_wd{tag}")
        a(f"L_wr{tag}:")
        a("s_mov_b32 s49, 0")
        a(f"L_ws{tag}:")
        a("ds_read_b32 v42, v41")
        a("s_add_u32 s49, s49, 1")
        a("s_waitcnt lgkmcnt(0)")
        a("v_readfirstlane_b32 s91, v42")
        a(f"s_cmp_ge_u32 s49, {POLLMAX * 8}")
        a(f"s_cbranch_scc1 L_wd{tag}")
        a("s_cmp_eq_u32 s91, 0")
        a(f"s_cbranch_scc1 L_ws{tag}")
        a(f"L_wd{tag}:")
        a("s_sub_u32 s91, s91, 1")
        a("s_lshl_b32 s91, s91, 2")
        a("s_add_u32 s91, s91, s3")
        a("s_add_u32 s93, s93, 1")
    def wg_first():
        a("s_cmp_eq_u32 s3, 0")
        lbl = a.label("L_wf")
        a(f"s_cbranch_scc0 {lbl}")
        a("s_mov_b32 s59, 1")
        a("s_atomic_add s59, s[64:65], 0 glc")
        a(f"{lbl}:")
    def tile_of(n, dst, t1="s30", t2="s31"):
        a(f"s_bfe_u32 {t1}, {n}, 0x30002")
        a(f"s_lshl_b32 {t1}, {t1}, 7")
        a(f"s_lshr_b32 {t2}, {n}, 5")
        a(f"s_lshl_b32 {t2}, {t2}, 2")
        a(f"s_add_u32 {t1}, {t1}, {t2}")
        a(f"s_and_b32 {t2}, {n}, 3")
        a(f"s_add_u32 {t1}, {t1}, {t2}")
        a(f"s_add_u32 {t1}, {t1}, {4*NV}")
        a(f"s_cmp_lt_u32 {n}, {NPOOL}")
        a(f"s_cselect_b32 {dst}, {t1}, 1024")
    def fake_n(dst):
        a(f"s_sub_u32 s30, s58, {NV}")
        a(f"s_lshl_b32 s31, s30, 5")
        a(f"s_lshl_b32 {dst}, s5, 2")
        a(f"s_add_u32 {dst}, {dst}, s31")
        a(f"s_add_u32 {dst}, {dst}, s3")
        a(f"s_cmp_lt_u32 s30, {NP}")
        a(f"s_cselect_b32 {dst}, {dst}, 0x10000")
    def make_tag():
        a("s_mul_i32 s6, s6, 0x9E3779B1\ns_add_u32 s6, s6, 0x7F4A7C15")

    def ln_loads(row0_sgpr):
        a(f"""
        s_mov_b32 s32, s8
        s_mov_b32 s33, s9
        s_mov_b32 s34, 1152
        s_mov_b32 s35, 0x20000
        v_lshlrev_b32 v20, 3, v0
        v_lshlrev_b32 v21, 1, v0
        v_lshl_add_u32 v22, v3, 2, v2
        v_add_u32 v22, s{row0_sgpr}, v22
        v_lshlrev_b32 v22, 1, v22
        buffer_load_dwordx2 v[4:5], v20, s[32:35], 0 offen
        buffer_load_dwordx2 v[6:7], v20, s[32:35], 0 offen offset:512
        buffer_load_ushort v8, v21, s[32:35], 0 offen offset:1024
        buffer_load_ushort v9, v22, s[32:35], 0 offen
        buffer_load_ushort v10, v22, s[32:35], 0 offen offset:128
        """)
    def ln_compute():
        for i, r in enumerate((4, 5, 6, 7)):
            a(f"v_lshlrev_b32 v{24+2*i}, 16, v{r}")
            a(f"v_and_b32 v{25+2*i}, 0xffff0000, v{r}")
        a("v_lshlrev_b32 v32, 16, v8")
        a("v_add_f32 v33, v24, v25\nv_add_f32 v34, v26, v27\nv_add_f32 v35, v28, v29\nv_add_f32 v36, v30, v31")
        a("v_add_f32 v33, v33, v34\nv_add_f32 v35, v35, v36\nv_add_f32 v33, v33, v32\nv_add_f32 v33, v33, v35")
        allreduce("v_add_f32", 33, 34)
        a("v_mov_b32 v36, 0x44100000")
        a("v_mov_b32 v37, 0x3ae38e39")
        div_refined(38, 33, 36, 37, 34)
        for i in range(9):
            a(f"v_sub_f32 v{24+i}, v{24+i}, v38")
        a("v_mul_f32 v33, v24, v24")
        for i in range(1, 9):
            a(f"v_fmac_f32 v33, v{24+i}, v{24+i}")
        allreduce("v_add_f32", 33, 34)
        div_refined(39, 33, 36, 37, 34)
        to_bf16f(38, 38)
        to_bf16f(39, 39)
        a("v_add_f32 v39, 0x3727c5ac, v39")
        to_bf16f(39, 39)
        a("v_sqrt_f32 v39, v39")
        a.nop(1)
        to_bf16f(39, 39)
        a("v_rcp_f32 v37, v39")
        for r in (9, 10):
            a(f"v_lshlrev_b32 v{r}, 16, v{r}")
            a(f"v_sub_f32 v{r}, v{r}, v38")
            to_bf16f(r, r)
        for r in (9, 10):
            div_refined(33, r, 39, 37, 34)
            a(f"v_cvt_pk_bf16_f32 v{r}, v33, v33")

    def job4(wb, n, nyounger):
        a("v_mov_b32 v16, 0\nv_mov_b32 v17, 0\nv_mov_b32 v18, 0\nv_mov_b32 v19, 0")
        def prep(j):
            src = 9 if j < 16 else 10
            b = 24 + 4 * (j & 1)
            for w in range(4):
                a(f"v_and_b32_dpp v{b+w}, v{src}, v{12+w} row_newbcast:{j & 15} row_mask:0xf bank_mask:0xf")
        a.nop(2)
        prep(0)
        for j in range(n):
            if j + 1 < n: prep(j + 1)
            else: a.nop(2)
            a(f"s_waitcnt vmcnt({min(63, n - 1 - j + nyounger)})")
            b = 24 + 4 * (j & 1)
            a(f"v_mfma_f32_16x16x32_bf16 v[16:19], v[{wb+4*j}:{wb+4*j+3}], v[{b}:{b+3}], v[16:19]")
        a.nop(8)
        a("s_mov_b32 s52, 0xff00ff00\ns_mov_b32 s53, 0xff00ff00")
        a("v_cndmask_b32 v20, v16, v18, s[52:53]")
        a("v_cndmask_b32 v22, v17, v19, s[52:53]")

    def job8_zero(ab):
        for i in range(36): a(f"v_mov_b32 v{ab+i}, 0")
    def job8(wb, nb, mult, ab):
        for bb in range(nb):
            for w in range(4):
                a(f"v_and_b32 v{24+w}, v{mult[bb]}, v{12+w}")
            a.nop(2)
            for blk in range(9):
                j = bb * 9 + blk
                a(f"v_mfma_f32_16x16x32_bf16 v[{ab+4*blk}:{ab+4*blk+3}], v[{wb+4*j}:{wb+4*j+3}], v[24:27], v[{ab+4*blk}:{ab+4*blk+3}]")
        a.nop(6)
    def job8_addr(ybase, v):
        a(f"v_and_b32 v{v}, 1, v2\nv_lshlrev_b32 v{v}, 2, v{v}")
        a(f"v_lshrrev_b32 v21, 3, v3\nv_lshlrev_b32 v21, 1, v21\nv_add_u32 v{v}, v{v}, v21")
        a(f"v_lshrrev_b32 v21, 1, v2\nv_add_u32 v{v}, v{v}, v21")
        a(f"v_lshlrev_b32 v{v}, 1, v{v}\nv_bfe_u32 v21, v3, 2, 1\nv_add_u32 v{v}, v{v}, v21")
        a(f"v_lshlrev_b32 v{v}, 14, v{v}")
        a(f"v_and_b32 v21, 3, v3\nv_lshl_add_u32 v{v}, v21, 4, v{v}")
        a(f"s_lshl_b32 s30, s2, 6\ns_add_u32 s30, s30, {ybase}")
        a(f"v_add_u32 v{v}, s30, v{v}")
    def job8_finish(ab, pairbase):
        for blk in range(9):
            y = ab + 4 * blk
            a(f"v_permlane32_swap_b32 v{y}, v{y+1}")
            a(f"v_permlane32_swap_b32 v{y+2}, v{y+3}")
        for t in range(3):
            for k in range(3):
                blk = 3 * t + k
                y = ab + 4 * blk; pr = pairbase + 4 * t + k
                a(f"v_add_f32_dpp v{pr}, v{y+1}, v{y} row_ror:8 row_mask:0xf bank_mask:0x3")
                a(f"v_add_f32_dpp v{pr}, v{y+2}, v{y+3} row_ror:8 row_mask:0xf bank_mask:0xc")
    def job8_store(pairbase, vaddr, fl):
        for t in range(3):
            a(f"s_mov_b32 s31, {t * 16 * 16384}")
            a(f"buffer_store_dwordx4 v[{pairbase+4*t}:{pairbase+4*t+3}], v{vaddr}, s[44:47], s31 offen {fl}")
    def job8_publish(ab, pairbase, vaddr, fl='sc1'):
        for blk in range(9):
            y = ab + 4 * blk
            a(f"v_permlane32_swap_b32 v{y}, v{y+1}")
            a(f"v_permlane32_swap_b32 v{y+2}, v{y+3}")
        for t in range(3):
            for k in range(3):
                blk = 3 * t + k
                y = ab + 4 * blk; pr = pairbase + 4 * t + k
                a(f"v_add_f32_dpp v{pr}, v{y+1}, v{y} row_ror:8 row_mask:0xf bank_mask:0x3")
                a(f"v_add_f32_dpp v{pr}, v{y+2}, v{y+3} row_ror:8 row_mask:0xf bank_mask:0xc")
            a(f"s_mov_b32 s31, {t * 16 * 16384}")
            a(f"buffer_store_dwordx4 v[{pairbase+4*t}:{pairbase+4*t+3}], v{vaddr}, s[44:47], s31 offen {fl}")

    a(f"""
    s_cmp_ge_u32 s2, 256
    s_cbranch_scc1 L_end
    s_load_dwordx16 s[8:23], s[0:1], 0
    s_load_dwordx4 s[24:27], s[0:1], 64
    s_load_dwordx2 s[28:29], s[0:1], 80
    """)
    if TSTAMP: a("s_memrealtime s[70:71]")
    a(f"""
    v_lshrrev_b32 v1, 6, v0
    v_and_b32 v0, 63, v0
    v_readfirstlane_b32 s3, v1
    s_lshr_b32 s4, s2, 3
    s_and_b32 s5, s2, 7
    v_lshrrev_b32 v2, 4, v0
    v_and_b32 v3, 15, v0
    """)
    if PF:
        a(f"""
        s_cmp_eq_u32 s3, 5
        s_cbranch_scc0 L_nopf
        L_pc:
        s_getpc_b64 s[30:31]
        v_lshlrev_b32 v4, 7, v0
        v_add_u32 v5, 8192, v4
        v_min_u32 v4, L_end-L_pc, v4
        v_min_u32 v5, L_end-L_pc, v5
        global_load_dword v50, v4, s[30:31]
        global_load_dword v51, v5, s[30:31]
        L_nopf:
        """)
    a(f"""
    s_waitcnt lgkmcnt(0)
    s_load_dword s6, s[28:29], {EPOCH}
    s_mov_b32 s44, s28
    s_mov_b32 s45, s29
    s_mov_b32 s46, {WS_SIZE}
    s_mov_b32 s47, 0x20000
    s_cmp_eq_u32 s3, 4
    s_cbranch_scc1 L_helperA
    s_cmp_eq_u32 s3, 5
    s_cbranch_scc1 L_helperB
    """)

    SL = 64
    T0[0] = 62
    def issue(pos, nxt, srd_cur, srd_nxt):
        j = pos & 7
        vo = ((7, 46) if nxt else (5, 6))[j >> 2]
        srd = srd_nxt if nxt else srd_cur
        a(f"buffer_load_dwordx4 v[{SL+4*j}:{SL+4*j+3}], v{vo}, {srd}, 0 offen offset:{(j & 3) * 1024} {NT}")
    def issue_after(n, srd_cur, srd_nxt):
        m = n + W
        issue(m & 7, m >= 8, srd_cur, srd_nxt)
    a(f"""
    s_lshl_b32 s30, s4, 23
    s_add_u32 s32, s10, s30
    s_addc_u32 s33, s11, 0
    s_mov_b32 s34, 0x800000
    s_mov_b32 s35, 0x20000
    s_lshl_b32 s56, s5, 7
    s_add_u32 s56, s56, s3
    s_lshl_b32 s31, s56, 13
    v_lshlrev_b32 v4, 4, v0
    v_add_u32 v5, s31, v4
    v_add_u32 v6, 4096, v5
    """)
    if B0 or ORD2 or ORD3: a("s_barrier")
    for n in range(W): issue(n, False, "s[32:35]", None)
    a(f"""
    s_add_u32 s36, s12, s30
    s_addc_u32 s37, s13, 0
    s_mov_b32 s38, 0x800000
    s_mov_b32 s39, 0x20000
    s_mov_b32 s42, 0x800000
    s_mov_b32 s43, 0x20000
    s_mov_b32 s57, s56
    s_mul_i32 s30, s4, {CSTR}
    s_add_u32 s30, s30, {CNT if CBASE is None else CBASE}
    s_add_u32 s64, s28, s30
    s_addc_u32 s65, s29, 0
    s_mul_i32 s84, s4, {NPOOL * 128}
    s_add_u32 s84, s84, {SG}
    s_mov_b32 s58, 0                   ; i
    s_mov_b32 s88, 0x10000
    s_mov_b32 s89, 0
    s_mov_b32 s93, 0
    s_mov_b32 s59, 0
    s_mov_b32 s60, {LOG2E:#x}
    s_mov_b32 s61, {SCALE:#x}
    s_mov_b32 s52, 0xcccccccc
    s_mov_b32 s53, 0xcccccccc
    s_mov_b32 s54, 0xaaaaaaaa
    s_mov_b32 s55, 0xaaaaaaaa
    """)
    make_masks(20, 21)
    a(f"""
    v_mov_b32 v16, 0
    v_mov_b32 v17, 0
    v_mov_b32 v18, 0
    v_mov_b32 v19, 0
    v_mov_b32 v20, 0
    v_mov_b32 v22, 0xff800000
    v_lshlrev_b32 v23, 4, v3
    s_mul_i32 s30, s3, {SSTR}
    s_add_u32 s30, s30, {L_S}
    v_lshl_add_u32 v47, v0, 2, s30
    s_lshl_b32 s30, s3, 7
    s_add_u32 s30, s30, {L_ID - 4*NV - 4}
    v_mov_b32 v43, s30
    v_mov_b32 v56, v47
    v_lshrrev_b32 v57, 1, v3
    v_lshlrev_b32 v57, 1, v57
    v_lshrrev_b32 v59, 1, v2
    v_add_u32 v57, v57, v59
    v_lshlrev_b32 v57, 3, v57
    v_and_b32 v59, 1, v2
    v_lshlrev_b32 v59, 4, v59
    v_sub_u32 v59, 16, v59
    s_waitcnt lgkmcnt(0)
    """)
    make_tag()
    stamp(1)
    if ORD2 or ORD3: a("s_barrier")
    if QF:
        assert ORD3
        a(f"v_mov_b32 v41, {L_QF}\ns_mov_b32 s49, 0\nL_qw:\nds_read_b32 v42, v41\ns_add_u32 s49, s49, 1\ns_waitcnt lgkmcnt(0)\nv_readfirstlane_b32 s30, v42")
        a(f"s_cmp_ge_u32 s49, {POLLMAX * 16}\ns_cbranch_scc1 L_qd\ns_cmp_eq_u32 s30, 0\ns_cbranch_scc0 L_qd\ns_sleep 1\ns_branch L_qw\nL_qd:")
    else:
        a("s_barrier")
    a(f"ds_read_b128 v[8:11], v23 offset:{L_Q}")
    a("s_waitcnt lgkmcnt(0)")
    stamp(2)
    a("L_ktile:")
    if PROG:
        a("s_memrealtime s[86:87]\ns_waitcnt lgkmcnt(0)\ns_mov_b32 m0, s58\ns_nop 0\nv_writelane_b32 v128, s86, m0")
    a("s_add_u32 s58, s58, 1")
    a("s_lshl_b32 s31, s58, 2")
    a("s_add_u32 s30, s31, s56")
    if DYN and WGT:
        a("s_mov_b32 s62, s30")
        a(f"s_cmp_eq_u32 s58, {NV-1}")
        a("s_cbranch_scc0 L_kf")
        wg_first()
        a("L_kf:")
        a(f"s_cmp_lt_u32 s58, {NV}")
        a("s_cbranch_scc1 L_kstat")
        def allow_k(lbl):
            a(f"s_cmp_ge_u32 s58, {NV + MAXD - 1}")
            a(f"s_cbranch_scc1 {lbl}")
        wg_ticket("k", allow_k)
        tile_of("s91", "s62")
        a("L_kstat:")
    elif DYN and BATCH:
        a("s_mov_b32 s62, s30")
        a(f"s_cmp_eq_u32 s58, {NV-2}")
        a("s_cbranch_scc0 L_kf")
        ticket_first()
        a("L_kf:")
        a(f"s_cmp_lt_u32 s58, {NV}")
        a("s_cbranch_scc1 L_kstat")
        ticket_top("k", 0, NV + MAXD - 4)
        a("s_mov_b32 s91, s90")
        tile_of("s91", "s62")
        a("L_kstat:")
    elif DYN:
        a("s_waitcnt lgkmcnt(0)")
        a("s_mov_b32 s92, s30")
        a("s_mov_b32 s91, s59")
        if FAKE: fake_n("s91")
        tile_of("s91", "s62")
        a(f"s_cmp_lt_u32 s58, {NV}")
        a("s_cselect_b32 s62, s92, s62")
        a("s_mov_b32 s59, 0x10000")
        a("s_mov_b32 s85, 0")
        a(f"s_cmp_lt_u32 s58, {NV-1}")
        a("s_cbranch_scc1 L_knotk")
        a(f"s_cmp_ge_u32 s58, {NV + MAXD - 1}")
        a("s_cbranch_scc1 L_knotk")
        a("s_cmp_ge_u32 s62, 1024")
        a("s_cbranch_scc1 L_knotk")
        if RQ < 0:
            a("s_mov_b32 s59, 1")
            a("s_atomic_add s59, s[64:65], 0 glc")
        else:
            a("s_mov_b32 s85, 1")
        a("L_knotk:")
    if DYN:
        a("s_cmp_lt_u32 s62, 1024")
    else:
        a("s_mov_b32 s62, s30")
        a(f"s_cmp_lt_u32 s58, {NV}")
    a("s_cselect_b32 s83, 1, 0")
    a("s_cselect_b32 s62, s62, s56")
    a("s_cselect_b32 s40, s32, s36")
    a("s_cselect_b32 s41, s33, s37")
    a("s_lshl_b32 s63, s62, 13")
    a("v_add_u32 v7, s63, v4\nv_add_u32 v46, 4096, v7")
    for j in range(8):
        a(f"s_waitcnt vmcnt({W-1})")
        P = 24 + j; sl = SL + 4 * j
        a(f"v_dot2_f32_bf16 v{P}, v{sl}, v8, 0")
        a(f"v_dot2_f32_bf16 v{P}, v{sl+1}, v9, v{P}")
        a(f"v_dot2_f32_bf16 v{P}, v{sl+2}, v10, v{P}")
        a(f"v_dot2_f32_bf16 v{P}, v{sl+3}, v11, v{P}")
        issue_after(j, "s[32:35]", "s[40:43]")
        if DYN and j == RQ and not BATCH and not WGT:
            a("s_cmp_eq_u32 s85, 1")
            a("s_cbranch_scc0 L_knorq")
            a("s_mov_b32 s59, 1")
            a("s_atomic_add s59, s[64:65], 0 glc")
            a("L_knorq:")
    for j in range(4):
        a(f"v_add_f32_dpp v{32+j}, v{24+j}, v{24+j} row_ror:8 row_mask:0xf bank_mask:0x3")
        a(f"v_add_f32_dpp v{32+j}, v{28+j}, v{28+j} row_ror:8 row_mask:0xf bank_mask:0xc")
    for j in range(2):
        a(f"v_add_f32_dpp v{36+j}, v{32+j}, v{32+j} row_shl:4 row_mask:0xf bank_mask:0x5")
        a(f"v_add_f32_dpp v{36+j}, v{34+j}, v{34+j} row_shr:4 row_mask:0xf bank_mask:0xa")
    a("v_mov_b32 v5, v7")
    a("v_add_f32_dpp v38, v36, v36 quad_perm:[2,3,0,1] row_mask:0xf bank_mask:0xf")
    a("v_add_f32_dpp v39, v37, v37 quad_perm:[2,3,0,1] row_mask:0xf bank_mask:0xf")
    a("v_cndmask_b32 v40, v38, v39, s[52:53]")
    a("v_mov_b32 v6, v46")
    if DYN: a("v_mov_b32 v41, s57")
    else: a("s_nop 0")
    a("v_add_f32_dpp v40, v40, v40 quad_perm:[1,0,3,2] row_mask:0xf bank_mask:0xf")
    a("v_cvt_pk_bf16_f32 v40, v40, v40")
    a("v_and_b32 v40, 0xffff0000, v40")
    a("v_mul_f32 v40, s61, v40")
    a("v_cvt_pk_bf16_f32 v40, v40, v40")
    a("v_and_b32 v40, 0xffff0000, v40")
    a("ds_write_b32 v56, v40")
    if DYN:
        a(f"s_cmp_gt_u32 s58, {NV}")
        a("s_cbranch_scc0 L_noid")
        a("s_lshl_b32 s30, s58, 2")
        a("v_add_u32 v42, s30, v43")
        a("ds_write_b32 v42, v41 offset:0")
        a("L_noid:")
    a("v_max_f32 v22, v22, v40")
    a("v_add_u32 v56, 256, v56")
    a("s_mov_b32 s57, s91")
    a("s_cmp_eq_u32 s83, 1")
    a("s_cbranch_scc1 L_ktile")
    stamp(5)
    a(f"v_mov_b32 v41, {L_FLAG}")
    a("v_mov_b32 v42, 1")
    a("s_waitcnt lgkmcnt(0)")
    a("ds_add_u32 v41, v42")
    a("ds_read_b32 v58, v47")
    allreduce("v_max_f32", 22, 41, rors=(8, 4, 2))
    a("v_mul_f32 v21, s60, v22")
    a("v_add_u32 v56, 256, v47")
    a("s_mov_b32 s58, 0")
    a(f"s_add_u32 s64, s64, {VOFF}\ns_addc_u32 s65, s65, 0")
    if BATCH: ticket_init()
    if WGT: a("s_mov_b32 s93, 32")
    def pcompute(tag):
        a("v_cmp_lt_f32 vcc, v22, v40")
        a(f"s_cbranch_vccnz L_rare{tag}")
        a(f"L_back{tag}:")
        a("v_fma_f32 v41, v40, s60, -v21")
        a("v_exp_f32 v41, v41")
        a("s_nop 0")
        a("v_add_f32 v20, v20, v41")
        a("v_cvt_pk_bf16_f32 v42, v41, v41")
        if HILO:
            a("v_and_b32 v43, 0xffff0000, v42")
            a("v_sub_f32 v43, v41, v43")
            a("v_cvt_pk_bf16_f32 v43, v43, v43")
            a("v_cndmask_b32 v42, v42, v43, s[54:55]")
        a.nop(2)
    def prepB(j):
        b = 48 + 4 * (j & 1)
        if HILO:
            y = 44 + (j & 1)
            a(f"v_mov_b32_dpp v{y}, v42 row_newbcast:{2*j} row_mask:0xf bank_mask:0x3")
            a(f"v_mov_b32_dpp v{y}, v42 row_newbcast:{2*j+1} row_mask:0xf bank_mask:0xc")
            for w in range(4): a(f"v_and_b32 v{b+w}, v{y}, v{12+w}")
        else:
            for w in range(4):
                a(f"v_and_b32_dpp v{b+w}, v42, v{12+w} row_newbcast:{2*j} row_mask:0xf bank_mask:0xf")
    def progstamp():
        if PROG:
            a("s_memrealtime s[86:87]\ns_waitcnt lgkmcnt(0)\ns_mov_b32 m0, s58\ns_nop 0\nv_writelane_b32 v129, s86, m0")
    def allow_v(lbl):
        a("s_cmp_ge_u32 s93, 126")
        a(f"s_cbranch_scc1 {lbl}")
    a("L_vtile:")
    a(f"s_waitcnt lgkmcnt(0)")
    progstamp()
    a("s_add_u32 s58, s58, 1")
    a("s_lshl_b32 s30, s58, 2")
    a("s_add_u32 s30, s30, s56")
    a("v_mov_b32 v40, v58")
    if DYN:
        if WGT:
            a("s_mov_b32 s62, s30")
            a(f"s_cmp_eq_u32 s58, {NV-1}")
            a("s_cbranch_scc0 L_vf")
            wg_first()
            a("L_vf:")
            a(f"s_cmp_lt_u32 s58, {NV}")
            a("s_cbranch_scc1 L_vstat")
            wg_ticket("vs", allow_v)
            tile_of("s91", "s62")
            a("L_vstat:")
        elif BATCH:
            a("s_mov_b32 s62, s30")
            a(f"s_cmp_eq_u32 s58, {NV-2}")
            a("s_cbranch_scc0 L_vf")
            ticket_first()
            a("L_vf:")
            a(f"s_cmp_lt_u32 s58, {NV}")
            a("s_cbranch_scc1 L_vstat")
            ticket_top("vs", THR)
            a("s_mov_b32 s91, s90")
            tile_of("s91", "s62")
            a("L_vstat:")
        else:
            a("s_mov_b32 s92, s30")
            a("s_mov_b32 s91, s59")
            if FAKE: fake_n("s91")
            tile_of("s91", "s62")
            a(f"s_cmp_lt_u32 s58, {NV}")
            a("s_cselect_b32 s62, s92, s62")
            if RQ < 0:
                a(f"s_cmp_lt_u32 s58, {NV-1}")
                a("s_cbranch_scc1 L_vnorq")
                a("s_mov_b32 s59, 1")
                a("s_atomic_add s59, s[64:65], 0 glc")
                a("L_vnorq:")
        a("s_lshl_b32 s83, s91, 7")
        a("s_add_u32 s83, s83, s84")
        a(f"s_cmp_lt_u32 s58, {NV}")
        a("s_cselect_b32 s83, 0x7f000000, s83")
        if NOSL: a("s_mov_b32 s83, 0x7f000000")
        a(f"buffer_load_dwordx2 v[60:61], v57, s[44:47], s83 offen {SLF}")
    else:
        a(f"s_cmp_lt_u32 s58, {NV}")
        a("s_cselect_b32 s62, s30, 1024")
    a("ds_read_b32 v58, v56")
    a("v_add_u32 v56, 256, v56")
    a("s_lshl_b32 s63, s62, 13")
    a("v_add_u32 v7, s63, v4\nv_add_u32 v46, 4096, v7")
    pcompute("s")
    prepB(0)
    for j in range(8):
        if j < 7: prepB(j + 1)
        else: a.nop(1)
        n = (W if j < W else W - 1) if DYN else W - 1
        a(f"s_waitcnt vmcnt({n})")
        b = 48 + 4 * (j & 1); sl = SL + 4 * j
        a(f"v_mfma_f32_16x16x32_bf16 v[16:19], v[{sl}:{sl+3}], v[{b}:{b+3}], v[16:19]")
        issue_after(j, "s[36:39]", "s[36:39]")
        if DYN and j == RQ and not BATCH and not WGT:
            a(f"s_cmp_lt_u32 s58, {NV-1}")
            a("s_cbranch_scc1 L_vnorq")
            a("s_mov_b32 s59, 1")
            a("s_atomic_add s59, s[64:65], 0 glc")
            a("L_vnorq:")
    a("v_mov_b32 v5, v7\nv_mov_b32 v6, v46")
    a(f"s_cmp_lt_u32 s58, {NV}")
    a("s_cbranch_scc1 L_vtile")
    if DYN:
        a("s_mov_b32 s82, s83")
        a("s_cmp_lt_u32 s62, 1024")
        a("s_cbranch_scc0 L_vend")
        def dyntile(tag, X, Y, SX, SY, other):
            a(f"L_vd{tag}:")
            a(f"s_waitcnt vmcnt({8 if BURST else W})" + ("" if (BATCH or WGT) else " lgkmcnt(0)"))
            progstamp()
            if BATCH:
                ticket_top("v" + tag, THR)
                a("s_mov_b32 s91, s90")
            a("s_add_u32 s58, s58, 1")
            if WGT: wg_ticket("v" + tag, allow_v)
            elif not BATCH: a("s_mov_b32 s91, s59")
            if FAKE: fake_n("s91")
            tile_of("s91", "s62")
            a(f"v_lshlrev_b32 v40, v59, v{SX}")
            a(f"v_cmp_ne_u32 vcc, s6, v{SX+1}")
            a("v_and_b32 v40, 0xffff0000, v40")
            if not NOPUB and not NOSL: a(f"s_cbranch_vccnz L_retry{tag}")
            a(f"L_retry_back{tag}:")
            a("s_lshl_b32 s63, s62, 13")
            a(f"s_lshl_b32 s83, s91, 7")
            a("s_add_u32 s83, s83, s84")
            if RQ < 0 and not BATCH and not WGT:
                a("s_cmp_lt_u32 s62, 1024")
                a(f"s_cbranch_scc0 L_vdnorq{tag}")
                a("s_mov_b32 s59, 1")
                a("s_atomic_add s59, s[64:65], 0 glc")
                a(f"L_vdnorq{tag}:")
            a("v_add_u32 v7, s63, v4\nv_add_u32 v46, 4096, v7")
            if NOSL: a("s_mov_b32 s83, 0x7f000000")
            a(f"buffer_load_dwordx2 v[{SY}:{SY+1}], v57, s[44:47], s83 offen {SLF}")
            def ld(j, base):
                a(f"buffer_load_dwordx4 v[{base+4*j}:{base+4*j+3}], v{7 if j < 4 else 46}, s[36:39], 0 offen offset:{(j & 3) * 1024} {NT}")
            if BURST:
                for j in range(8): ld(j, Y)
            pcompute(tag)
            prepB(0)
            for j in range(8):
                if j < 7: prepB(j + 1)
                else: a.nop(1)
                a(f"s_waitcnt vmcnt({16 - j if BURST else (W if j < W else W - 1)})")
                b = 48 + 4 * (j & 1); sl = X + 4 * j
                a(f"v_mfma_f32_16x16x32_bf16 v[16:19], v[{sl}:{sl+3}], v[{b}:{b+3}], v[16:19]")
                if not BURST: issue_after(j, "s[36:39]", "s[36:39]")
                if j == RQ and not BATCH and not WGT:
                    a("s_cmp_lt_u32 s62, 1024")
                    a(f"s_cbranch_scc0 L_vdnorq{tag}")
                    a("s_mov_b32 s59, 1")
                    a("s_atomic_add s59, s[64:65], 0 glc")
                    a(f"L_vdnorq{tag}:")
            a("s_mov_b32 s82, s83")
            if not BURST: a("v_mov_b32 v5, v7\nv_mov_b32 v6, v46")
            a("s_cmp_lt_u32 s62, 1024")
            if other is None:
                a("s_cbranch_scc0 L_vend")
            else:
                a(f"s_cbranch_scc1 L_vd{other}")
        if BURST:
            dyntile("a", SL, SL + 32, 60, 62, None)
            dyntile("b", SL + 32, SL, 62, 60, "a")
        else:
            dyntile("a", SL, SL, 60, 62, None)
            dyntile("b", SL, SL, 62, 60, "a")
        a("L_vend:")
    stamp(3)
    allreduce("v_add_f32", 20, 27)
    a("v_mul_f32 v23, 0.5, v20")
    if HILO:
        for r in range(4):
            a(f"v_add_f32_dpp v{16+r}, v{16+r}, v{16+r} row_ror:8 row_mask:0xf bank_mask:0xf")
    a("s_mov_b32 s52, 0xff00ff00\ns_mov_b32 s53, 0xff00ff00")
    a("v_lshl_add_u32 v26, v2, 5, v3")
    a("v_lshlrev_b32 v26, 2, v26")
    a(f"s_lshl_b32 s30, s3, 9")
    a("v_add_u32 v26, s30, v26")
    a("v_cndmask_b32 v24, v16, v17, s[52:53]")
    a("v_cndmask_b32 v25, v18, v19, s[52:53]")
    a("s_lshl_b32 s30, s3, 3")
    a("v_mov_b32 v27, s30")
    a(f"ds_write_b32 v26, v24 offset:{L_O}")
    a(f"ds_write_b32 v26, v25 offset:{L_O + 64}")
    a("s_mov_b64 exec, 1")
    a(f"ds_write_b64 v27, v[22:23] offset:{L_ML}")
    a("s_mov_b64 exec, -1")
    a("s_waitcnt lgkmcnt(0)")
    a("s_barrier")
    stamp(4)
    if PROG:
        a("s_waitcnt vmcnt(0)")
        a("s_lshl_b32 s30, s2, 3\ns_add_u32 s30, s30, s3\ns_lshl_b32 s30, s30, 9")
        a(f"s_add_u32 s30, s30, {TS + 0x100000}")
        a("v_lshl_add_u32 v62, v0, 2, s30")
        a("buffer_store_dword v128, v62, s[44:47], 0 offen")
        a("buffer_store_dword v129, v62, s[44:47], 0 offen offset:256")
        a("s_mov_b32 s72, s58")
    stamp_store(6)
    a("s_endpgm")
    for tag in (["s", "a", "b"] if DYN else ["s"]):
        a(f"L_rare{tag}:")
        a("v_mov_b32 v41, v40")
        for n in (8, 4, 2):
            a.nop(2)
            a(f"v_max_f32_dpp v41, v41, v41 row_ror:{n} row_mask:0xf bank_mask:0xf")
        a.nop(2)
        a("v_max_f32_dpp v41, v41, v41 row_bcast:15 row_mask:0xa bank_mask:0xf")
        a.nop(2)
        a("v_max_f32_dpp v41, v41, v41 row_bcast:31 row_mask:0xc bank_mask:0xf")
        a.nop(1)
        a("v_readlane_b32 s30, v41, 63")
        a.nop(2)
        a("v_mov_b32 v22, s30")
        a("v_mul_f32 v42, s60, v22")
        a("v_sub_f32 v43, v21, v42")
        a("v_exp_f32 v43, v43")
        a("v_mov_b32 v21, v42")
        for r in (16, 17, 18, 19, 20):
            a(f"v_mul_f32 v{r}, v{r}, v43")
        a(f"s_branch L_back{tag}")
    if DYN:
        for tag, SX in (("a", 60), ("b", 62)):
            a(f"L_retry{tag}:")
            a("s_mov_b32 s49, 0")
            a(f"L_retry_loop{tag}:")
            a(f"buffer_load_dwordx2 v[{SX}:{SX+1}], v57, s[44:47], s82 offen sc1")
            a("s_waitcnt vmcnt(0)")
            a(f"v_cmp_ne_u32 vcc, s6, v{SX+1}")
            a(f"s_cbranch_vccz L_retry_done{tag}")
            a("s_add_u32 s49, s49, 1")
            a("s_sleep 2")
            a(f"s_cmp_lt_u32 s49, {POLLMAX}")
            a(f"s_cbranch_scc1 L_retry_loop{tag}")
            if dbg: a("v_mov_b32 v41, 6\nv_mov_b32 v42, 24\nglobal_atomic_or v42, v41, s[26:27]")
            a(f"L_retry_done{tag}:")
            a(f"v_lshlrev_b32 v40, v59, v{SX}")
            a("v_and_b32 v40, 0xffff0000, v40")
            a(f"s_branch L_retry_back{tag}")

    a("L_helperA:")
    if SD: stamp(1)
    T0[0] = 60
    WB = 64
    if DYN:
        a(f"""
        s_cmp_eq_u32 s5, 0
        s_cbranch_scc0 L_nozero
        s_mul_i32 s30, s4, {CSTR}
        s_add_u32 s30, s30, {CNT if CBASE is None else CBASE}
        v_mul_u32_u24 v4, {VOFF}, v0
        v_add_u32 v4, s30, v4
        v_mov_b32 v5, 0
        s_mov_b64 exec, 3
        buffer_store_dword v5, v4, s[44:47], 0 offen sc1
        s_mov_b64 exec, -1
        L_nozero:
        v_lshlrev_b32 v4, 3, v0
        v_mov_b32 v6, -1
        v_mov_b32 v7, -1
        ds_write_b64 v4, v[6:7] offset:{L_ID}
        v_mov_b32 v6, 0
        v_mov_b32 v7, 0
        ds_write_b64 v4, v[6:7] offset:{L_TQ}
        """)
    a(f"v_mov_b32 v4, {L_FLAG}\nv_mov_b32 v6, 0\nv_mov_b32 v7, 0\nds_write_b64 v4, v[6:7]")
    a("s_mul_i32 s48, s5, 72")
    ln_loads(48)
    a(f"""
    s_mov_b32 s36, s14
    s_mov_b32 s37, s15
    s_mov_b32 s38, {576*8192}
    s_mov_b32 s39, 0x20000
    v_add_u32 v23, s48, v2
    v_lshlrev_b32 v23, 13, v23
    v_lshl_add_u32 v23, v3, 4, v23
    s_lshl_b32 s30, s4, 8
    v_add_u32 v23, s30, v23
    """)
    for j in range(18):
        a(f"s_mov_b32 s31, {j*32768}")
        a(f"buffer_load_dwordx4 v[{WB+4*j}:{WB+4*j+3}], v23, s[36:39], s31 offen {NT}")
    if B0 or ORD3: a("s_waitcnt lgkmcnt(0)\ns_barrier")
    make_masks(20, 21)
    a("s_waitcnt vmcnt(18)")
    if ORD2: a("s_barrier")
    if SD: stamp(2)
    ln_compute()
    if SD: stamp(3)
    job4(WB, 18, 0)
    a(f"s_waitcnt lgkmcnt(0)")
    make_tag()
    a(f"""
    v_lshlrev_b32 v24, 4, v0
    s_lshl_b32 s30, s2, 10
    s_add_u32 s30, s30, {QG}
    v_add_u32 v24, s30, v24
    v_mov_b32 v21, s6
    v_mov_b32 v23, s6
    buffer_store_dwordx4 v[20:23], v24, s[44:47], 0 offen {QSF}
    """)
    stamp(4 if SD else 1)
    def wo_loads():
        a(f"""
        s_mov_b32 s36, s16
        s_mov_b32 s37, s17
        s_mov_b32 s38, {4096*1152}
        s_mov_b32 s39, 0x20000
        v_lshrrev_b32 v58, 3, v3
        v_lshl_add_u32 v58, v2, 1, v58
        s_lshl_b32 s30, s2, 4
        v_add_u32 v58, s30, v58
        s_movk_i32 s31, 1152
        v_mul_lo_u32 v58, v58, s31
        v_and_b32 v59, 7, v3
        v_lshl_add_u32 v58, v59, 4, v58
        v_add_u32 v59, 9216, v58
        """)
        for bb in range(2):
            for blk in range(9):
                j = bb * 9 + blk
                a(f"buffer_load_dwordx4 v[{WB+4*j}:{WB+4*j+3}], v{58+bb}, s[36:39], 0 offen offset:{blk*128} {NT}")
    if not WOLATE and not WOG: wo_loads()
    a(f"""
    s_lshl_b32 s30, s4, 13
    s_add_u32 s30, s30, {QG}
    v_lshlrev_b32 v4, 4, v0
    v_add_u32 v4, s30, v4
    v_add_u32 v5, 4096, v4
    """)
    def qloads():
        for p in range(8):
            a(f"buffer_load_dwordx4 v[{24+4*p}:{24+4*p+3}], v{4 + (p >> 2)}, s[44:47], 0 offen offset:{(p & 3) * 1024} {QLF}")
    if WOG:
        if ORD3 and ACKW: a("s_waitcnt vmcnt(0)")
        qloads()
        if ORD2 or ORD3: a("s_barrier")
        wo_loads()
        a("s_mov_b32 s49, 0")
        a("s_waitcnt vmcnt(18)")
        if SD: stamp(5)
        a("s_branch L_q_chk")
        a("L_q_poll:")
        qloads()
        a("s_waitcnt vmcnt(0)")
        a("L_q_chk:")
    else:
        poll_begin("q")
        qloads()
        a("s_waitcnt vmcnt(0)")
    tagcheck(6, [24 + 4*p + o for p in range(8) for o in (1, 3)])
    poll_end("q", 6, code=1)
    for o in (0, 2):
        a(f"v_add_f32 v{24+o}, v{24+o}, v{28+o}")
        a(f"v_add_f32 v{32+o}, v{32+o}, v{36+o}")
        a(f"v_add_f32 v{40+o}, v{40+o}, v{44+o}")
        a(f"v_add_f32 v{48+o}, v{48+o}, v{52+o}")
        a(f"v_add_f32 v{24+o}, v{24+o}, v{32+o}")
        a(f"v_add_f32 v{40+o}, v{40+o}, v{48+o}")
        a(f"v_add_f32 v{24+o}, v{24+o}, v{40+o}")
    a("v_cvt_pk_bf16_f32 v24, v24, v26")
    a("v_and_b32 v25, 8, v3\nv_add_u32 v25, v25, v3\nv_lshl_add_u32 v25, v2, 5, v25\nv_lshlrev_b32 v25, 1, v25")
    a(f"ds_write_b16 v25, v24 offset:{L_Q}")
    a(f"ds_write_b16_d16_hi v25, v24 offset:{L_Q + 16}")
    a("s_waitcnt lgkmcnt(0)")
    if QF: a(f"v_mov_b32 v25, {L_QF}\nv_mov_b32 v26, 1\nds_write_b32 v25, v26")
    if not SD: stamp(2)
    if not QF: a("s_barrier")
    if WOLATE and not WOG: wo_loads()
    if TLB:
        a(f"""
        s_lshl_b32 s30, s4, 23
        s_add_u32 s32, s10, s30
        s_addc_u32 s33, s11, 0
        s_mov_b32 s34, 0x800000
        s_mov_b32 s35, 0x20000
        s_add_u32 s40, s12, s30
        s_addc_u32 s41, s13, 0
        s_mov_b32 s42, 0x800000
        s_mov_b32 s43, 0x20000
        s_mul_i32 s31, s5, {4*NV*8192}
        v_lshlrev_b32 v4, {TLB}, v0
        s_mul_i32 s30, s2, 0x1500
        s_and_b32 s30, s30, 0x7f00
        v_mul_u32_u24 v5, 0x1100, v0
        v_add_u32 v5, s30, v5
        v_and_b32 v5, 0x7f00, v5
        v_add_u32 v4, v4, v5
        v_add_u32 v5, s31, v4
        v_mov_b32 v7, 0x7f000000
        v_cmp_gt_u32 vcc, {4*NV*8192}, v4
        v_add_u32 v6, {POOL0*8192}, v4
        s_nop 0
        v_cndmask_b32 v5, v7, v5, vcc
        buffer_load_dword v196, v5, s[40:43], 0 offen {NT}
        buffer_load_dword v197, v6, s[40:43], 0 offen {NT}
        buffer_load_dword v198, v6, s[32:35], 0 offen {NT}
        """)
    AB = 140; PR = 176
    job8_zero(AB)
    for t in range(3): a(f"v_mov_b32 v{PR+4*t+3}, s6")
    job8_addr(YA, 20)
    a(f"""
    v_lshrrev_b32 v56, 3, v3
    v_lshl_add_u32 v56, v2, 1, v56
    v_lshl_add_u32 v56, v2, 4, v56
    v_lshlrev_b32 v56, 2, v56
    v_add_u32 v57, 32, v56
    s_mov_b32 s60, {LOG2E:#x}
    """)
    if DYN and not NOPUB:
        wait_kdone("ha", 4)
        a(f"""
        v_lshrrev_b32 v4, 3, v0
        v_and_b32 v4, 3, v4                  ; w
        s_movk_i32 s30, {SSTR}
        v_mul_lo_u32 v5, v4, s30
        v_lshrrev_b32 v6, 5, v0
        v_lshl_add_u32 v5, v6, 8, v5
        v_and_b32 v7, 7, v0
        v_lshl_add_u32 v5, v7, 3, v5         ; LDS score address (minus L_S + NV*256)
        v_lshlrev_b32 v4, 7, v4
        v_lshl_add_u32 v4, v6, 2, v4         ; LDS id address (minus L_ID)
        v_lshlrev_b32 v7, 4, v7              ; j*16
        s_mul_i32 s30, s4, {NPOOL*128}
        s_add_u32 s30, s30, {SG}
        v_add_u32 v7, s30, v7
        v_mov_b32 v9, 0x7f000000
        s_mov_b32 s62, 0x07060302
        v_mov_b32 v25, s6
        v_mov_b32 v27, s6
        s_mov_b32 s49, 0
        L_pub:
        ds_read_b32 v8, v4 offset:{L_ID}
        ds_read_b32 v28, v5 offset:{L_S + NV*256}
        ds_read_b32 v29, v5 offset:{L_S + NV*256 + 64}
        ds_read_b32 v30, v5 offset:{L_S + NV*256 + 128}
        ds_read_b32 v31, v5 offset:{L_S + NV*256 + 192}
        s_waitcnt lgkmcnt(0)
        v_cmp_gt_u32 vcc, {NPOOL}, v8
        s_cbranch_vccz L_pub_done
        v_lshl_add_u32 v6, v8, 7, v7
        v_perm_b32 v24, v29, v28, s62
        v_perm_b32 v26, v31, v30, s62
        v_cndmask_b32 v6, v9, v6, vcc
        buffer_store_dwordx4 v[24:27], v6, s[44:47], 0 offen {PUBF}
        v_add_u32 v4, 8, v4
        v_add_u32 v5, 512, v5
        s_add_u32 s49, s49, 1
        s_waitcnt vmcnt(0)
        s_cmp_lt_u32 s49, {MAXD//2}
        s_cbranch_scc1 L_pub
        L_pub_done:
        """)
    a(f"""
    s_lshl_b32 s30, s2, 11
    s_add_u32 s30, s30, {AG}
    v_lshlrev_b32 v10, 4, v0
    v_add_u32 v10, s30, v10
    v_mov_b32 v11, s30
    s_lshl_b32 s30, s4, 14
    s_add_u32 s30, s30, {AG}
    v_lshlrev_b32 v4, 11, v2
    v_add_u32 v4, s30, v4
    v_add_u32 v5, 8192, v4
    s_lshl_b32 s31, s5, 7
    v_lshl_add_u32 v6, v3, 3, s31
    v_add_u32 v7, v5, v6
    v_add_u32 v6, v4, v6
    v_mov_b32 v8, 0
    v_lshlrev_b32 v9, 3, v0
    v_mov_b32 v41, s6
    v_mov_b32 v43, s6
    v_mov_b32 v45, s6
    v_mov_b32 v47, s6
    s_waitcnt vmcnt(0)
    """)
    a("s_barrier")
    if not SD: stamp(3)
    a(f"""
    ds_read_b128 v[24:27], v8 offset:{L_ML}
    ds_read_b128 v[28:31], v8 offset:{L_ML + 16}
    ds_read_b64 v[32:33], v9 offset:{L_O}
    ds_read_b64 v[34:35], v9 offset:{L_O + 512}
    ds_read_b64 v[36:37], v9 offset:{L_O + 1024}
    ds_read_b64 v[38:39], v9 offset:{L_O + 1536}
    s_waitcnt lgkmcnt(4)
    v_max_f32 v40, v24, v26
    v_max3_f32 v40, v40, v28, v30
    v_sub_f32 v24, v24, v40
    v_sub_f32 v26, v26, v40
    v_sub_f32 v28, v28, v40
    v_sub_f32 v30, v30, v40
    v_mul_f32 v24, s60, v24
    v_mul_f32 v26, s60, v26
    v_mul_f32 v28, s60, v28
    v_mul_f32 v30, s60, v30
    v_exp_f32 v24, v24
    v_exp_f32 v26, v26
    v_exp_f32 v28, v28
    v_exp_f32 v30, v30
    s_waitcnt lgkmcnt(0)
    v_mul_f32 v42, v24, v25
    v_mul_f32 v44, v24, v32
    v_mul_f32 v46, v24, v33
    v_fmac_f32 v42, v26, v27
    v_fmac_f32 v44, v26, v34
    v_fmac_f32 v46, v26, v35
    v_fmac_f32 v42, v28, v29
    v_fmac_f32 v44, v28, v36
    v_fmac_f32 v46, v28, v37
    v_fmac_f32 v42, v30, v31
    v_fmac_f32 v44, v30, v38
    v_fmac_f32 v46, v30, v39
    buffer_store_dwordx4 v[44:47], v10, s[44:47], 0 offen {AGF}
    s_mov_b64 exec, 1
    buffer_store_dwordx4 v[40:43], v11, s[44:47], 0 offen offset:1024 {AGF}
    s_mov_b64 exec, -1
    """)
    poll_begin("ag")
    a(f"""
    buffer_load_dwordx2 v[24:25], v6, s[44:47], 0 offen {AGF}
    buffer_load_dwordx2 v[26:27], v7, s[44:47], 0 offen {AGF}
    buffer_load_dwordx4 v[28:31], v4, s[44:47], 0 offen offset:1024 {AGF}
    buffer_load_dwordx4 v[32:35], v5, s[44:47], 0 offen offset:1024 {AGF}
    s_waitcnt vmcnt(0)
    """)
    tagcheck(8, [25, 27, 29, 31, 33, 35])
    poll_end("ag", 8, code=2)
    if not SD: stamp(4)
    a("v_max_f32 v36, v28, v32")
    allreduce("v_max_f32", 36, 37, rors=())
    a(f"""
    v_sub_f32 v28, v28, v36
    v_sub_f32 v32, v32, v36
    v_mul_f32 v28, s60, v28
    v_mul_f32 v32, s60, v32
    v_exp_f32 v28, v28
    v_exp_f32 v32, v32
    s_nop 0
    v_mul_f32 v38, v28, v30
    v_mul_f32 v39, v28, v24
    v_fmac_f32 v38, v32, v34
    v_fmac_f32 v39, v32, v26
    v_mov_b32 v36, v38
    v_mov_b32 v37, v39
    s_nop 0
    v_permlane16_swap_b32 v38, v36
    v_permlane16_swap_b32 v39, v37
    v_add_f32 v38, v38, v36
    v_add_f32 v39, v39, v37
    v_mov_b32 v36, v38
    v_mov_b32 v37, v39
    s_nop 0
    v_permlane32_swap_b32 v38, v36
    v_permlane32_swap_b32 v39, v37
    v_add_f32 v38, v38, v36
    v_add_f32 v39, v39, v37
    v_rcp_f32 v40, v38
    s_nop 0
    """)
    div_refined(41, 39, 38, 40, 37)
    a("v_cvt_pk_bf16_f32 v41, v41, v41")
    a(f"""
    ds_bpermute_b32 v44, v56, v41
    ds_bpermute_b32 v45, v57, v41
    s_waitcnt lgkmcnt(0)
    """)
    job8(WB, 2, [44, 45], AB)
    job8_publish(AB, PR, 20, YAF)
    if not SD: stamp(5)
    stamp_store(6)
    a("s_endpgm")

    a("L_helperB:")
    if ORD2: a("s_barrier\ns_barrier")
    if ORD3: a("s_barrier")
    T0[0] = 46
    W1B = 52; W2B = 148
    a(f"""
    s_mul_i32 s50, s2, 43691
    s_lshr_b32 s50, s50, 18
    s_mul_i32 s30, s50, 6
    s_sub_u32 s51, s2, s30           ; rs
    s_mul_i32 s48, s51, 96
    """)
    ln_loads(48)
    a(f"""
    s_mov_b32 s36, s20
    s_mov_b32 s37, s21
    s_mov_b32 s38, {576*9216}
    s_mov_b32 s39, 0x20000
    v_add_u32 v23, s48, v2
    s_movk_i32 s31, 9216
    v_mul_lo_u32 v23, v23, s31
    v_lshl_add_u32 v23, v3, 4, v23
    s_lshl_b32 s30, s50, 8
    v_add_u32 v23, s30, v23
    s_cmp_lt_u32 s2, 216
    s_cbranch_scc1 L_hasw1
    v_mov_b32 v23, 0x7f000000
    L_hasw1:
    """)
    if B0: a("s_barrier")
    for j in range(24):
        a(f"s_mov_b32 s31, {j*36864}")
        a(f"buffer_load_dwordx4 v[{W1B+4*j}:{W1B+4*j+3}], v23, s[36:39], s31 offen {NT}")
    def w2_loads():
        a(f"""
        s_mul_i32 s86, s2, 9
        s_lshr_b32 s87, s86, 2           ; b0
        s_add_u32 s86, s86, 9
        s_lshr_b32 s86, s86, 2
        s_sub_u32 s86, s86, s87          ; cnt
        s_mov_b32 s40, s22
        s_mov_b32 s41, s23
        s_mov_b32 s42, {4608*1152}
        s_mov_b32 s43, 0x20000
        v_lshrrev_b32 v40, 3, v3
        v_lshl_add_u32 v40, v2, 1, v40
        s_lshl_b32 s30, s87, 3
        v_add_u32 v40, s30, v40
        s_movk_i32 s31, 1152
        v_mul_lo_u32 v40, v40, s31
        v_and_b32 v41, 7, v3
        v_lshl_add_u32 v40, v41, 4, v40
        v_add_u32 v41, 9216, v40
        v_add_u32 v42, 18432, v40
        s_cmp_eq_u32 s86, 3
        s_cbranch_scc1 L_cnt3
        v_mov_b32 v42, 0x7f000000
        L_cnt3:
        """)
        for bb in range(3):
            for blk in range(9):
                j = bb * 9 + blk
                a(f"buffer_load_dwordx4 v[{W2B+4*j}:{W2B+4*j+3}], v{40+bb}, s[40:43], 0 offen offset:{blk*128} {NT}")
    if ORD3: a("s_barrier")
    if W2EARLY: w2_loads()
    make_masks(20, 21)
    if not QF: a("s_barrier")
    if NOFFN: a("s_waitcnt vmcnt(0) lgkmcnt(0)"); make_tag(); a("s_branch L_ffn_done")
    nyo = 27 if W2EARLY else 0
    a(f"s_waitcnt vmcnt({24 + nyo})")
    ln_compute()
    job4(W1B, 24, nyo)
    a(f"s_waitcnt lgkmcnt(0)")
    make_tag()
    a(f"""
    v_lshlrev_b32 v24, 4, v0
    s_mul_i32 s30, s51, {4608*8}
    s_lshl_b32 s31, s50, 10
    s_add_u32 s30, s30, s31
    s_add_u32 s30, s30, {HG}
    v_add_u32 v24, s30, v24
    v_mov_b32 v21, s6
    v_mov_b32 v23, s6
    s_cmp_lt_u32 s2, 216
    s_cbranch_scc0 L_nopubh
    buffer_store_dwordx4 v[20:23], v24, s[44:47], 0 offen {HF}
    L_nopubh:
    """)
    stamp(1)
    if not W2EARLY: w2_loads()
    a(f"""
    v_lshrrev_b32 v4, 5, v0
    s_mov_b32 s31, {4608*8}
    v_mul_lo_u32 v4, v4, s31
    v_and_b32 v5, 31, v0
    s_lshl_b32 s30, s86, 3
    v_cmp_gt_u32 s[54:55], s30, v5
    s_lshl_b32 s30, s87, 3
    v_add_u32 v5, s30, v5
    v_lshrrev_b32 v6, 4, v5
    v_lshlrev_b32 v6, 3, v6                 ; *8 lanes
    v_and_b32 v7, 7, v5
    v_add_u32 v6, v6, v7
    v_lshlrev_b32 v6, 4, v6
    v_bfe_u32 v7, v5, 3, 1
    v_lshl_add_u32 v6, v7, 3, v6
    v_add_u32 v4, v4, v6
    v_add_u32 v4, {HG}, v4
    v_add_u32 v5, {2*4608*8}, v4
    v_add_u32 v6, {4*4608*8}, v4
    """)
    AB = 52; PR = 88
    job8_zero(AB)
    for t in range(3): a(f"v_mov_b32 v{PR+4*t+3}, s6")
    job8_addr(YB, 20)
    if HLATE: wait_kdone("hb", 40)
    poll_begin("h")
    a(f"""
    buffer_load_dwordx2 v[28:29], v4, s[44:47], 0 offen {HF}
    buffer_load_dwordx2 v[30:31], v5, s[44:47], 0 offen {HF}
    buffer_load_dwordx2 v[32:33], v6, s[44:47], 0 offen {HF}
    s_waitcnt vmcnt(0)
    """)
    tagcheck(8, [29, 31, 33])
    a("v_cndmask_b32 v8, 0, v8, s[54:55]")
    poll_end("h", 8, sleep=HSLEEP, code=3)
    a(f"""
    v_add_f32 v28, v28, v30
    v_add_f32 v28, v28, v32
    v_cndmask_b32 v28, 0, v28, s[54:55]
    v_mov_b32 v29, v28
    s_nop 1
    v_permlane32_swap_b32 v28, v29
    v_add_f32 v28, v28, v29
    """)
    to_bf16f(28, 28)
    a(f"""
    s_mov_b32 s60, {LOG2E:#x}
    v_mul_f32 v29, s60, v28
    v_exp_f32 v29, -v29
    s_nop 0
    v_add_f32 v29, 1.0, v29
    v_rcp_f32 v30, v29
    s_nop 0
    v_mul_f32 v31, v28, v30
    v_cvt_pk_bf16_f32 v31, v31, v31
    v_lshrrev_b32 v32, 3, v3
    v_lshl_add_u32 v32, v2, 1, v32
    v_lshlrev_b32 v32, 2, v32
    v_add_u32 v33, 32, v32
    v_add_u32 v34, 64, v32
    ds_bpermute_b32 v36, v32, v31
    ds_bpermute_b32 v37, v33, v31
    ds_bpermute_b32 v38, v34, v31
    s_waitcnt lgkmcnt(0)
    """)
    job8(W2B, 3, [36, 37, 38], AB)
    job8_finish(AB, PR)
    if NOFFN: a("L_ffn_done:"); [a(f"v_mov_b32 v{PR+4*t+3}, s6") for t in range(3)]; job8_addr(YB, 20)
    stamp(2)
    GB = 148
    def yaddr(base):
        a(f"""
        s_lshl_b32 s30, s2, 14
        s_add_u32 s30, s30, {base}
        v_lshlrev_b32 v4, 4, v0
        v_add_u32 v4, s30, v4
        v_add_u32 v5, 4096, v4
        v_add_u32 v6, 8192, v4
        v_add_u32 v7, 12288, v4
        """)
    def ygather(name, code, sleep, fl='sc1'):
        poll_begin(name)
        for i in range(16):
            a(f"buffer_load_dwordx4 v[{GB+4*i}:{GB+4*i+3}], v{4 + (i >> 2)}, s[44:47], 0 offen offset:{(i & 3)*1024} {fl}")
        a("s_waitcnt vmcnt(0)")
        tagcheck(8, [GB + 4*i + 3 for i in range(16)])
        poll_end(name, 8, sleep=sleep, code=code)
    def ysum(d):
        st = 1
        while st < 16:
            for i in range(0, 16, 2 * st):
                for o in range(3):
                    a(f"v_add_f32 v{GB+4*i+o}, v{GB+4*i+o}, v{GB+4*(i+st)+o}")
            st *= 2
        R = [GB, GB + 1, GB + 2]; Tm = [GB + 4, GB + 5, GB + 6]
        for n in (4, 8):
            for x in R: a(f"v_add_f32_dpp v{x}, v{x}, v{x} row_ror:{n} row_mask:0xf bank_mask:0xf")
        for sw in ("16", "32"):
            for x, t in zip(R, Tm): a(f"v_mov_b32 v{t}, v{x}")
            for x, t in zip(R, Tm): a(f"v_permlane{sw}_swap_b32 v{x}, v{t}")
            for x, t in zip(R, Tm): a(f"v_add_f32 v{x}, v{x}, v{t}")
        for k, x in enumerate(R): a(f"v_cvt_pk_bf16_f32 v{d+k}, v{x}, v{x}")
        for k in range(3): a(f"v_and_b32 v{d+k}, 0xffff0000, v{d+k}")
    a(f"""
    s_mov_b32 s32, s8
    s_mov_b32 s33, s9
    s_mov_b32 s34, 1152
    s_mov_b32 s35, 0x20000
    s_lshr_b32 s30, s2, 4
    s_mul_i32 s30, s30, 192
    s_and_b32 s31, s2, 15
    s_lshl_b32 s31, s31, 2
    s_add_u32 s30, s30, s31
    v_and_b32 v10, 3, v0
    v_add_u32 v10, s30, v10
    v_lshlrev_b32 v10, 1, v10
    buffer_load_ushort v12, v10, s[32:35], 0 offen
    buffer_load_ushort v13, v10, s[32:35], 0 offen offset:128
    buffer_load_ushort v14, v10, s[32:35], 0 offen offset:256
    s_mov_b32 s36, s24
    s_mov_b32 s37, s25
    s_mov_b32 s38, 1152
    s_mov_b32 s39, 0x20000
    """)
    yaddr(YB)
    a("s_waitcnt vmcnt(0)")
    a("v_lshlrev_b32 v12, 16, v12\nv_lshlrev_b32 v13, 16, v13\nv_lshlrev_b32 v14, 16, v14")
    stamp(3)
    a("s_barrier")
    job8_store(PR, 20, YBSF)
    a("s_cmp_lt_u32 s2, 48")
    a("s_cbranch_scc0 L_notred2")
    ygather("yb", 4, 2, YBLF)
    ysum(40)
    yaddr(YA)
    ygather("ya", 5, 0, YAF)
    stamp(4)
    ysum(24)
    for k in range(3): a(f"v_add_f32 v{24+k}, v{12+k}, v{24+k}")
    for k in range(3): a(f"v_cvt_pk_bf16_f32 v{24+k}, v{24+k}, v{24+k}")
    for k in range(3): a(f"v_and_b32 v{24+k}, 0xffff0000, v{24+k}")
    for k in range(3): a(f"v_add_f32 v{24+k}, v{24+k}, v{40+k}")
    for k in range(3): a(f"v_cvt_pk_bf16_f32 v{24+k}, v{24+k}, v{24+k}")
    a(f"""
    s_mov_b64 exec, 15
    buffer_store_short v24, v10, s[36:39], 0 offen
    buffer_store_short v25, v10, s[36:39], 0 offen offset:128
    buffer_store_short v26, v10, s[36:39], 0 offen offset:256
    s_mov_b64 exec, -1
    s_cmp_eq_u32 s2, 0
    s_cbranch_scc0 L_notred2
    v_mov_b32 v4, {EPOCH}
    v_mov_b32 v5, s6
    s_mov_b64 exec, 1
    buffer_store_dword v5, v4, s[44:47], 0 offen sc1
    s_mov_b64 exec, -1
    L_notred2:
    """)
    stamp(5)
    stamp_store(6, t=46)
    if AGG:
        a("s_cmp_eq_u32 s2, 0\ns_cbranch_scc0 L_end")
        a("s_mov_b32 s49, 0\nL_aggw:\ns_sleep 64\ns_add_u32 s49, s49, 1\ns_cmp_lt_u32 s49, 40\ns_cbranch_scc1 L_aggw")
        Q = [("all", 0, "min"), ("s", 1, "max"), ("s", 2, "max"), ("s", 5, "min"), ("s", 5, "max"), ("s", 3, "min"), ("s", 3, "max"), ("s", 3, "sum"),
             ("a", 1, "max"), ("a", 4, "max"), ("a", 5, "max"), ("b", 4, "max"), ("b", 5, "max"), ("s", 2, "sum"), ("a", 1, "sum"), ("all", 0, "max")]
        a("v_and_b32 v4, 7, v0")
        a("v_cmp_gt_u32 s[52:53], 4, v4\nv_cmp_eq_u32 s[54:55], 4, v4\nv_cmp_eq_u32 s[56:57], 5, v4\nv_cmp_gt_u32 s[58:59], 6, v4")
        for i, (r, idx, op) in enumerate(Q):
            a(f"v_mov_b32 v{100+i}, {'0x7fffffff' if op == 'min' else ('0x80000000' if op == 'max' else 0)}")
        a(f"v_lshlrev_b32 v5, 6, v0\nv_add_u32 v5, {TS}, v5\ns_mov_b32 s49, 0")
        a("L_agg:")
        a("buffer_load_dwordx4 v[8:11], v5, s[44:47], 0 offen sc1\nbuffer_load_dwordx4 v[12:15], v5, s[44:47], 0 offen offset:16 sc1")
        a("s_lshl_b32 s30, s49, 3\nv_lshrrev_b32 v6, 3, v0\nv_add_u32 v6, s30, v6\nv_cmp_gt_u32 s[60:61], 48, v6\ns_and_b64 s[60:61], s[60:61], s[56:57]")
        a("s_waitcnt vmcnt(0)")
        for k in range(8): a(f"v_subrev_u32 v{8+k}, s70, v{8+k}")
        masks = {"all": "s[58:59]", "s": "s[52:53]", "a": "s[54:55]", "b": "s[60:61]"}
        for i, (r, idx, op) in enumerate(Q):
            neutral = {"min": "0x7fffffff", "max": "0x80000000", "sum": "0"}[op]
            a(f"v_mov_b32 v16, {neutral}")
            a(f"v_cndmask_b32 v16, v16, v{8+idx}, {masks[r]}")
            a({"min": f"v_min_i32 v{100+i}, v{100+i}, v16", "max": f"v_max_i32 v{100+i}, v{100+i}, v16", "sum": f"v_add_u32 v{100+i}, v{100+i}, v16"}[op])
        a("v_add_u32 v5, 4096, v5\ns_add_u32 s49, s49, 1\ns_cmp_lt_u32 s49, 32\ns_cbranch_scc1 L_agg")
        for i, (r, idx, op) in enumerate(Q):
            allreduce({"min": "v_min_i32", "max": "v_max_i32", "sum": "v_add_u32"}[op], 100 + i, 16)
        a("s_mov_b32 s32, s26\ns_mov_b32 s33, s27\ns_mov_b32 s34, 256\ns_mov_b32 s35, 0x20000\nv_mov_b32 v4, 0\ns_mov_b64 exec, 1")
        for i in range(len(Q)): a(f"buffer_store_dword v{100+i}, v4, s[32:35], 0 offen offset:{4*i}")
        a("s_waitcnt vmcnt(0)")
    a("L_end:")
    a("s_endpgm")
    body = a.text()
    txt = f"""{HEADER}; @launch grid=(256,1,1) block=(384,1,1) lds={LDS}
.amdgcn_target "amdgcn-amd-amdhsa--gfx950"
.text
.globl {KN}
.p2align 8
.type {KN},@function
{KN}:
{body}
.section .rodata,"a"
.p2align 6
.amdhsa_kernel {KN}
  .amdhsa_next_free_vgpr 256
  .amdhsa_next_free_sgpr 96
  .amdhsa_accum_offset 256
  .amdhsa_group_segment_fixed_size 0
  .amdhsa_kernarg_size 88
  .amdhsa_user_sgpr_count 2
  .amdhsa_user_sgpr_kernarg_segment_ptr 1
  .amdhsa_system_sgpr_workgroup_id_x 1
.end_amdhsa_kernel
"""
    return txt

if __name__ == "__main__":
    import argparse
    ap = argparse.ArgumentParser()
    ap.add_argument("out")
    ap.add_argument("--nv", type=int, default=24)
    ap.add_argument("--w", type=int, default=8)
    ap.add_argument("--nohilo", action="store_true")
    ap.add_argument("--ts", action="store_true")
    ap.add_argument("--dbg", action="store_true")
    ap.add_argument("--prog", action="store_true")
    ap.add_argument("--w2late", action="store_true")
    ap.add_argument("--wolate", action="store_true")
    ap.add_argument("--nopf", action="store_true")
    ap.add_argument("--ord2", action="store_true"); ap.add_argument("--cstr", type=int, default=256); ap.add_argument("--cbase", type=lambda x: int(x, 0), default=None); ap.add_argument("--ord3", action="store_true"); ap.add_argument("--noackw", action="store_true"); ap.add_argument("--noffn", action="store_true"); ap.add_argument("--hsleep", type=int, default=16); ap.add_argument("--atomrepl", default=None); ap.add_argument("--nowgt", action="store_true"); ap.add_argument("--noatom", action="store_true"); ap.add_argument("--nosl", action="store_true"); ap.add_argument("--fake", action="store_true"); ap.add_argument("--burst", action="store_true"); ap.add_argument("--rq", type=int, default=-1); ap.add_argument("--batch", type=int, default=0); ap.add_argument("--thr", type=int, default=96)
    ap.add_argument("--sd", action="store_true")
    ap.add_argument("--agg", action="store_true")
    ap.add_argument("--noqf", action="store_true"); ap.add_argument("--nohlate", action="store_true"); ap.add_argument("--hf", default="sc1"); ap.add_argument("--qsf", default="sc1"); ap.add_argument("--qlf", default="sc1"); ap.add_argument("--agf", default="sc1"); ap.add_argument("--yaf", default="sc1")
    ap.add_argument("--b0", action="store_true"); ap.add_argument("--wog", action="store_true")
    ap.add_argument("--pubf", default="sc1 nt"); ap.add_argument("--slf", default="sc1 nt"); ap.add_argument("--ybsf", default="sc1"); ap.add_argument("--yblf", default="sc1")
    ap.add_argument("--nopub", action="store_true")
    ap.add_argument("--noyb", action="store_true")
    ap.add_argument("--tlb", type=int, default=0)
    args = ap.parse_args()
    t = gen(NV=args.nv, HILO=not args.nohilo, TSTAMP=args.ts, dbg=args.dbg, W=args.w, PROG=args.prog,
            W2EARLY=not args.w2late, WOLATE=args.wolate, PF=not args.nopf, TLB=args.tlb, NOPUB=args.nopub, NOYB=args.noyb, PUBF=args.pubf, SLF=args.slf, YBSF=args.ybsf, YBLF=args.yblf, HF=args.hf, QSF=args.qsf, QLF=args.qlf, AGF=args.agf, YAF=args.yaf, B0=args.b0, WOG=args.wog, AGG=args.agg, SD=args.sd, ORD2=args.ord2, BURST=args.burst, RQ=args.rq, BATCH=args.batch, THR=args.thr, FAKE=args.fake, NOATOM=args.noatom, NOSL=args.nosl, WGT=not args.nowgt, ATOMREPL=args.atomrepl, CSTR=args.cstr, CBASE=args.cbase, ORD3=args.ord3, ACKW=not args.noackw, NOFFN=args.noffn, HSLEEP=args.hsleep, QF=not args.noqf, HLATE=not args.nohlate)
    errs = hazard.check(t)
    for e in errs: print("HAZARD", e)
    open(args.out, "w").write(t)
```

```python
import sys
from asmlib import A, NAME, KN
import hazard

WS_SIZE = 0x1000000
EPOCH = 0
CNT   = 0x1000
QG    = 0x10000
HG    = 0x60000
AG    = 0xA0000
SG    = 0x140000
YA    = 0x600000
YB    = 0x740000
TS    = 0x900000
L_Q   = 0
L_ML  = 256
L_FLAG = 320
L_QF  = 324
L_O   = 512
L_S   = 4096
L_ID  = 53248
SSTR  = 12288
L_TQ  = 53760
LOG2E = 0x3FB8AA3B
SCALE = 0x3DB504F3

HEADER = """; Fused decode step: out = x + MHA(LN(x)) + FFN(LN(x))     (gfx950; hand written, emitted by my own generator script)
;   waves 0-3 stream K (scores -> LDS), then V (softmax weights x V on MFMA) of head h; the last V tiles
; Hand-offs between workgroups are 8-byte {value, tag} granules in d_ws; the tag is derived from
"""

class K(A):
    noatom = False
    atomrepl = None
    def __call__(self, s=''):
        if self.noatom: s = '\n'.join(l for l in s.split('\n') if 's_atomic_add' not in l)
        if self.atomrepl: s = '\n'.join((self.atomrepl if 's_atomic_add' in l else l) for l in s.split('\n'))
        super().__call__(s)
    def nop(self, n):
        while n > 0:
            m = min(n, 16); self(f"s_nop {m-1}"); n -= m

def gen(NV=24, HILO=True, TSTAMP=False, NT="nt", POLLMAX=40000, LDS=86016, dbg=False, W=8, PROG=False,
        W2EARLY=True, WOLATE=False, PF=True, TLB=0, NOPUB=False, NOYB=False, PUBF='sc1 nt', SLF='sc1 nt', YBSF='sc1', YBLF='sc1', HF='sc1', QSF='sc1', QLF='sc1', AGF='sc1', YAF='sc1', B0=False, WOG=False, AGG=False, SD=False, ORD2=False, BURST=False, RQ=-1, BATCH=0, THR=96, FAKE=False, NOATOM=False, NOSL=False, WGT=True, ATOMREPL=None, CSTR=256, CBASE=None, ORD3=False, ACKW=True, PRE=0, NOFFN=False, NOWO=False, HSLEEP=16, QF=True, HLATE=True, PIPE=False, AGSLEEP=6, AGLF=None, YALF=None, AGPS=0, YAPS=0, YBPS=0, WOT=False, PRE8=False, WD8=False, LT=False, AW=None, YPAD=False, R96=False, YBL=False):
    a = K()
    YSH = 15 if YPAD else 14
    YP = 7 if YPAD else 6
    YBb = 0x780000 if YPAD else YB
    NRED = 96 if R96 else 48
    NL = 8 if R96 else 16
    if R96: YSH, YP = 13, 5
    AGLF = AGLF or AGF; YALF = YALF or YAF
    VOFF = 128 if CSTR >= 256 else 4
    a.noatom = NOATOM
    a.atomrepl = ATOMREPL
    DYN = NV < 32
    NP = 32 - NV; POOL0 = 32 * NV; NPOOL = 32 * NP
    MAXD = 48 - NV if NV < 32 else 0
    MAXD -= MAXD & 1
    MAXD = min(MAXD, 32)
    assert 32 * MAXD >= NPOOL
    assert SG + 32 * NPOOL * 128 + 65536 <= YA
    T0 = [60]

    def stamp(i):
        if TSTAMP:
            a(f"s_memrealtime s[{70+2*i}:{71+2*i}]")
            a("s_waitcnt lgkmcnt(0)")
    def stamp_store(nst, t=60):
        if TSTAMP:
            a("s_waitcnt vmcnt(0)")
            a("s_lshl_b32 s30, s2, 3\ns_add_u32 s30, s30, s3\ns_lshl_b32 s30, s30, 6")
            a(f"s_add_u32 s30, s30, {TS}")
            a("s_mov_b64 exec, 1")
            a(f"v_mov_b32 v{t}, s30")
            for i in range(nst):
                a(f"v_mov_b32 v{t+1}, s{70+2*i}")
                a(f"buffer_store_dword v{t+1}, v{t}, s[44:47], 0 offen offset:{4*i}" + (" sc1" if AGG else ""))
            a("s_getreg_b32 s31, hwreg(HW_REG_XCC_ID)")
            a(f"v_mov_b32 v{t+1}, s31")
            a(f"buffer_store_dword v{t+1}, v{t}, s[44:47], 0 offen offset:60")
            a("s_waitcnt vmcnt(0)")
            a("s_mov_b64 exec, -1")

    def make_masks(tmp1, tmp2):
        a(f"v_and_b32 v{tmp1}, 7, v3")
        a(f"v_and_b32 v{tmp2}, 1, v3")
        a(f"v_lshlrev_b32 v{tmp2}, 4, v{tmp2}")
        a(f"v_mov_b32 v12, 0xffff")
        a(f"v_lshlrev_b32 v{tmp2}, v{tmp2}, v12")
        a(f"v_lshrrev_b32 v{tmp1}, 1, v{tmp1}")
        for w in range(4):
            a(f"v_cmp_eq_u32 vcc, {w}, v{tmp1}")
            a.nop(2)
            a(f"v_cndmask_b32 v{12+w}, 0, v{tmp2}, vcc")

    def allreduce(op, v, t, rors=(8, 4, 2, 1), cross=True):
        for n in rors:
            a.nop(2)
            a(f"{op}_dpp v{v}, v{v}, v{v} row_ror:{n} row_mask:0xf bank_mask:0xf")
        if cross:
            for sw in ("16", "32"):
                a(f"v_mov_b32 v{t}, v{v}")
                a.nop(2)
                a(f"v_permlane{sw}_swap_b32 v{v}, v{t}")
                a(f"{op} v{v}, v{v}, v{t}")

    def to_bf16f(dst, src):
        a(f"v_cvt_pk_bf16_f32 v{dst}, v{src}, v{src}")
        a(f"v_and_b32 v{dst}, 0xffff0000, v{dst}")

    def div_refined(dst, num, den, rcp, t):
        a(f"v_mul_f32 v{dst}, v{num}, v{rcp}")
        a(f"v_fma_f32 v{t}, -v{dst}, v{den}, v{num}")
        a(f"v_fma_f32 v{dst}, v{t}, v{rcp}, v{dst}")

    def poll_begin(name):
        a(f"s_mov_b32 s49, 0")
        a(f"L_{name}_poll:")
    def poll_end(name, acc, sleep=0, code=1):
        a(f"v_cmp_ne_u32 vcc, 0, v{acc}")
        a(f"s_cbranch_vccz L_{name}_ok")
        a(f"s_add_u32 s49, s49, 1")
        if sleep: a(f"s_sleep {sleep}")
        a(f"s_cmp_lt_u32 s49, {POLLMAX}")
        a(f"s_cbranch_scc1 L_{name}_poll")
        if dbg:
            t = T0[0]
            a(f"v_mov_b32 v{t}, {code}\nv_mov_b32 v{t+1}, {4*code}\nglobal_atomic_or v{t+1}, v{t}, s[26:27]")
        a(f"L_{name}_ok:")
    def tagcheck(acc, tagregs):
        it = list(tagregs); tmp = T0[0]
        for i in range(0, len(it), 2):
            pair = it[i:i+2]
            if i == 0:
                a(f"v_xor_b32 v{acc}, s6, v{pair[0]}")
                if len(pair) > 1:
                    a(f"v_xor_b32 v{tmp}, s6, v{pair[1]}")
                    a(f"v_or_b32 v{acc}, v{acc}, v{tmp}")
            else:
                a(f"v_xor_b32 v{tmp}, s6, v{pair[0]}")
                if len(pair) > 1:
                    a(f"v_xor_b32 v{tmp+1}, s6, v{pair[1]}")
                    a(f"v_or3_b32 v{acc}, v{acc}, v{tmp}, v{tmp+1}")
                else:
                    a(f"v_or_b32 v{acc}, v{acc}, v{tmp}")
    def wait_kdone(name, v):
        a(f"v_mov_b32 v{v}, {L_FLAG}")
        a("s_mov_b32 s49, 0")
        a(f"L_{name}_kw:")
        a(f"ds_read_b32 v{v+1}, v{v}")
        a("s_waitcnt lgkmcnt(0)")
        a(f"v_readfirstlane_b32 s30, v{v+1}")
        a("s_add_u32 s49, s49, 1")
        a("s_cmp_ge_u32 s30, 256")
        a(f"s_cbranch_scc1 L_{name}_kd")
        a("s_sleep 16")
        a(f"s_cmp_lt_u32 s49, {POLLMAX * 4}")
        a(f"s_cbranch_scc1 L_{name}_kw")
        a(f"L_{name}_kd:")
    def ticket_init():
        a("s_mov_b32 s88, 0x10000\ns_mov_b32 s89, 0")
    def ticket_first():
        a("s_mov_b32 s89, 2\ns_mov_b32 s59, 2\ns_atomic_add s59, s[64:65], 0 glc")
    def ticket_top(tag, thr, capslot=None):
        a("s_cmp_lt_u32 s88, 0x10000")
        a(f"s_cbranch_scc1 L_tq{tag}")
        a("s_waitcnt lgkmcnt(0)")
        a("s_cmp_eq_u32 s89, 0")
        a("s_cselect_b32 s90, 0x10000, s59")
        a("s_add_u32 s88, s90, 1")
        a("s_cmp_eq_u32 s89, 2")
        a("s_cselect_b32 s88, s88, 0x10000")
        a("s_mov_b32 s89, 0")
        a(f"s_cmp_ge_u32 s90, {NPOOL}")
        a(f"s_cbranch_scc1 L_td{tag}")
        if capslot is not None:
            a(f"s_cmp_gt_u32 s58, {capslot}")
            a(f"s_cbranch_scc1 L_td{tag}")
        a(f"s_cmp_lt_u32 s90, {max(0, NPOOL - thr)}")
        a("s_cselect_b32 s89, 2, 1")
        a("s_mov_b32 s59, s89")
        a("s_atomic_add s59, s[64:65], 0 glc")
        a(f"s_branch L_td{tag}")
        a(f"L_tq{tag}:")
        a("s_mov_b32 s90, s88")
        a("s_mov_b32 s88, 0x10000")
        a(f"L_td{tag}:")
    NS = NPOOL // 4
    def wg_ticket(tag, allow):
        a("s_lshl_b32 s30, s93, 2")
        a(f"s_add_u32 s30, s30, {L_TQ}")
        a("v_mov_b32 v41, s30")
        a("s_cmp_eq_u32 s3, 0")
        a(f"s_cbranch_scc0 L_wr{tag}")
        a("s_waitcnt lgkmcnt(0)")
        a("s_min_u32 s31, s59, 0xfffe")
        a("s_add_u32 s91, s31, 1")
        a("v_mov_b32 v42, s91")
        a("ds_write_b32 v41, v42")
        a("s_mov_b32 s59, 0x10000")
        a(f"s_cmp_ge_u32 s31, {NS}")
        a(f"s_cbranch_scc1 L_wd{tag}")
        allow(f"L_wd{tag}")
        a("s_mov_b32 s59, 1")
        a("s_atomic_add s59, s[64:65], 0 glc")
        a(f"s_branch L_wd{tag}")
        a(f"L_wr{tag}:")
        a("s_mov_b32 s49, 0")
        a(f"L_ws{tag}:")
        a("ds_read_b32 v42, v41")
        a("s_add_u32 s49, s49, 1")
        a("s_waitcnt lgkmcnt(0)")
        a("v_readfirstlane_b32 s91, v42")
        a(f"s_cmp_ge_u32 s49, {POLLMAX * 8}")
        a(f"s_cbranch_scc1 L_wd{tag}")
        a("s_cmp_eq_u32 s91, 0")
        a(f"s_cbranch_scc1 L_ws{tag}")
        a(f"L_wd{tag}:")
        a("s_sub_u32 s91, s91, 1")
        a("s_lshl_b32 s91, s91, 2")
        a("s_add_u32 s91, s91, s3")
        a("s_add_u32 s93, s93, 1")
    def wg_first():
        a("s_cmp_eq_u32 s3, 0")
        lbl = a.label("L_wf")
        a(f"s_cbranch_scc0 {lbl}")
        a("s_mov_b32 s59, 1")
        a("s_atomic_add s59, s[64:65], 0 glc")
        a(f"{lbl}:")
    def tile_of(n, dst, t1="s30", t2="s31"):
        a(f"s_bfe_u32 {t1}, {n}, 0x30002")
        a(f"s_lshl_b32 {t1}, {t1}, 7")
        a(f"s_lshr_b32 {t2}, {n}, 5")
        a(f"s_lshl_b32 {t2}, {t2}, 2")
        a(f"s_add_u32 {t1}, {t1}, {t2}")
        a(f"s_and_b32 {t2}, {n}, 3")
        a(f"s_add_u32 {t1}, {t1}, {t2}")
        a(f"s_add_u32 {t1}, {t1}, {4*NV}")
        a(f"s_cmp_lt_u32 {n}, {NPOOL}")
        a(f"s_cselect_b32 {dst}, {t1}, 1024")
    def fake_n(dst):
        a(f"s_sub_u32 s30, s58, {NV}")
        a(f"s_lshl_b32 s31, s30, 5")
        a(f"s_lshl_b32 {dst}, s5, 2")
        a(f"s_add_u32 {dst}, {dst}, s31")
        a(f"s_add_u32 {dst}, {dst}, s3")
        a(f"s_cmp_lt_u32 s30, {NP}")
        a(f"s_cselect_b32 {dst}, {dst}, 0x10000")
    def make_tag():
        a("s_mul_i32 s6, s6, 0x9E3779B1\ns_add_u32 s6, s6, 0x7F4A7C15")

    def ln_loads(row0_sgpr):
        a(f"""
        s_mov_b32 s32, s8
        s_mov_b32 s33, s9
        s_mov_b32 s34, 1152
        s_mov_b32 s35, 0x20000
        v_lshlrev_b32 v20, 3, v0
        v_lshlrev_b32 v21, 1, v0
        v_lshl_add_u32 v22, v3, 2, v2
        v_add_u32 v22, s{row0_sgpr}, v22
        v_lshlrev_b32 v22, 1, v22
        buffer_load_dwordx2 v[4:5], v20, s[32:35], 0 offen
        buffer_load_dwordx2 v[6:7], v20, s[32:35], 0 offen offset:512
        buffer_load_ushort v8, v21, s[32:35], 0 offen offset:1024
        buffer_load_ushort v9, v22, s[32:35], 0 offen
        buffer_load_ushort v10, v22, s[32:35], 0 offen offset:128
        """)
    def ln_compute():
        for i, r in enumerate((4, 5, 6, 7)):
            a(f"v_lshlrev_b32 v{24+2*i}, 16, v{r}")
            a(f"v_and_b32 v{25+2*i}, 0xffff0000, v{r}")
        a("v_lshlrev_b32 v32, 16, v8")
        a("v_add_f32 v33, v24, v25\nv_add_f32 v34, v26, v27\nv_add_f32 v35, v28, v29\nv_add_f32 v36, v30, v31")
        a("v_add_f32 v33, v33, v34\nv_add_f32 v35, v35, v36\nv_add_f32 v33, v33, v32\nv_add_f32 v33, v33, v35")
        allreduce("v_add_f32", 33, 34)
        a("v_mov_b32 v36, 0x44100000")
        a("v_mov_b32 v37, 0x3ae38e39")
        div_refined(38, 33, 36, 37, 34)
        for i in range(9):
            a(f"v_sub_f32 v{24+i}, v{24+i}, v38")
        a("v_mul_f32 v33, v24, v24")
        for i in range(1, 9):
            a(f"v_fmac_f32 v33, v{24+i}, v{24+i}")
        allreduce("v_add_f32", 33, 34)
        div_refined(39, 33, 36, 37, 34)
        to_bf16f(38, 38)
        to_bf16f(39, 39)
        a("v_add_f32 v39, 0x3727c5ac, v39")
        to_bf16f(39, 39)
        a("v_sqrt_f32 v39, v39")
        a.nop(1)
        to_bf16f(39, 39)
        a("v_rcp_f32 v37, v39")
        for r in (9, 10):
            a(f"v_lshlrev_b32 v{r}, 16, v{r}")
            a(f"v_sub_f32 v{r}, v{r}, v38")
            to_bf16f(r, r)
        for r in (9, 10):
            div_refined(33, r, 39, 37, 34)
            a(f"v_cvt_pk_bf16_f32 v{r}, v33, v33")

    def job4(wb, n, nyounger):
        a("v_mov_b32 v16, 0\nv_mov_b32 v17, 0\nv_mov_b32 v18, 0\nv_mov_b32 v19, 0")
        def prep(j):
            src = 9 if j < 16 else 10
            b = 24 + 4 * (j & 1)
            for w in range(4):
                a(f"v_and_b32_dpp v{b+w}, v{src}, v{12+w} row_newbcast:{j & 15} row_mask:0xf bank_mask:0xf")
        a.nop(2)
        prep(0)
        for j in range(n):
            if j + 1 < n: prep(j + 1)
            else: a.nop(2)
            a(f"s_waitcnt vmcnt({min(63, n - 1 - j + nyounger)})")
            b = 24 + 4 * (j & 1)
            a(f"v_mfma_f32_16x16x32_bf16 v[16:19], v[{wb+4*j}:{wb+4*j+3}], v[{b}:{b+3}], v[16:19]")
        a.nop(8)
        a("s_mov_b32 s52, 0xff00ff00\ns_mov_b32 s53, 0xff00ff00")
        a("v_cndmask_b32 v20, v16, v18, s[52:53]")
        a("v_cndmask_b32 v22, v17, v19, s[52:53]")

    def job8_zero(ab):
        for i in range(36): a(f"v_mov_b32 v{ab+i}, 0")
    def job8(wb, nb, mult, ab):
        for bb in range(nb):
            for w in range(4):
                a(f"v_and_b32 v{24+w}, v{mult[bb]}, v{12+w}")
            a.nop(2)
            for blk in range(9):
                j = bb * 9 + blk
                a(f"v_mfma_f32_16x16x32_bf16 v[{ab+4*blk}:{ab+4*blk+3}], v[{wb+4*j}:{wb+4*j+3}], v[24:27], v[{ab+4*blk}:{ab+4*blk+3}]")
        a.nop(6)
    def job8_addr(ybase, v):
        a(f"v_and_b32 v{v}, 1, v2\nv_lshlrev_b32 v{v}, 2, v{v}")
        a(f"v_lshrrev_b32 v21, 3, v3\nv_lshlrev_b32 v21, 1, v21\nv_add_u32 v{v}, v{v}, v21")
        a(f"v_lshrrev_b32 v21, 1, v2\nv_add_u32 v{v}, v{v}, v21")
        if R96:
            a(f"v_lshlrev_b32 v{v}, 2, v{v}\nv_bfe_u32 v21, v3, 1, 2\nv_add_u32 v{v}, v{v}, v21")
            a(f"v_lshlrev_b32 v{v}, {YSH}, v{v}")
            a(f"v_and_b32 v21, 1, v3\nv_lshl_add_u32 v{v}, v21, 4, v{v}")
        else:
            a(f"v_lshlrev_b32 v{v}, 1, v{v}\nv_bfe_u32 v21, v3, 2, 1\nv_add_u32 v{v}, v{v}, v21")
            a(f"v_lshlrev_b32 v{v}, {YSH}, v{v}")
            a(f"v_and_b32 v21, 3, v3\nv_lshl_add_u32 v{v}, v21, 4, v{v}")
        a(f"s_lshl_b32 s30, s2, {YP}\ns_add_u32 s30, s30, {ybase}")
        a(f"v_add_u32 v{v}, s30, v{v}")
    def job8_finish(ab, pairbase):
        for blk in range(9):
            y = ab + 4 * blk
            a(f"v_permlane32_swap_b32 v{y}, v{y+1}")
            a(f"v_permlane32_swap_b32 v{y+2}, v{y+3}")
        for t in range(3):
            for k in range(3):
                blk = 3 * t + k
                y = ab + 4 * blk; pr = pairbase + 4 * t + k
                a(f"v_add_f32_dpp v{pr}, v{y+1}, v{y} row_ror:8 row_mask:0xf bank_mask:0x3")
                a(f"v_add_f32_dpp v{pr}, v{y+2}, v{y+3} row_ror:8 row_mask:0xf bank_mask:0xc")
    def job8_store(pairbase, vaddr, fl):
        for t in range(3):
            a(f"s_mov_b32 s31, {(t * (32 if R96 else 16)) << YSH}")
            a(f"buffer_store_dwordx4 v[{pairbase+4*t}:{pairbase+4*t+3}], v{vaddr}, s[44:47], s31 offen {fl}")
    def job8_publish(ab, pairbase, vaddr, fl='sc1'):
        for blk in range(9):
            y = ab + 4 * blk
            a(f"v_permlane32_swap_b32 v{y}, v{y+1}")
            a(f"v_permlane32_swap_b32 v{y+2}, v{y+3}")
        for t in range(3):
            for k in range(3):
                blk = 3 * t + k
                y = ab + 4 * blk; pr = pairbase + 4 * t + k
                a(f"v_add_f32_dpp v{pr}, v{y+1}, v{y} row_ror:8 row_mask:0xf bank_mask:0x3")
                a(f"v_add_f32_dpp v{pr}, v{y+2}, v{y+3} row_ror:8 row_mask:0xf bank_mask:0xc")
            a(f"s_mov_b32 s31, {(t * (32 if R96 else 16)) << YSH}")
            a(f"buffer_store_dwordx4 v[{pairbase+4*t}:{pairbase+4*t+3}], v{vaddr}, s[44:47], s31 offen {fl}")

    a(f"""
    s_cmp_ge_u32 s2, 256
    s_cbranch_scc1 L_end
    s_load_dwordx16 s[8:23], s[0:1], 0
    s_load_dwordx4 s[24:27], s[0:1], 64
    s_load_dwordx2 s[28:29], s[0:1], 80
    """)
    if TSTAMP: a("s_memrealtime s[70:71]")
    a(f"""
    v_lshrrev_b32 v1, 6, v0
    v_and_b32 v0, 63, v0
    v_readfirstlane_b32 s3, v1
    s_lshr_b32 s4, s2, 3
    s_and_b32 s5, s2, 7
    v_lshrrev_b32 v2, 4, v0
    v_and_b32 v3, 15, v0
    """)
    if PF:
        a(f"""
        s_cmp_eq_u32 s3, 5
        s_cbranch_scc0 L_nopf
        L_pc:
        s_getpc_b64 s[30:31]
        v_lshlrev_b32 v4, 7, v0
        v_add_u32 v5, 8192, v4
        v_add_u32 v6, 16384, v4
        v_min_u32 v4, L_end-L_pc, v4
        v_min_u32 v5, L_end-L_pc, v5
        v_min_u32 v6, L_end-L_pc, v6
        global_load_dword v49, v4, s[30:31]
        global_load_dword v50, v5, s[30:31]
        global_load_dword v51, v6, s[30:31]
        L_nopf:
        """)
    a(f"""
    s_waitcnt lgkmcnt(0)
    s_load_dword s6, s[28:29], {EPOCH}
    s_mov_b32 s44, s28
    s_mov_b32 s45, s29
    s_mov_b32 s46, {WS_SIZE}
    s_mov_b32 s47, 0x20000
    s_cmp_eq_u32 s3, 4
    s_cbranch_scc1 L_helperA
    s_cmp_eq_u32 s3, 5
    s_cbranch_scc1 L_helperB
    """)

    SL = 64
    T0[0] = 62
    def issue(pos, nxt, srd_cur, srd_nxt):
        j = pos & 7
        vo = ((7, 46) if nxt else (5, 6))[j >> 2]
        srd = srd_nxt if nxt else srd_cur
        a(f"buffer_load_dwordx4 v[{SL+4*j}:{SL+4*j+3}], v{vo}, {srd}, 0 offen offset:{(j & 3) * 1024} {NT}")
    def issue_after(n, srd_cur, srd_nxt):
        m = n + W
        issue(m & 7, m >= 8, srd_cur, srd_nxt)
    a(f"""
    s_lshl_b32 s30, s4, 23
    s_add_u32 s32, s10, s30
    s_addc_u32 s33, s11, 0
    s_mov_b32 s34, 0x800000
    s_mov_b32 s35, 0x20000
    s_lshl_b32 s56, s5, 7
    s_add_u32 s56, s56, s3
    s_lshl_b32 s31, s56, 13
    v_lshlrev_b32 v4, 4, v0
    v_add_u32 v5, s31, v4
    v_add_u32 v6, 4096, v5
    """)
    if B0 or ORD2 or ORD3: a("s_barrier")
    for n in range(W): issue(n, False, "s[32:35]", None)
    a(f"""
    s_add_u32 s36, s12, s30
    s_addc_u32 s37, s13, 0
    s_mov_b32 s38, 0x800000
    s_mov_b32 s39, 0x20000
    s_mov_b32 s42, 0x800000
    s_mov_b32 s43, 0x20000
    s_mov_b32 s57, s56
    s_mul_i32 s30, s4, {CSTR}
    s_add_u32 s30, s30, {CNT if CBASE is None else CBASE}
    s_add_u32 s64, s28, s30
    s_addc_u32 s65, s29, 0
    s_mul_i32 s84, s4, {NPOOL * 128}
    s_add_u32 s84, s84, {SG}
    s_mov_b32 s58, 0                   ; i
    s_mov_b32 s88, 0x10000
    s_mov_b32 s89, 0
    s_mov_b32 s93, 0
    s_mov_b32 s59, 0
    s_mov_b32 s60, {LOG2E:#x}
    s_mov_b32 s61, {SCALE:#x}
    s_mov_b32 s52, 0xcccccccc
    s_mov_b32 s53, 0xcccccccc
    s_mov_b32 s54, 0xaaaaaaaa
    s_mov_b32 s55, 0xaaaaaaaa
    """)
    make_masks(20, 21)
    a(f"""
    v_mov_b32 v16, 0
    v_mov_b32 v17, 0
    v_mov_b32 v18, 0
    v_mov_b32 v19, 0
    v_mov_b32 v20, 0
    v_mov_b32 v22, 0xff800000
    v_lshlrev_b32 v23, 4, v3
    s_mul_i32 s30, s3, {SSTR}
    s_add_u32 s30, s30, {L_S}
    v_lshl_add_u32 v47, v0, 2, s30
    s_lshl_b32 s30, s3, 7
    s_add_u32 s30, s30, {L_ID - 4*NV - 4}
    v_mov_b32 v43, s30
    v_mov_b32 v56, v47
    v_lshrrev_b32 v57, 1, v3
    v_lshlrev_b32 v57, 1, v57
    v_lshrrev_b32 v59, 1, v2
    v_add_u32 v57, v57, v59
    v_lshlrev_b32 v57, 3, v57
    v_and_b32 v59, 1, v2
    v_lshlrev_b32 v59, 4, v59
    v_sub_u32 v59, 16, v59
    s_waitcnt lgkmcnt(0)
    """)
    make_tag()
    stamp(1)
    if ORD2 or ORD3: a("s_barrier")
    if PRE8:
        for n in range(W, 8): issue(n, False, "s[32:35]", None)
    if QF:
        assert ORD3
        a(f"v_mov_b32 v41, {L_QF}\ns_mov_b32 s49, 0\nL_qw:\nds_read_b32 v42, v41\ns_add_u32 s49, s49, 1\ns_waitcnt lgkmcnt(0)\nv_readfirstlane_b32 s30, v42")
        a(f"s_cmp_ge_u32 s49, {POLLMAX * 16}\ns_cbranch_scc1 L_qd\ns_cmp_eq_u32 s30, 0\ns_cbranch_scc0 L_qd\ns_sleep 1\ns_branch L_qw\nL_qd:")
    else:
        a("s_barrier")
    a(f"ds_read_b128 v[8:11], v23 offset:{L_Q}")
    a("s_waitcnt lgkmcnt(0)")
    stamp(2)
    a("L_ktile:")
    if PROG:
        a("s_memrealtime s[86:87]\ns_waitcnt lgkmcnt(0)\ns_mov_b32 m0, s58\ns_nop 0\nv_writelane_b32 v128, s86, m0")
    a("s_add_u32 s58, s58, 1")
    a("s_lshl_b32 s31, s58, 2")
    a("s_add_u32 s30, s31, s56")
    if DYN and WGT:
        a("s_mov_b32 s62, s30")
        a(f"s_cmp_eq_u32 s58, {NV-1}")
        a("s_cbranch_scc0 L_kf")
        wg_first()
        a("L_kf:")
        a(f"s_cmp_lt_u32 s58, {NV}")
        a("s_cbranch_scc1 L_kstat")
        def allow_k(lbl):
            a(f"s_cmp_ge_u32 s58, {NV + MAXD - 1}")
            a(f"s_cbranch_scc1 {lbl}")
        wg_ticket("k", allow_k)
        tile_of("s91", "s62")
        a("L_kstat:")
    elif DYN and BATCH:
        a("s_mov_b32 s62, s30")
        a(f"s_cmp_eq_u32 s58, {NV-2}")
        a("s_cbranch_scc0 L_kf")
        ticket_first()
        a("L_kf:")
        a(f"s_cmp_lt_u32 s58, {NV}")
        a("s_cbranch_scc1 L_kstat")
        ticket_top("k", 0, NV + MAXD - 4)
        a("s_mov_b32 s91, s90")
        tile_of("s91", "s62")
        a("L_kstat:")
    elif DYN:
        a("s_waitcnt lgkmcnt(0)")
        a("s_mov_b32 s92, s30")
        a("s_mov_b32 s91, s59")
        if FAKE: fake_n("s91")
        tile_of("s91", "s62")
        a(f"s_cmp_lt_u32 s58, {NV}")
        a("s_cselect_b32 s62, s92, s62")
        a("s_mov_b32 s59, 0x10000")
        a("s_mov_b32 s85, 0")
        a(f"s_cmp_lt_u32 s58, {NV-1}")
        a("s_cbranch_scc1 L_knotk")
        a(f"s_cmp_ge_u32 s58, {NV + MAXD - 1}")
        a("s_cbranch_scc1 L_knotk")
        a("s_cmp_ge_u32 s62, 1024")
        a("s_cbranch_scc1 L_knotk")
        if RQ < 0:
            a("s_mov_b32 s59, 1")
            a("s_atomic_add s59, s[64:65], 0 glc")
        else:
            a("s_mov_b32 s85, 1")
        a("L_knotk:")
    if DYN:
        a("s_cmp_lt_u32 s62, 1024")
    else:
        a("s_mov_b32 s62, s30")
        a(f"s_cmp_lt_u32 s58, {NV}")
    a("s_cselect_b32 s83, 1, 0")
    a("s_cselect_b32 s62, s62, s56")
    a("s_cselect_b32 s40, s32, s36")
    a("s_cselect_b32 s41, s33, s37")
    a("s_lshl_b32 s63, s62, 13")
    a("v_add_u32 v7, s63, v4\nv_add_u32 v46, 4096, v7")
    for j in range(8):
        a(f"s_waitcnt vmcnt({W-1})")
        P = 24 + j; sl = SL + 4 * j
        a(f"v_dot2_f32_bf16 v{P}, v{sl}, v8, 0")
        a(f"v_dot2_f32_bf16 v{P}, v{sl+1}, v9, v{P}")
        a(f"v_dot2_f32_bf16 v{P}, v{sl+2}, v10, v{P}")
        a(f"v_dot2_f32_bf16 v{P}, v{sl+3}, v11, v{P}")
        if PRE8 and j + W < 8:
            a("s_cmp_eq_u32 s58, 1")
            a(f"s_cbranch_scc1 L_kskip{j}")
        issue_after(j, "s[32:35]", "s[40:43]")
        if PRE8 and j + W < 8: a(f"L_kskip{j}:")
        if DYN and j == RQ and not BATCH and not WGT:
            a("s_cmp_eq_u32 s85, 1")
            a("s_cbranch_scc0 L_knorq")
            a("s_mov_b32 s59, 1")
            a("s_atomic_add s59, s[64:65], 0 glc")
            a("L_knorq:")
    for j in range(4):
        a(f"v_add_f32_dpp v{32+j}, v{24+j}, v{24+j} row_ror:8 row_mask:0xf bank_mask:0x3")
        a(f"v_add_f32_dpp v{32+j}, v{28+j}, v{28+j} row_ror:8 row_mask:0xf bank_mask:0xc")
    for j in range(2):
        a(f"v_add_f32_dpp v{36+j}, v{32+j}, v{32+j} row_shl:4 row_mask:0xf bank_mask:0x5")
        a(f"v_add_f32_dpp v{36+j}, v{34+j}, v{34+j} row_shr:4 row_mask:0xf bank_mask:0xa")
    a("v_mov_b32 v5, v7")
    a("v_add_f32_dpp v38, v36, v36 quad_perm:[2,3,0,1] row_mask:0xf bank_mask:0xf")
    a("v_add_f32_dpp v39, v37, v37 quad_perm:[2,3,0,1] row_mask:0xf bank_mask:0xf")
    a("v_cndmask_b32 v40, v38, v39, s[52:53]")
    a("v_mov_b32 v6, v46")
    if DYN: a("v_mov_b32 v41, s57")
    else: a("s_nop 0")
    a("v_add_f32_dpp v40, v40, v40 quad_perm:[1,0,3,2] row_mask:0xf bank_mask:0xf")
    a("v_cvt_pk_bf16_f32 v40, v40, v40")
    a("v_and_b32 v40, 0xffff0000, v40")
    a("v_mul_f32 v40, s61, v40")
    a("v_cvt_pk_bf16_f32 v40, v40, v40")
    a("v_and_b32 v40, 0xffff0000, v40")
    a("ds_write_b32 v56, v40")
    if DYN:
        a(f"s_cmp_gt_u32 s58, {NV}")
        a("s_cbranch_scc0 L_noid")
        a("s_lshl_b32 s30, s58, 2")
        a("v_add_u32 v42, s30, v43")
        a("ds_write_b32 v42, v41 offset:0")
        a("L_noid:")
    a("v_max_f32 v22, v22, v40")
    a("v_add_u32 v56, 256, v56")
    a("s_mov_b32 s57, s91")
    a("s_cmp_eq_u32 s83, 1")
    a("s_cbranch_scc1 L_ktile")
    stamp(5)
    a(f"v_mov_b32 v41, {L_FLAG}")
    a("v_mov_b32 v42, 1")
    a("s_waitcnt lgkmcnt(0)")
    a("ds_add_u32 v41, v42")
    a("ds_read_b32 v58, v47")
    allreduce("v_max_f32", 22, 41, rors=(8, 4, 2))
    a("v_mul_f32 v21, s60, v22")
    a("v_add_u32 v56, 256, v47")
    a("s_mov_b32 s94, s58")
    a("s_mov_b32 s58, 0")
    a(f"s_add_u32 s64, s64, {VOFF}\ns_addc_u32 s65, s65, 0")
    if BATCH: ticket_init()
    if WGT: a("s_mov_b32 s93, 32")
    def pcompute(tag):
        a("v_cmp_lt_f32 vcc, v22, v40")
        a(f"s_cbranch_vccnz L_rare{tag}")
        a(f"L_back{tag}:")
        a("v_fma_f32 v41, v40, s60, -v21")
        a("v_exp_f32 v41, v41")
        a("s_nop 0")
        a("v_add_f32 v20, v20, v41")
        a("v_cvt_pk_bf16_f32 v42, v41, v41")
        if HILO:
            a("v_and_b32 v43, 0xffff0000, v42")
            a("v_sub_f32 v43, v41, v43")
            a("v_cvt_pk_bf16_f32 v43, v43, v43")
            a("v_cndmask_b32 v42, v42, v43, s[54:55]")
        a.nop(2)
    def prepB(j):
        b = 48 + 4 * (j & 1)
        if HILO:
            y = 44 + (j & 1)
            a(f"v_mov_b32_dpp v{y}, v42 row_newbcast:{2*j} row_mask:0xf bank_mask:0x3")
            a(f"v_mov_b32_dpp v{y}, v42 row_newbcast:{2*j+1} row_mask:0xf bank_mask:0xc")
            for w in range(4): a(f"v_and_b32 v{b+w}, v{y}, v{12+w}")
        else:
            for w in range(4):
                a(f"v_and_b32_dpp v{b+w}, v42, v{12+w} row_newbcast:{2*j} row_mask:0xf bank_mask:0xf")
    def progstamp():
        if PROG:
            a("s_memrealtime s[86:87]\ns_waitcnt lgkmcnt(0)\ns_mov_b32 m0, s58\ns_nop 0\nv_writelane_b32 v129, s86, m0")
    def allow_v(lbl):
        a("s_cmp_ge_u32 s93, 126")
        a(f"s_cbranch_scc1 {lbl}")
    if LT and DYN:
        variants = sorted(set(AW)) if AW else [W]
        def issueW(n, Wv):
            m = n + Wv
            issue(m & 7, m >= 8, "s[36:39]", "s[36:39]")
        def vphase(Wv, sx):
            J0 = 8 - Wv
            a(f"L_vtile{sx}:")
            a("s_waitcnt lgkmcnt(0)")
            progstamp()
            a("s_add_u32 s58, s58, 1")
            a("s_lshl_b32 s30, s58, 2")
            a("s_add_u32 s62, s30, s56")
            a("v_mov_b32 v40, v58")
            a("ds_read_b32 v58, v56")
            a("v_add_u32 v56, 256, v56")
            a("s_lshl_b32 s63, s62, 13")
            a("v_add_u32 v7, s63, v4\nv_add_u32 v46, 4096, v7")
            pcompute("s" + sx)
            prepB(0)
            for j in range(8):
                if j < 7: prepB(j + 1)
                else: a.nop(1)
                a(f"s_waitcnt vmcnt({Wv - 1})")
                b = 48 + 4 * (j & 1); sl = SL + 4 * j
                a(f"v_mfma_f32_16x16x32_bf16 v[16:19], v[{sl}:{sl+3}], v[{b}:{b+3}], v[16:19]")
                issueW(j, Wv)
            a("v_mov_b32 v5, v7\nv_mov_b32 v6, v46")
            a(f"s_cmp_lt_u32 s58, {NV-1}")
            a(f"s_cbranch_scc1 L_vtile{sx}")
            def lt_tile(tag, SX, SY, other):
                tg = tag + sx
                a(f"L_vd{tg}:")
                if SX is None: a("s_waitcnt lgkmcnt(0)")
                else: a(f"s_waitcnt vmcnt({Wv})")
                progstamp()
                a("s_add_u32 s58, s58, 1")
                a("s_mov_b32 s59, 1")
                a("s_atomic_add s59, s[64:65], 0 glc")
                if SX is None:
                    a("v_mov_b32 v40, v58")
                else:
                    a(f"v_lshlrev_b32 v40, v59, v{SX}")
                    a(f"v_cmp_ne_u32 vcc, s6, v{SX+1}")
                    a("v_and_b32 v40, 0xffff0000, v40")
                    a(f"s_cbranch_vccnz L_retry{tg}")
                    a(f"L_retry_back{tg}:")
                pcompute(tg)
                prepB(0)
                for j in range(8):
                    if j < 7: prepB(j + 1)
                    else: a.nop(1)
                    a(f"s_waitcnt vmcnt({Wv - 1 if j <= J0 else Wv})")
                    b = 48 + 4 * (j & 1); sl = SL + 4 * j
                    a(f"v_mfma_f32_16x16x32_bf16 v[16:19], v[{sl}:{sl+3}], v[{b}:{b+3}], v[16:19]")
                    if j == J0:
                        a("s_waitcnt lgkmcnt(0)")
                        a("s_mov_b32 s91, s59")
                        tile_of("s91", "s62")
                        a("s_lshl_b32 s63, s62, 13")
                        a("s_lshl_b32 s83, s91, 7")
                        a("s_add_u32 s83, s83, s84")
                        a("v_add_u32 v7, s63, v4\nv_add_u32 v46, 4096, v7")
                        a(f"buffer_load_dwordx2 v[{SY}:{SY+1}], v57, s[44:47], s83 offen {SLF}")
                    issueW(j, Wv)
                a("s_mov_b32 s82, s83")
                a("v_mov_b32 v5, v7\nv_mov_b32 v6, v46")
                a("s_cmp_lt_u32 s62, 1024")
                if other is None: a("s_cbranch_scc0 L_vend")
                else: a(f"s_cbranch_scc1 L_vd{other}{sx}")
            lt_tile("l", None, 60, None)
            lt_tile("a", 60, 62, None)
            lt_tile("b", 62, 60, "a")
            a("s_branch L_vend")
        if AW:
            for k, cond in ((0, f"s_cmp_le_u32 s94, {NV}"), (1, f"s_cmp_eq_u32 s94, {NV+1}")):
                a(cond)
                a(f"s_cbranch_scc1 L_ventry{AW[k]}")
            a(f"s_branch L_ventry{AW[2]}")
            for Wv in variants:
                a(f"L_ventry{Wv}:")
                for n in range(W, Wv): issue(n, False, "s[36:39]", None)
                vphase(Wv, f"w{Wv}")
        else:
            vphase(W, "")
        a("L_vend:")
    else:
        a("L_vtile:")
        a(f"s_waitcnt lgkmcnt(0)")
        progstamp()
        a("s_add_u32 s58, s58, 1")
        a("s_lshl_b32 s30, s58, 2")
        a("s_add_u32 s30, s30, s56")
        a("v_mov_b32 v40, v58")
        if DYN:
            if WGT:
                a("s_mov_b32 s62, s30")
                a(f"s_cmp_eq_u32 s58, {NV-1}")
                a("s_cbranch_scc0 L_vf")
                wg_first()
                a("L_vf:")
                a(f"s_cmp_lt_u32 s58, {NV}")
                a("s_cbranch_scc1 L_vstat")
                wg_ticket("vs", allow_v)
                tile_of("s91", "s62")
                a("L_vstat:")
            elif BATCH:
                a("s_mov_b32 s62, s30")
                a(f"s_cmp_eq_u32 s58, {NV-2}")
                a("s_cbranch_scc0 L_vf")
                ticket_first()
                a("L_vf:")
                a(f"s_cmp_lt_u32 s58, {NV}")
                a("s_cbranch_scc1 L_vstat")
                ticket_top("vs", THR)
                a("s_mov_b32 s91, s90")
                tile_of("s91", "s62")
                a("L_vstat:")
            else:
                a("s_mov_b32 s92, s30")
                a("s_mov_b32 s91, s59")
                if FAKE: fake_n("s91")
                tile_of("s91", "s62")
                a(f"s_cmp_lt_u32 s58, {NV}")
                a("s_cselect_b32 s62, s92, s62")
                if RQ < 0:
                    a(f"s_cmp_lt_u32 s58, {NV-1}")
                    a("s_cbranch_scc1 L_vnorq")
                    a("s_mov_b32 s59, 1")
                    a("s_atomic_add s59, s[64:65], 0 glc")
                    a("L_vnorq:")
            a("s_lshl_b32 s83, s91, 7")
            a("s_add_u32 s83, s83, s84")
            a(f"s_cmp_lt_u32 s58, {NV}")
            a("s_cselect_b32 s83, 0x7f000000, s83")
            if NOSL: a("s_mov_b32 s83, 0x7f000000")
            a(f"buffer_load_dwordx2 v[60:61], v57, s[44:47], s83 offen {SLF}")
        else:
            a(f"s_cmp_lt_u32 s58, {NV}")
            a("s_cselect_b32 s62, s30, 1024")
        a("ds_read_b32 v58, v56")
        a("v_add_u32 v56, 256, v56")
        a("s_lshl_b32 s63, s62, 13")
        a("v_add_u32 v7, s63, v4\nv_add_u32 v46, 4096, v7")
        pcompute("s")
        prepB(0)
        for j in range(8):
            if j < 7: prepB(j + 1)
            else: a.nop(1)
            n = (W if j < W else W - 1) if DYN else W - 1
            a(f"s_waitcnt vmcnt({n})")
            b = 48 + 4 * (j & 1); sl = SL + 4 * j
            a(f"v_mfma_f32_16x16x32_bf16 v[16:19], v[{sl}:{sl+3}], v[{b}:{b+3}], v[16:19]")
            issue_after(j, "s[36:39]", "s[36:39]")
            if DYN and j == RQ and not BATCH and not WGT:
                a(f"s_cmp_lt_u32 s58, {NV-1}")
                a("s_cbranch_scc1 L_vnorq")
                a("s_mov_b32 s59, 1")
                a("s_atomic_add s59, s[64:65], 0 glc")
                a("L_vnorq:")
        a("v_mov_b32 v5, v7\nv_mov_b32 v6, v46")
        a(f"s_cmp_lt_u32 s58, {NV}")
        a("s_cbranch_scc1 L_vtile")
        if DYN:
            a("s_mov_b32 s82, s83")
            a("s_cmp_lt_u32 s62, 1024")
            a("s_cbranch_scc0 L_vend")
            if WD8 or BURST:
                for n in range(W, 8): issue(n, False, "s[36:39]", None)
            def dyntile(tag, X, Y, SX, SY, other):
                a(f"L_vd{tag}:")
                a(f"s_waitcnt vmcnt({8 if (BURST or WD8) else W})" + ("" if (BATCH or WGT) else " lgkmcnt(0)"))
                progstamp()
                if BATCH:
                    ticket_top("v" + tag, THR)
                    a("s_mov_b32 s91, s90")
                a("s_add_u32 s58, s58, 1")
                if WGT: wg_ticket("v" + tag, allow_v)
                elif not BATCH: a("s_mov_b32 s91, s59")
                if FAKE: fake_n("s91")
                tile_of("s91", "s62")
                a(f"v_lshlrev_b32 v40, v59, v{SX}")
                a(f"v_cmp_ne_u32 vcc, s6, v{SX+1}")
                a("v_and_b32 v40, 0xffff0000, v40")
                if not NOPUB and not NOSL: a(f"s_cbranch_vccnz L_retry{tag}")
                a(f"L_retry_back{tag}:")
                a("s_lshl_b32 s63, s62, 13")
                a(f"s_lshl_b32 s83, s91, 7")
                a("s_add_u32 s83, s83, s84")
                if RQ < 0 and not BATCH and not WGT:
                    a("s_cmp_lt_u32 s62, 1024")
                    a(f"s_cbranch_scc0 L_vdnorq{tag}")
                    a("s_mov_b32 s59, 1")
                    a("s_atomic_add s59, s[64:65], 0 glc")
                    a(f"L_vdnorq{tag}:")
                a("v_add_u32 v7, s63, v4\nv_add_u32 v46, 4096, v7")
                if NOSL: a("s_mov_b32 s83, 0x7f000000")
                a(f"buffer_load_dwordx2 v[{SY}:{SY+1}], v57, s[44:47], s83 offen {SLF}")
                def ld(j, base):
                    a(f"buffer_load_dwordx4 v[{base+4*j}:{base+4*j+3}], v{7 if j < 4 else 46}, s[36:39], 0 offen offset:{(j & 3) * 1024} {NT}")
                if BURST:
                    for j in range(8): ld(j, Y)
                pcompute(tag)
                prepB(0)
                for j in range(8):
                    if j < 7: prepB(j + 1)
                    else: a.nop(1)
                    a(f"s_waitcnt vmcnt({16 - j if BURST else (8 if WD8 else (W if j < W else W - 1))})")
                    b = 48 + 4 * (j & 1); sl = X + 4 * j
                    a(f"v_mfma_f32_16x16x32_bf16 v[16:19], v[{sl}:{sl+3}], v[{b}:{b+3}], v[16:19]")
                    if not BURST:
                        if WD8: issue(j, True, "s[36:39]", "s[36:39]")
                        else: issue_after(j, "s[36:39]", "s[36:39]")
                    if j == RQ and not BATCH and not WGT:
                        a("s_cmp_lt_u32 s62, 1024")
                        a(f"s_cbranch_scc0 L_vdnorq{tag}")
                        a("s_mov_b32 s59, 1")
                        a("s_atomic_add s59, s[64:65], 0 glc")
                        a(f"L_vdnorq{tag}:")
                a("s_mov_b32 s82, s83")
                if not BURST: a("v_mov_b32 v5, v7\nv_mov_b32 v6, v46")
                a("s_cmp_lt_u32 s62, 1024")
                if other is None:
                    a("s_cbranch_scc0 L_vend")
                else:
                    a(f"s_cbranch_scc1 L_vd{other}")
            if BURST:
                dyntile("a", SL, SL + 32, 60, 62, None)
                dyntile("b", SL + 32, SL, 62, 60, "a")
            else:
                dyntile("a", SL, SL, 60, 62, None)
                dyntile("b", SL, SL, 62, 60, "a")
            a("L_vend:")
    stamp(3)
    allreduce("v_add_f32", 20, 27)
    a("v_mul_f32 v23, 0.5, v20")
    if HILO:
        for r in range(4):
            a(f"v_add_f32_dpp v{16+r}, v{16+r}, v{16+r} row_ror:8 row_mask:0xf bank_mask:0xf")
    a("s_mov_b32 s52, 0xff00ff00\ns_mov_b32 s53, 0xff00ff00")
    a("v_lshl_add_u32 v26, v2, 5, v3")
    a("v_lshlrev_b32 v26, 2, v26")
    a(f"s_lshl_b32 s30, s3, 9")
    a("v_add_u32 v26, s30, v26")
    a("v_cndmask_b32 v24, v16, v17, s[52:53]")
    a("v_cndmask_b32 v25, v18, v19, s[52:53]")
    a("s_lshl_b32 s30, s3, 3")
    a("v_mov_b32 v27, s30")
    a(f"ds_write_b32 v26, v24 offset:{L_O}")
    a(f"ds_write_b32 v26, v25 offset:{L_O + 64}")
    a("s_mov_b64 exec, 1")
    a(f"ds_write_b64 v27, v[22:23] offset:{L_ML}")
    a("s_mov_b64 exec, -1")
    a("s_waitcnt lgkmcnt(0)")
    a("s_barrier")
    stamp(4)
    if PROG:
        a("s_waitcnt vmcnt(0)")
        a("s_lshl_b32 s30, s2, 3\ns_add_u32 s30, s30, s3\ns_lshl_b32 s30, s30, 9")
        a(f"s_add_u32 s30, s30, {TS + 0x100000}")
        a("v_lshl_add_u32 v62, v0, 2, s30")
        a("buffer_store_dword v128, v62, s[44:47], 0 offen")
        a("buffer_store_dword v129, v62, s[44:47], 0 offen offset:256")
        a("s_mov_b32 s72, s58")
    stamp_store(6)
    a("s_endpgm")
    sfx = [f"w{x}" for x in sorted(set(AW))] if (AW and LT and DYN) else [""]
    for tag in [t + x for x in sfx for t in ((["s", "l", "a", "b"] if LT else ["s", "a", "b"]) if DYN else ["s"])]:
        a(f"L_rare{tag}:")
        a("v_mov_b32 v41, v40")
        for n in (8, 4, 2):
            a.nop(2)
            a(f"v_max_f32_dpp v41, v41, v41 row_ror:{n} row_mask:0xf bank_mask:0xf")
        a.nop(2)
        a("v_max_f32_dpp v41, v41, v41 row_bcast:15 row_mask:0xa bank_mask:0xf")
        a.nop(2)
        a("v_max_f32_dpp v41, v41, v41 row_bcast:31 row_mask:0xc bank_mask:0xf")
        a.nop(1)
        a("v_readlane_b32 s30, v41, 63")
        a.nop(2)
        a("v_mov_b32 v22, s30")
        a("v_mul_f32 v42, s60, v22")
        a("v_sub_f32 v43, v21, v42")
        a("v_exp_f32 v43, v43")
        a("v_mov_b32 v21, v42")
        for r in (16, 17, 18, 19, 20):
            a(f"v_mul_f32 v{r}, v{r}, v43")
        a(f"s_branch L_back{tag}")
    if DYN:
        for tag, SX in [(t + x, r) for x in sfx for t, r in (("a", 60), ("b", 62))]:
            a(f"L_retry{tag}:")
            a("s_mov_b32 s49, 0")
            a(f"L_retry_loop{tag}:")
            a(f"buffer_load_dwordx2 v[{SX}:{SX+1}], v57, s[44:47], s82 offen sc1")
            a("s_waitcnt vmcnt(0)")
            a(f"v_cmp_ne_u32 vcc, s6, v{SX+1}")
            a(f"s_cbranch_vccz L_retry_done{tag}")
            a("s_add_u32 s49, s49, 1")
            a("s_sleep 2")
            a(f"s_cmp_lt_u32 s49, {POLLMAX}")
            a(f"s_cbranch_scc1 L_retry_loop{tag}")
            if dbg: a("v_mov_b32 v41, 6\nv_mov_b32 v42, 24\nglobal_atomic_or v42, v41, s[26:27]")
            a(f"L_retry_done{tag}:")
            a(f"v_lshlrev_b32 v40, v59, v{SX}")
            a("v_and_b32 v40, 0xffff0000, v40")
            a(f"s_branch L_retry_back{tag}")

    a("L_helperA:")
    if SD: stamp(1)
    T0[0] = 60
    WB = 64
    if DYN:
        a(f"""
        s_cmp_eq_u32 s5, 0
        s_cbranch_scc0 L_nozero
        s_mul_i32 s30, s4, {CSTR}
        s_add_u32 s30, s30, {CNT if CBASE is None else CBASE}
        v_mul_u32_u24 v4, {VOFF}, v0
        v_add_u32 v4, s30, v4
        v_mov_b32 v5, 0
        s_mov_b64 exec, 3
        buffer_store_dword v5, v4, s[44:47], 0 offen sc1
        s_mov_b64 exec, -1
        L_nozero:
        v_lshlrev_b32 v4, 3, v0
        v_mov_b32 v6, -1
        v_mov_b32 v7, -1
        ds_write_b64 v4, v[6:7] offset:{L_ID}
        v_mov_b32 v6, 0
        v_mov_b32 v7, 0
        ds_write_b64 v4, v[6:7] offset:{L_TQ}
        """)
    a(f"v_mov_b32 v4, {L_FLAG}\nv_mov_b32 v6, 0\nv_mov_b32 v7, 0\nds_write_b64 v4, v[6:7]")
    a("s_mul_i32 s48, s5, 72")
    ln_loads(48)
    a(f"""
    s_mov_b32 s36, s14
    s_mov_b32 s37, s15
    s_mov_b32 s38, {576*8192}
    s_mov_b32 s39, 0x20000
    v_add_u32 v23, s48, v2
    v_lshlrev_b32 v23, 13, v23
    v_lshl_add_u32 v23, v3, 4, v23
    s_lshl_b32 s30, s4, 8
    v_add_u32 v23, s30, v23
    """)
    for j in range(18):
        a(f"s_mov_b32 s31, {j*32768}")
        a(f"buffer_load_dwordx4 v[{WB+4*j}:{WB+4*j+3}], v23, s[36:39], s31 offen {NT}")
    if B0 or ORD3: a("s_waitcnt lgkmcnt(0)\ns_barrier")
    make_masks(20, 21)
    a("s_waitcnt vmcnt(18)")
    if ORD2: a("s_barrier")
    if SD: stamp(2)
    ln_compute()
    if SD: stamp(3)
    job4(WB, 18, 0)
    a(f"s_waitcnt lgkmcnt(0)")
    make_tag()
    a(f"""
    v_lshlrev_b32 v24, 4, v0
    s_lshl_b32 s30, s2, 10
    s_add_u32 s30, s30, {QG}
    v_add_u32 v24, s30, v24
    v_mov_b32 v21, s6
    v_mov_b32 v23, s6
    buffer_store_dwordx4 v[20:23], v24, s[44:47], 0 offen {QSF}
    """)
    stamp(4 if SD else 1)
    def wo_addr():
        a(f"""
        s_mov_b32 s36, s16
        s_mov_b32 s37, s17
        s_mov_b32 s38, {4096*1152}
        s_mov_b32 s39, 0x20000
        v_lshrrev_b32 v58, 3, v3
        v_lshl_add_u32 v58, v2, 1, v58
        s_lshl_b32 s30, s2, 4
        v_add_u32 v58, s30, v58
        s_movk_i32 s31, 1152
        v_mul_lo_u32 v58, v58, s31
        v_and_b32 v59, 7, v3
        v_lshl_add_u32 v58, v59, 4, v58
        v_add_u32 v59, 9216, v58
        """)
    def wo_issue():
        for bb in range(2):
            for blk in range(9):
                j = bb * 9 + blk
                a(f"buffer_load_dwordx4 v[{WB+4*j}:{WB+4*j+3}], v{58+bb}, s[36:39], 0 offen offset:{blk*128} {NT}")
    def wo_loads():
        wo_addr(); wo_issue()
    if not WOLATE and not WOG: wo_loads()
    a(f"""
    s_lshl_b32 s30, s4, 13
    s_add_u32 s30, s30, {QG}
    v_lshlrev_b32 v4, 4, v0
    v_add_u32 v4, s30, v4
    v_add_u32 v5, 4096, v4
    """)
    def qloads():
        for p in range(8):
            a(f"buffer_load_dwordx4 v[{24+4*p}:{24+4*p+3}], v{4 + (p >> 2)}, s[44:47], 0 offen offset:{(p & 3) * 1024} {QLF}")
    if WOG:
        if ORD3 and ACKW: a("s_waitcnt vmcnt(0)")
        qloads()
        if ORD2 or ORD3: a("s_barrier")
        if not WOT: wo_loads()
        a("s_mov_b32 s49, 0")
        a(f"s_waitcnt vmcnt({0 if WOT else 18})")
        if SD: stamp(5)
        a("s_branch L_q_chk")
        a("L_q_poll:")
        qloads()
        a("s_waitcnt vmcnt(0)")
        a("L_q_chk:")
    else:
        poll_begin("q")
        qloads()
        a("s_waitcnt vmcnt(0)")
    tagcheck(6, [24 + 4*p + o for p in range(8) for o in (1, 3)])
    poll_end("q", 6, code=1)
    for o in (0, 2):
        a(f"v_add_f32 v{24+o}, v{24+o}, v{28+o}")
        a(f"v_add_f32 v{32+o}, v{32+o}, v{36+o}")
        a(f"v_add_f32 v{40+o}, v{40+o}, v{44+o}")
        a(f"v_add_f32 v{48+o}, v{48+o}, v{52+o}")
        a(f"v_add_f32 v{24+o}, v{24+o}, v{32+o}")
        a(f"v_add_f32 v{40+o}, v{40+o}, v{48+o}")
        a(f"v_add_f32 v{24+o}, v{24+o}, v{40+o}")
    a("v_cvt_pk_bf16_f32 v24, v24, v26")
    a("v_and_b32 v25, 8, v3\nv_add_u32 v25, v25, v3\nv_lshl_add_u32 v25, v2, 5, v25\nv_lshlrev_b32 v25, 1, v25")
    a(f"ds_write_b16 v25, v24 offset:{L_Q}")
    a(f"ds_write_b16_d16_hi v25, v24 offset:{L_Q + 16}")
    a("s_waitcnt lgkmcnt(0)")
    if QF: a(f"v_mov_b32 v25, {L_QF}\nv_mov_b32 v26, 1\nds_write_b32 v25, v26")
    if not SD: stamp(2)
    if not QF: a("s_barrier")
    if WOLATE and not WOG: wo_loads()
    if TLB:
        a(f"""
        s_lshl_b32 s30, s4, 23
        s_add_u32 s32, s10, s30
        s_addc_u32 s33, s11, 0
        s_mov_b32 s34, 0x800000
        s_mov_b32 s35, 0x20000
        s_add_u32 s40, s12, s30
        s_addc_u32 s41, s13, 0
        s_mov_b32 s42, 0x800000
        s_mov_b32 s43, 0x20000
        s_mul_i32 s31, s5, {4*NV*8192}
        v_lshlrev_b32 v4, {TLB}, v0
        s_mul_i32 s30, s2, 0x1500
        s_and_b32 s30, s30, 0x7f00
        v_mul_u32_u24 v5, 0x1100, v0
        v_add_u32 v5, s30, v5
        v_and_b32 v5, 0x7f00, v5
        v_add_u32 v4, v4, v5
        v_add_u32 v5, s31, v4
        v_mov_b32 v7, 0x7f000000
        v_cmp_gt_u32 vcc, {4*NV*8192}, v4
        v_add_u32 v6, {POOL0*8192}, v4
        s_nop 0
        v_cndmask_b32 v5, v7, v5, vcc
        buffer_load_dword v196, v5, s[40:43], 0 offen {NT}
        buffer_load_dword v197, v6, s[40:43], 0 offen {NT}
        buffer_load_dword v198, v6, s[32:35], 0 offen {NT}
        """)
    if WOT: wo_addr()
    AB = 140; PR = 176
    job8_zero(AB)
    for t in range(3): a(f"v_mov_b32 v{PR+4*t+3}, s6")
    job8_addr(YA, 20)
    a(f"""
    v_lshrrev_b32 v56, 3, v3
    v_lshl_add_u32 v56, v2, 1, v56
    v_lshl_add_u32 v56, v2, 4, v56
    v_lshlrev_b32 v56, 2, v56
    v_add_u32 v57, 32, v56
    s_mov_b32 s60, {LOG2E:#x}
    """)
    if DYN and not NOPUB:
        wait_kdone("ha", 4)
        a(f"""
        v_lshrrev_b32 v4, 3, v0
        v_and_b32 v4, 3, v4                  ; w
        s_movk_i32 s30, {SSTR}
        v_mul_lo_u32 v5, v4, s30
        v_lshrrev_b32 v6, 5, v0
        v_lshl_add_u32 v5, v6, 8, v5
        v_and_b32 v7, 7, v0
        v_lshl_add_u32 v5, v7, 3, v5         ; LDS score address (minus L_S + NV*256)
        v_lshlrev_b32 v4, 7, v4
        v_lshl_add_u32 v4, v6, 2, v4         ; LDS id address (minus L_ID)
        v_lshlrev_b32 v7, 4, v7              ; j*16
        s_mul_i32 s30, s4, {NPOOL*128}
        s_add_u32 s30, s30, {SG}
        v_add_u32 v7, s30, v7
        v_mov_b32 v9, 0x7f000000
        s_mov_b32 s62, 0x07060302
        v_mov_b32 v25, s6
        v_mov_b32 v27, s6
        s_mov_b32 s49, 0
        L_pub:
        ds_read_b32 v8, v4 offset:{L_ID}
        ds_read_b32 v28, v5 offset:{L_S + NV*256}
        ds_read_b32 v29, v5 offset:{L_S + NV*256 + 64}
        ds_read_b32 v30, v5 offset:{L_S + NV*256 + 128}
        ds_read_b32 v31, v5 offset:{L_S + NV*256 + 192}
        s_waitcnt lgkmcnt(0)
        v_cmp_gt_u32 vcc, {NPOOL}, v8
        s_cbranch_vccz L_pub_done
        v_lshl_add_u32 v6, v8, 7, v7
        v_perm_b32 v24, v29, v28, s62
        v_perm_b32 v26, v31, v30, s62
        v_cndmask_b32 v6, v9, v6, vcc
        buffer_store_dwordx4 v[24:27], v6, s[44:47], 0 offen {PUBF}
        v_add_u32 v4, 8, v4
        v_add_u32 v5, 512, v5
        s_add_u32 s49, s49, 1
        s_waitcnt vmcnt(0)
        s_cmp_lt_u32 s49, {MAXD//2}
        s_cbranch_scc1 L_pub
        L_pub_done:
        """)
    a(f"""
    s_lshl_b32 s30, s2, 11
    s_add_u32 s30, s30, {AG}
    v_lshlrev_b32 v10, 4, v0
    v_add_u32 v10, s30, v10
    v_mov_b32 v11, s30
    s_lshl_b32 s30, s4, 14
    s_add_u32 s30, s30, {AG}
    v_lshlrev_b32 v4, 11, v2
    v_add_u32 v4, s30, v4
    v_add_u32 v5, 8192, v4
    s_lshl_b32 s31, s5, 7
    v_lshl_add_u32 v6, v3, 3, s31
    v_add_u32 v7, v5, v6
    v_add_u32 v6, v4, v6
    v_mov_b32 v8, 0
    v_lshlrev_b32 v9, 3, v0
    v_mov_b32 v41, s6
    v_mov_b32 v43, s6
    v_mov_b32 v45, s6
    v_mov_b32 v47, s6
    s_waitcnt vmcnt(0)
    """)
    a("s_barrier")
    if not SD: stamp(3)
    a(f"""
    ds_read_b128 v[24:27], v8 offset:{L_ML}
    ds_read_b128 v[28:31], v8 offset:{L_ML + 16}
    ds_read_b64 v[32:33], v9 offset:{L_O}
    ds_read_b64 v[34:35], v9 offset:{L_O + 512}
    ds_read_b64 v[36:37], v9 offset:{L_O + 1024}
    ds_read_b64 v[38:39], v9 offset:{L_O + 1536}
    s_waitcnt lgkmcnt(4)
    v_max_f32 v40, v24, v26
    v_max3_f32 v40, v40, v28, v30
    v_sub_f32 v24, v24, v40
    v_sub_f32 v26, v26, v40
    v_sub_f32 v28, v28, v40
    v_sub_f32 v30, v30, v40
    v_mul_f32 v24, s60, v24
    v_mul_f32 v26, s60, v26
    v_mul_f32 v28, s60, v28
    v_mul_f32 v30, s60, v30
    v_exp_f32 v24, v24
    v_exp_f32 v26, v26
    v_exp_f32 v28, v28
    v_exp_f32 v30, v30
    s_waitcnt lgkmcnt(0)
    v_mul_f32 v42, v24, v25
    v_mul_f32 v44, v24, v32
    v_mul_f32 v46, v24, v33
    v_fmac_f32 v42, v26, v27
    v_fmac_f32 v44, v26, v34
    v_fmac_f32 v46, v26, v35
    v_fmac_f32 v42, v28, v29
    v_fmac_f32 v44, v28, v36
    v_fmac_f32 v46, v28, v37
    v_fmac_f32 v42, v30, v31
    v_fmac_f32 v44, v30, v38
    v_fmac_f32 v46, v30, v39
    buffer_store_dwordx4 v[44:47], v10, s[44:47], 0 offen {AGF}
    s_mov_b64 exec, 1
    buffer_store_dwordx4 v[40:43], v11, s[44:47], 0 offen offset:1024 {AGF}
    s_mov_b64 exec, -1
    """)
    def agloads(G):
        a(f"""
        buffer_load_dwordx2 v[{G}:{G+1}], v6, s[44:47], 0 offen {AGLF}
        buffer_load_dwordx2 v[{G+2}:{G+3}], v7, s[44:47], 0 offen {AGLF}
        buffer_load_dwordx4 v[{G+4}:{G+7}], v4, s[44:47], 0 offen offset:1024 {AGLF}
        buffer_load_dwordx4 v[{G+8}:{G+11}], v5, s[44:47], 0 offen offset:1024 {AGLF}
        """)
    def agcheck(G):
        tagcheck(8, [G+1, G+3, G+5, G+7, G+9, G+11])
        a("v_cmp_ne_u32 vcc, 0, v8")
    if PIPE:
        S = [200, 212, 224]
        agloads(S[0]); a(f"s_sleep {AGSLEEP}")
        agloads(S[1]); a(f"s_sleep {AGSLEEP}")
        agloads(S[2])
        a("s_mov_b32 s49, 0")
        a("L_ag_poll:")
        for k in range(3):
            a("s_waitcnt vmcnt(8)")
            agcheck(S[k])
            a(f"s_cbranch_vccz L_ag_use{k}")
            agloads(S[k])
        a("s_add_u32 s49, s49, 1")
        a(f"s_cmp_lt_u32 s49, {POLLMAX}")
        a("s_cbranch_scc1 L_ag_poll")
        if dbg: a("v_mov_b32 v60, 2\nv_mov_b32 v61, 8\nglobal_atomic_or v61, v60, s[26:27]")
        for k in (2, 1, 0):
            a(f"L_ag_use{k}:")
            for o in (0, 2, 4, 6, 8, 10): a(f"v_mov_b32 v{24+o}, v{S[k]+o}")
            if k != 0: a("s_branch L_ag_got")
        a("L_ag_got:")
    elif WOT:
        agloads(24)
        wo_issue()
        a("s_mov_b32 s49, 0")
        a("s_waitcnt vmcnt(18)")
        a("s_branch L_ag_chk")
        a("L_ag_poll:")
        agloads(24)
        a("s_waitcnt vmcnt(0)")
        a("L_ag_chk:")
        tagcheck(8, [25, 27, 29, 31, 33, 35])
        poll_end("ag", 8, sleep=AGPS, code=2)
    elif YBL:
        agloads(24)
        a(f"v_mov_b32 v60, {L_QF}\nv_mov_b32 v61, 2\nds_write_b32 v60, v61")
        a("s_mov_b32 s49, 0")
        a("s_branch L_ag_chk")
        a("L_ag_poll:")
        agloads(24)
        a("L_ag_chk:")
        a("s_waitcnt vmcnt(0)")
        tagcheck(8, [25, 27, 29, 31, 33, 35])
        poll_end("ag", 8, sleep=AGPS, code=2)
    else:
        poll_begin("ag")
        agloads(24)
        a("s_waitcnt vmcnt(0)")
        tagcheck(8, [25, 27, 29, 31, 33, 35])
        poll_end("ag", 8, sleep=AGPS, code=2)
    if not SD: stamp(4)
    a("v_max_f32 v36, v28, v32")
    allreduce("v_max_f32", 36, 37, rors=())
    a(f"""
    v_sub_f32 v28, v28, v36
    v_sub_f32 v32, v32, v36
    v_mul_f32 v28, s60, v28
    v_mul_f32 v32, s60, v32
    v_exp_f32 v28, v28
    v_exp_f32 v32, v32
    s_nop 0
    v_mul_f32 v38, v28, v30
    v_mul_f32 v39, v28, v24
    v_fmac_f32 v38, v32, v34
    v_fmac_f32 v39, v32, v26
    v_mov_b32 v36, v38
    v_mov_b32 v37, v39
    s_nop 0
    v_permlane16_swap_b32 v38, v36
    v_permlane16_swap_b32 v39, v37
    v_add_f32 v38, v38, v36
    v_add_f32 v39, v39, v37
    v_mov_b32 v36, v38
    v_mov_b32 v37, v39
    s_nop 0
    v_permlane32_swap_b32 v38, v36
    v_permlane32_swap_b32 v39, v37
    v_add_f32 v38, v38, v36
    v_add_f32 v39, v39, v37
    v_rcp_f32 v40, v38
    s_nop 0
    """)
    div_refined(41, 39, 38, 40, 37)
    a("v_cvt_pk_bf16_f32 v41, v41, v41")
    a(f"""
    ds_bpermute_b32 v44, v56, v41
    ds_bpermute_b32 v45, v57, v41
    s_waitcnt vmcnt(0) lgkmcnt(0)
    """)
    job8(WB, 2, [44, 45], AB)
    job8_publish(AB, PR, 20, YAF)
    if not SD: stamp(5)
    stamp_store(6)
    a("s_endpgm")

    a("L_helperB:")
    if ORD2: a("s_barrier\ns_barrier")
    if ORD3: a("s_barrier")
    T0[0] = 46
    W1B = 52; W2B = 148
    a(f"""
    s_mul_i32 s50, s2, 43691
    s_lshr_b32 s50, s50, 18
    s_mul_i32 s30, s50, 6
    s_sub_u32 s51, s2, s30           ; rs
    s_mul_i32 s48, s51, 96
    """)
    ln_loads(48)
    a(f"""
    s_mov_b32 s36, s20
    s_mov_b32 s37, s21
    s_mov_b32 s38, {576*9216}
    s_mov_b32 s39, 0x20000
    v_add_u32 v23, s48, v2
    s_movk_i32 s31, 9216
    v_mul_lo_u32 v23, v23, s31
    v_lshl_add_u32 v23, v3, 4, v23
    s_lshl_b32 s30, s50, 8
    v_add_u32 v23, s30, v23
    s_cmp_lt_u32 s2, 216
    s_cbranch_scc1 L_hasw1
    v_mov_b32 v23, 0x7f000000
    L_hasw1:
    """)
    if B0: a("s_barrier")
    for j in range(24):
        a(f"s_mov_b32 s31, {j*36864}")
        a(f"buffer_load_dwordx4 v[{W1B+4*j}:{W1B+4*j+3}], v23, s[36:39], s31 offen {NT}")
    def w2_loads():
        a(f"""
        s_mul_i32 s86, s2, 9
        s_lshr_b32 s87, s86, 2           ; b0
        s_add_u32 s86, s86, 9
        s_lshr_b32 s86, s86, 2
        s_sub_u32 s86, s86, s87          ; cnt
        s_mov_b32 s40, s22
        s_mov_b32 s41, s23
        s_mov_b32 s42, {4608*1152}
        s_mov_b32 s43, 0x20000
        v_lshrrev_b32 v40, 3, v3
        v_lshl_add_u32 v40, v2, 1, v40
        s_lshl_b32 s30, s87, 3
        v_add_u32 v40, s30, v40
        s_movk_i32 s31, 1152
        v_mul_lo_u32 v40, v40, s31
        v_and_b32 v41, 7, v3
        v_lshl_add_u32 v40, v41, 4, v40
        v_add_u32 v41, 9216, v40
        v_add_u32 v42, 18432, v40
        s_cmp_eq_u32 s86, 3
        s_cbranch_scc1 L_cnt3
        v_mov_b32 v42, 0x7f000000
        L_cnt3:
        """)
        for bb in range(3):
            for blk in range(9):
                j = bb * 9 + blk
                a(f"buffer_load_dwordx4 v[{W2B+4*j}:{W2B+4*j+3}], v{40+bb}, s[40:43], 0 offen offset:{blk*128} {NT}")
    if ORD3: a("s_barrier")
    if W2EARLY: w2_loads()
    make_masks(20, 21)
    if not QF: a("s_barrier")
    if NOFFN: a("s_waitcnt vmcnt(0) lgkmcnt(0)"); make_tag(); a("s_branch L_ffn_done")
    nyo = 27 if W2EARLY else 0
    a(f"s_waitcnt vmcnt({24 + nyo})")
    ln_compute()
    job4(W1B, 24, nyo)
    a(f"s_waitcnt lgkmcnt(0)")
    make_tag()
    a(f"""
    v_lshlrev_b32 v24, 4, v0
    s_mul_i32 s30, s51, {4608*8}
    s_lshl_b32 s31, s50, 10
    s_add_u32 s30, s30, s31
    s_add_u32 s30, s30, {HG}
    v_add_u32 v24, s30, v24
    v_mov_b32 v21, s6
    v_mov_b32 v23, s6
    s_cmp_lt_u32 s2, 216
    s_cbranch_scc0 L_nopubh
    buffer_store_dwordx4 v[20:23], v24, s[44:47], 0 offen {HF}
    L_nopubh:
    """)
    stamp(1)
    if not W2EARLY: w2_loads()
    a(f"""
    v_lshrrev_b32 v4, 5, v0
    s_mov_b32 s31, {4608*8}
    v_mul_lo_u32 v4, v4, s31
    v_and_b32 v5, 31, v0
    s_lshl_b32 s30, s86, 3
    v_cmp_gt_u32 s[54:55], s30, v5
    s_lshl_b32 s30, s87, 3
    v_add_u32 v5, s30, v5
    v_lshrrev_b32 v6, 4, v5
    v_lshlrev_b32 v6, 3, v6                 ; *8 lanes
    v_and_b32 v7, 7, v5
    v_add_u32 v6, v6, v7
    v_lshlrev_b32 v6, 4, v6
    v_bfe_u32 v7, v5, 3, 1
    v_lshl_add_u32 v6, v7, 3, v6
    v_add_u32 v4, v4, v6
    v_add_u32 v4, {HG}, v4
    v_add_u32 v5, {2*4608*8}, v4
    v_add_u32 v6, {4*4608*8}, v4
    """)
    AB = 52; PR = 88
    job8_zero(AB)
    for t in range(3): a(f"v_mov_b32 v{PR+4*t+3}, s6")
    job8_addr(YBb, 20)
    if HLATE: wait_kdone("hb", 40)
    poll_begin("h")
    a(f"""
    buffer_load_dwordx2 v[28:29], v4, s[44:47], 0 offen {HF}
    buffer_load_dwordx2 v[30:31], v5, s[44:47], 0 offen {HF}
    buffer_load_dwordx2 v[32:33], v6, s[44:47], 0 offen {HF}
    s_waitcnt vmcnt(0)
    """)
    tagcheck(8, [29, 31, 33])
    a("v_cndmask_b32 v8, 0, v8, s[54:55]")
    poll_end("h", 8, sleep=HSLEEP, code=3)
    a(f"""
    v_add_f32 v28, v28, v30
    v_add_f32 v28, v28, v32
    v_cndmask_b32 v28, 0, v28, s[54:55]
    v_mov_b32 v29, v28
    s_nop 1
    v_permlane32_swap_b32 v28, v29
    v_add_f32 v28, v28, v29
    """)
    to_bf16f(28, 28)
    a(f"""
    s_mov_b32 s60, {LOG2E:#x}
    v_mul_f32 v29, s60, v28
    v_exp_f32 v29, -v29
    s_nop 0
    v_add_f32 v29, 1.0, v29
    v_rcp_f32 v30, v29
    s_nop 0
    v_mul_f32 v31, v28, v30
    v_cvt_pk_bf16_f32 v31, v31, v31
    v_lshrrev_b32 v32, 3, v3
    v_lshl_add_u32 v32, v2, 1, v32
    v_lshlrev_b32 v32, 2, v32
    v_add_u32 v33, 32, v32
    v_add_u32 v34, 64, v32
    ds_bpermute_b32 v36, v32, v31
    ds_bpermute_b32 v37, v33, v31
    ds_bpermute_b32 v38, v34, v31
    s_waitcnt lgkmcnt(0)
    """)
    job8(W2B, 3, [36, 37, 38], AB)
    job8_finish(AB, PR)
    if NOFFN: a("L_ffn_done:"); [a(f"v_mov_b32 v{PR+4*t+3}, s6") for t in range(3)]; job8_addr(YBb, 20)
    stamp(2)
    def yaddr():
        if YPAD:
            a(f"""
            s_lshl_b32 s30, s2, 15
            v_lshrrev_b32 v4, 2, v0
            v_lshlrev_b32 v4, 7, v4
            v_and_b32 v5, 3, v0
            v_lshl_add_u32 v4, v5, 4, v4
            v_add_u32 v4, s30, v4
            v_add_u32 v5, 8192, v4
            v_add_u32 v6, 16384, v4
            v_add_u32 v7, 24576, v4
            """)
        else:
            a(f"""
            s_lshl_b32 s30, s2, {YSH}
            v_lshlrev_b32 v4, 4, v0
            v_add_u32 v4, s30, v4
            v_add_u32 v5, 4096, v4
            v_add_u32 v6, 8192, v4
            v_add_u32 v7, 12288, v4
            """)
        a(f"s_mov_b32 s88, {YBb}\ns_mov_b32 s89, {YA}")
    def yloads(G, sbase, fl):
        for i in range(NL):
            if YPAD:
                a(f"s_add_u32 s90, {sbase}, {(i & 3) * 2048}")
                a(f"buffer_load_dwordx4 v[{G+4*i}:{G+4*i+3}], v{4 + (i >> 2)}, s[44:47], s90 offen {fl}")
            else:
                a(f"buffer_load_dwordx4 v[{G+4*i}:{G+4*i+3}], v{4 + (i >> 2)}, s[44:47], {sbase} offen offset:{(i & 3)*1024} {fl}")
    def ycheck(G):
        tagcheck(8, [G + 4*i + 3 for i in range(NL)])
        a("v_cmp_ne_u32 vcc, 0, v8")
    def ysum(d, G):
        st = 1
        while st < NL:
            for i in range(0, NL, 2 * st):
                x, y = G + 4*i, G + 4*(i + st)
                a(f"v_pk_add_f32 v[{x}:{x+1}], v[{x}:{x+1}], v[{y}:{y+1}]")
                a(f"v_add_f32 v{x+2}, v{x+2}, v{y+2}")
            st *= 2
        R = [G, G + 1, G + 2]; Tm = [G + 4, G + 5, G + 6]
        a.nop(1)
        for n in ((2, 4, 8) if R96 else (4, 8)):
            for x in R: a(f"v_add_f32_dpp v{x}, v{x}, v{x} row_ror:{n} row_mask:0xf bank_mask:0xf")
        for sw in ("16", "32"):
            for x, t in zip(R, Tm): a(f"v_mov_b32 v{t}, v{x}")
            for x, t in zip(R, Tm): a(f"v_permlane{sw}_swap_b32 v{x}, v{t}")
            for x, t in zip(R, Tm): a(f"v_add_f32 v{x}, v{x}, v{t}")
        for k, x in enumerate(R): a(f"v_cvt_pk_bf16_f32 v{d+k}, v{x}, v{x}")
        for k in range(3): a(f"v_and_b32 v{d+k}, 0xffff0000, v{d+k}")
    GA, GB2 = 100, 164
    a(f"""
    s_mov_b32 s32, s8
    s_mov_b32 s33, s9
    s_mov_b32 s34, 1152
    s_mov_b32 s35, 0x20000
    s_lshr_b32 s30, s2, {5 if R96 else 4}
    s_mul_i32 s30, s30, 192
    s_and_b32 s31, s2, {31 if R96 else 15}
    s_lshl_b32 s31, s31, {1 if R96 else 2}
    s_add_u32 s30, s30, s31
    v_and_b32 v10, {1 if R96 else 3}, v0
    v_add_u32 v10, s30, v10
    v_lshlrev_b32 v10, 1, v10
    buffer_load_ushort v12, v10, s[32:35], 0 offen
    buffer_load_ushort v13, v10, s[32:35], 0 offen offset:128
    buffer_load_ushort v14, v10, s[32:35], 0 offen offset:256
    s_mov_b32 s36, s24
    s_mov_b32 s37, s25
    s_mov_b32 s38, 1152
    s_mov_b32 s39, 0x20000
    """)
    yaddr()
    a("s_waitcnt vmcnt(0)")
    a("v_lshlrev_b32 v12, 16, v12\nv_lshlrev_b32 v13, 16, v13\nv_lshlrev_b32 v14, 16, v14")
    stamp(3)
    a("s_barrier")
    if YBL:
        a(f"v_mov_b32 v44, {L_QF}\ns_mov_b32 s49, 0\nL_ybw:\nds_read_b32 v45, v44\ns_add_u32 s49, s49, 1\ns_waitcnt lgkmcnt(0)\nv_readfirstlane_b32 s30, v45")
        a(f"s_cmp_ge_u32 s49, {POLLMAX * 16}\ns_cbranch_scc1 L_ybd\ns_cmp_eq_u32 s30, 2\ns_cbranch_scc0 L_ybw\nL_ybd:")
    job8_store(PR, 20, YBSF)
    a(f"s_cmp_lt_u32 s2, {NRED}")
    a("s_cbranch_scc0 L_notred2")
    poll_begin("yb")
    yloads(GB2, "s88", YBLF)
    a("s_waitcnt vmcnt(0)")
    tagcheck(8, [GB2 + 4*i + 3 for i in range(NL)])
    poll_end("yb", 8, sleep=YBPS, code=4)
    yloads(GA, "s89", YALF)
    ysum(40, GB2)
    if PIPE:
        yloads(GB2, "s89", YALF)
        a("s_mov_b32 s49, 0")
        a("L_ya_poll:")
        a(f"s_waitcnt vmcnt({NL})")
        ycheck(GA)
        a("s_cbranch_vccz L_ya_useA")
        yloads(GA, "s89", YALF)
        a(f"s_waitcnt vmcnt({NL})")
        ycheck(GB2)
        a("s_cbranch_vccz L_ya_useB")
        yloads(GB2, "s89", YALF)
        a("s_add_u32 s49, s49, 1")
        a(f"s_cmp_lt_u32 s49, {POLLMAX}")
        a("s_cbranch_scc1 L_ya_poll")
        if dbg: a("v_mov_b32 v46, 5\nv_mov_b32 v47, 20\nglobal_atomic_or v47, v46, s[26:27]")
        a("L_ya_useB:")
        stamp(4)
        ysum(24, GB2)
        a("s_branch L_ya_fin")
        a("L_ya_useA:")
        stamp(4)
        ysum(24, GA)
        a("L_ya_fin:")
    else:
        a("s_mov_b32 s49, 0")
        a("s_branch L_ya_chk")
        a("L_ya_poll:")
        yloads(GA, "s89", YALF)
        a("L_ya_chk:")
        a("s_waitcnt vmcnt(0)")
        tagcheck(8, [GA + 4*i + 3 for i in range(NL)])
        poll_end("ya", 8, sleep=YAPS, code=5)
        stamp(4)
        ysum(24, GA)
    for k in range(3): a(f"v_add_f32 v{24+k}, v{12+k}, v{24+k}")
    for k in range(3): a(f"v_cvt_pk_bf16_f32 v{24+k}, v{24+k}, v{24+k}")
    for k in range(3): a(f"v_and_b32 v{24+k}, 0xffff0000, v{24+k}")
    for k in range(3): a(f"v_add_f32 v{24+k}, v{24+k}, v{40+k}")
    for k in range(3): a(f"v_cvt_pk_bf16_f32 v{24+k}, v{24+k}, v{24+k}")
    a(f"""
    s_mov_b64 exec, {3 if R96 else 15}
    buffer_store_short v24, v10, s[36:39], 0 offen
    buffer_store_short v25, v10, s[36:39], 0 offen offset:128
    buffer_store_short v26, v10, s[36:39], 0 offen offset:256
    s_mov_b64 exec, -1
    s_cmp_eq_u32 s2, 0
    s_cbranch_scc0 L_notred2
    v_mov_b32 v4, {EPOCH}
    v_mov_b32 v5, s6
    s_mov_b64 exec, 1
    buffer_store_dword v5, v4, s[44:47], 0 offen sc1
    s_mov_b64 exec, -1
    L_notred2:
    """)
    stamp(5)
    stamp_store(6, t=46)
    if AGG:
        a("s_cmp_eq_u32 s2, 0\ns_cbranch_scc0 L_end")
        a("s_mov_b32 s49, 0\nL_aggw:\ns_sleep 64\ns_add_u32 s49, s49, 1\ns_cmp_lt_u32 s49, 40\ns_cbranch_scc1 L_aggw")
        Q = [("all", 0, "min"), ("s", 1, "max"), ("s", 2, "max"), ("s", 5, "min"), ("s", 5, "max"), ("s", 3, "min"), ("s", 3, "max"), ("s", 3, "sum"),
             ("a", 1, "max"), ("a", 4, "max"), ("a", 5, "max"), ("b", 4, "max"), ("b", 5, "max"), ("s", 2, "sum"), ("a", 1, "sum"), ("all", 0, "max")]
        a("v_and_b32 v4, 7, v0")
        a("v_cmp_gt_u32 s[52:53], 4, v4\nv_cmp_eq_u32 s[54:55], 4, v4\nv_cmp_eq_u32 s[56:57], 5, v4\nv_cmp_gt_u32 s[58:59], 6, v4")
        for i, (r, idx, op) in enumerate(Q):
            a(f"v_mov_b32 v{100+i}, {'0x7fffffff' if op == 'min' else ('0x80000000' if op == 'max' else 0)}")
        a(f"v_lshlrev_b32 v5, 6, v0\nv_add_u32 v5, {TS}, v5\ns_mov_b32 s49, 0")
        a("L_agg:")
        a("buffer_load_dwordx4 v[8:11], v5, s[44:47], 0 offen sc1\nbuffer_load_dwordx4 v[12:15], v5, s[44:47], 0 offen offset:16 sc1")
        a("s_lshl_b32 s30, s49, 3\nv_lshrrev_b32 v6, 3, v0\nv_add_u32 v6, s30, v6\nv_cmp_gt_u32 s[60:61], 48, v6\ns_and_b64 s[60:61], s[60:61], s[56:57]")
        a("s_waitcnt vmcnt(0)")
        for k in range(8): a(f"v_subrev_u32 v{8+k}, s70, v{8+k}")
        masks = {"all": "s[58:59]", "s": "s[52:53]", "a": "s[54:55]", "b": "s[60:61]"}
        for i, (r, idx, op) in enumerate(Q):
            neutral = {"min": "0x7fffffff", "max": "0x80000000", "sum": "0"}[op]
            a(f"v_mov_b32 v16, {neutral}")
            a(f"v_cndmask_b32 v16, v16, v{8+idx}, {masks[r]}")
            a({"min": f"v_min_i32 v{100+i}, v{100+i}, v16", "max": f"v_max_i32 v{100+i}, v{100+i}, v16", "sum": f"v_add_u32 v{100+i}, v{100+i}, v16"}[op])
        a("v_add_u32 v5, 4096, v5\ns_add_u32 s49, s49, 1\ns_cmp_lt_u32 s49, 32\ns_cbranch_scc1 L_agg")
        for i, (r, idx, op) in enumerate(Q):
            allreduce({"min": "v_min_i32", "max": "v_max_i32", "sum": "v_add_u32"}[op], 100 + i, 16)
        a("s_mov_b32 s32, s26\ns_mov_b32 s33, s27\ns_mov_b32 s34, 256\ns_mov_b32 s35, 0x20000\nv_mov_b32 v4, 0\ns_mov_b64 exec, 1")
        for i in range(len(Q)): a(f"buffer_store_dword v{100+i}, v4, s[32:35], 0 offen offset:{4*i}")
        a("s_waitcnt vmcnt(0)")
    a("L_end:")
    a("s_endpgm")
    body = a.text()
    txt = f"""{HEADER}; @launch grid=(256,1,1) block=(384,1,1) lds={LDS}
.amdgcn_target "amdgcn-amd-amdhsa--gfx950"
.text
.globl {KN}
.p2align 8
.type {KN},@function
{KN}:
{body}
.section .rodata,"a"
.p2align 6
.amdhsa_kernel {KN}
  .amdhsa_next_free_vgpr 256
  .amdhsa_next_free_sgpr 96
  .amdhsa_accum_offset 256
  .amdhsa_group_segment_fixed_size 0
  .amdhsa_kernarg_size 88
  .amdhsa_user_sgpr_count 2
  .amdhsa_user_sgpr_kernarg_segment_ptr 1
  .amdhsa_system_sgpr_workgroup_id_x 1
.end_amdhsa_kernel
"""
    return txt

if __name__ == "__main__":
    import argparse
    ap = argparse.ArgumentParser()
    ap.add_argument("out")
    ap.add_argument("--nv", type=int, default=24)
    ap.add_argument("--w", type=int, default=8)
    ap.add_argument("--nohilo", action="store_true")
    ap.add_argument("--ts", action="store_true")
    ap.add_argument("--dbg", action="store_true")
    ap.add_argument("--prog", action="store_true")
    ap.add_argument("--w2late", action="store_true")
    ap.add_argument("--wolate", action="store_true")
    ap.add_argument("--nopf", action="store_true")
    ap.add_argument("--ord2", action="store_true"); ap.add_argument("--cstr", type=int, default=256); ap.add_argument("--cbase", type=lambda x: int(x, 0), default=None); ap.add_argument("--ord3", action="store_true"); ap.add_argument("--noackw", action="store_true"); ap.add_argument("--noffn", action="store_true"); ap.add_argument("--hsleep", type=int, default=16); ap.add_argument("--atomrepl", default=None); ap.add_argument("--nowgt", action="store_true"); ap.add_argument("--noatom", action="store_true"); ap.add_argument("--nosl", action="store_true"); ap.add_argument("--fake", action="store_true"); ap.add_argument("--burst", action="store_true"); ap.add_argument("--rq", type=int, default=-1); ap.add_argument("--batch", type=int, default=0); ap.add_argument("--thr", type=int, default=96)
    ap.add_argument("--sd", action="store_true")
    ap.add_argument("--agg", action="store_true")
    ap.add_argument("--agps", type=int, default=0); ap.add_argument("--yaps", type=int, default=0); ap.add_argument("--ybl", action="store_true"); ap.add_argument("--r96", action="store_true"); ap.add_argument("--ypad", action="store_true"); ap.add_argument("--aw", default=None); ap.add_argument("--lt", action="store_true"); ap.add_argument("--wd8", action="store_true"); ap.add_argument("--wot", action="store_true"); ap.add_argument("--pre8", action="store_true"); ap.add_argument("--ybps", type=int, default=0); ap.add_argument("--aglf", default=None); ap.add_argument("--yalf", default=None); ap.add_argument("--pipe", action="store_true"); ap.add_argument("--agsleep", type=int, default=6); ap.add_argument("--noqf", action="store_true"); ap.add_argument("--nohlate", action="store_true"); ap.add_argument("--hf", default="sc1"); ap.add_argument("--qsf", default="sc1"); ap.add_argument("--qlf", default="sc1"); ap.add_argument("--agf", default="sc1"); ap.add_argument("--yaf", default="sc1")
    ap.add_argument("--b0", action="store_true"); ap.add_argument("--wog", action="store_true")
    ap.add_argument("--pubf", default="sc1 nt"); ap.add_argument("--slf", default="sc1 nt"); ap.add_argument("--ybsf", default="sc1"); ap.add_argument("--yblf", default="sc1")
    ap.add_argument("--nopub", action="store_true")
    ap.add_argument("--noyb", action="store_true")
    ap.add_argument("--tlb", type=int, default=0)
    args = ap.parse_args()
    t = gen(NV=args.nv, HILO=not args.nohilo, TSTAMP=args.ts, dbg=args.dbg, W=args.w, PROG=args.prog,
            W2EARLY=not args.w2late, WOLATE=args.wolate, PF=not args.nopf, TLB=args.tlb, NOPUB=args.nopub, NOYB=args.noyb, PUBF=args.pubf, SLF=args.slf, YBSF=args.ybsf, YBLF=args.yblf, HF=args.hf, QSF=args.qsf, QLF=args.qlf, AGF=args.agf, YAF=args.yaf, B0=args.b0, WOG=args.wog, AGG=args.agg, SD=args.sd, ORD2=args.ord2, BURST=args.burst, RQ=args.rq, BATCH=args.batch, THR=args.thr, FAKE=args.fake, NOATOM=args.noatom, NOSL=args.nosl, WGT=not args.nowgt, ATOMREPL=args.atomrepl, CSTR=args.cstr, CBASE=args.cbase, ORD3=args.ord3, ACKW=not args.noackw, NOFFN=args.noffn, HSLEEP=args.hsleep, QF=not args.noqf, HLATE=not args.nohlate, PIPE=args.pipe, AGSLEEP=args.agsleep, AGLF=args.aglf, YALF=args.yalf, AGPS=args.agps, YAPS=args.yaps, YBPS=args.ybps, WOT=args.wot, PRE8=args.pre8, WD8=args.wd8, LT=args.lt, YPAD=args.ypad, R96=args.r96, YBL=args.ybl, AW=(tuple(int(x) for x in args.aw.split(',')) if args.aw else None))
    errs = hazard.check(t)
    for e in errs: print("HAZARD", e)
    open(args.out, "w").write(t)
```

```python
import sys
from asmlib import A, NAME, KN
import hazard

WS_SIZE = 0x1000000
EPOCH = 0
CNT   = 0x1000
QG    = 0x10000
HG    = 0x60000
AG    = 0xA0000
SG    = 0x140000
YA    = 0x600000
YB    = 0x740000
TS    = 0x900000
L_Q   = 0
L_ML  = 256
L_FLAG = 320
L_QF  = 324
L_O   = 512
L_S   = 4096
L_ID  = 53248
SSTR  = 12288
L_TQ  = 53760
LOG2E = 0x3FB8AA3B
SCALE = 0x3DB504F3

HEADER = """; Fused decode step  out = x + MHA(LN(x)) + FFN(LN(x))   for gfx950 (hand-written; emitted by my own generator script).
;
;              (exp(score - true running max) x V on MFMA).  Each wave owns 30 tiles of 32 keys per phase; the last
;              combines the 8 partial softmax results of the head, multiplies 16 rows of wo
; Cross-workgroup hand-offs are {value(s), tag} granules in d_ws written/read with sc1; the tag is derived from an
"""

class K(A):
    noatom = False
    atomrepl = None
    def __call__(self, s=''):
        if self.noatom: s = '\n'.join(l for l in s.split('\n') if 's_atomic_add' not in l)
        if self.atomrepl: s = '\n'.join((self.atomrepl if 's_atomic_add' in l else l) for l in s.split('\n'))
        super().__call__(s)
    def nop(self, n):
        while n > 0:
            m = min(n, 16); self(f"s_nop {m-1}"); n -= m

def gen(NV=24, HILO=True, TSTAMP=False, NT="nt", POLLMAX=40000, LDS=86016, dbg=False, W=8, PROG=False,
        W2EARLY=True, WOLATE=False, PF=True, TLB=0, NOPUB=False, NOYB=False, PUBF='sc1 nt', SLF='sc1 nt', YBSF='sc1', YBLF='sc1', HF='sc1', QSF='sc1', QLF='sc1', AGF='sc1', YAF='sc1', B0=False, WOG=False, AGG=False, SD=False, ORD2=False, BURST=False, RQ=-1, BATCH=0, THR=96, FAKE=False, NOATOM=False, NOSL=False, WGT=True, ATOMREPL=None, CSTR=256, CBASE=None, ORD3=False, ACKW=True, PRE=0, NOFFN=False, NOWO=False, HSLEEP=16, QF=True, HLATE=True, PIPE=False, AGSLEEP=6, AGLF=None, YALF=None, AGPS=0, YAPS=0, YBPS=0, WOT=False, PRE8=False, WD8=False, LT=False, AW=None, YPAD=False, R96=False, YBL=False, TW=False):
    a = K()
    YSH = 15 if YPAD else 14
    YP = 7 if YPAD else 6
    YBb = 0x780000 if YPAD else YB
    NRED = 96 if R96 else 48
    NL = 8 if R96 else 16
    if R96: YSH, YP = 13, 5
    AGLF = AGLF or AGF; YALF = YALF or YAF
    VOFF = 128 if CSTR >= 256 else 4
    a.noatom = NOATOM
    a.atomrepl = ATOMREPL
    DYN = NV < 32
    NP = 32 - NV; POOL0 = 32 * NV; NPOOL = 32 * NP
    MAXD = 48 - NV if NV < 32 else 0
    MAXD -= MAXD & 1
    MAXD = min(MAXD, 32)
    assert 32 * MAXD >= NPOOL
    assert SG + 32 * NPOOL * 128 + 65536 <= YA
    T0 = [60]

    def stamp(i):
        if TSTAMP:
            a(f"s_memrealtime s[{70+2*i}:{71+2*i}]")
            a("s_waitcnt lgkmcnt(0)")
    def stamp_store(nst, t=60):
        if TSTAMP:
            a("s_waitcnt vmcnt(0)")
            a("s_lshl_b32 s30, s2, 3\ns_add_u32 s30, s30, s3\ns_lshl_b32 s30, s30, 6")
            a(f"s_add_u32 s30, s30, {TS}")
            a("s_mov_b64 exec, 1")
            a(f"v_mov_b32 v{t}, s30")
            for i in range(nst):
                a(f"v_mov_b32 v{t+1}, s{70+2*i}")
                a(f"buffer_store_dword v{t+1}, v{t}, s[44:47], 0 offen offset:{4*i}" + (" sc1" if AGG else ""))
            a("s_getreg_b32 s31, hwreg(HW_REG_XCC_ID)")
            a(f"v_mov_b32 v{t+1}, s31")
            a(f"buffer_store_dword v{t+1}, v{t}, s[44:47], 0 offen offset:60")
            a("s_waitcnt vmcnt(0)")
            a("s_mov_b64 exec, -1")

    def make_masks(tmp1, tmp2):
        a(f"v_and_b32 v{tmp1}, 7, v3")
        a(f"v_and_b32 v{tmp2}, 1, v3")
        a(f"v_lshlrev_b32 v{tmp2}, 4, v{tmp2}")
        a(f"v_mov_b32 v12, 0xffff")
        a(f"v_lshlrev_b32 v{tmp2}, v{tmp2}, v12")
        a(f"v_lshrrev_b32 v{tmp1}, 1, v{tmp1}")
        for w in range(4):
            a(f"v_cmp_eq_u32 vcc, {w}, v{tmp1}")
            a.nop(2)
            a(f"v_cndmask_b32 v{12+w}, 0, v{tmp2}, vcc")

    def allreduce(op, v, t, rors=(8, 4, 2, 1), cross=True):
        for n in rors:
            a.nop(2)
            a(f"{op}_dpp v{v}, v{v}, v{v} row_ror:{n} row_mask:0xf bank_mask:0xf")
        if cross:
            for sw in ("16", "32"):
                a(f"v_mov_b32 v{t}, v{v}")
                a.nop(2)
                a(f"v_permlane{sw}_swap_b32 v{v}, v{t}")
                a(f"{op} v{v}, v{v}, v{t}")

    def to_bf16f(dst, src):
        a(f"v_cvt_pk_bf16_f32 v{dst}, v{src}, v{src}")
        a(f"v_and_b32 v{dst}, 0xffff0000, v{dst}")

    def div_refined(dst, num, den, rcp, t):
        a(f"v_mul_f32 v{dst}, v{num}, v{rcp}")
        a(f"v_fma_f32 v{t}, -v{dst}, v{den}, v{num}")
        a(f"v_fma_f32 v{dst}, v{t}, v{rcp}, v{dst}")

    def poll_begin(name):
        a(f"s_mov_b32 s49, 0")
        a(f"L_{name}_poll:")
    def poll_end(name, acc, sleep=0, code=1):
        a(f"v_cmp_ne_u32 vcc, 0, v{acc}")
        a(f"s_cbranch_vccz L_{name}_ok")
        a(f"s_add_u32 s49, s49, 1")
        if sleep: a(f"s_sleep {sleep}")
        a(f"s_cmp_lt_u32 s49, {POLLMAX}")
        a(f"s_cbranch_scc1 L_{name}_poll")
        if dbg:
            t = T0[0]
            a(f"v_mov_b32 v{t}, {code}\nv_mov_b32 v{t+1}, {4*code}\nglobal_atomic_or v{t+1}, v{t}, s[26:27]")
        a(f"L_{name}_ok:")
    def tagcheck(acc, tagregs):
        it = list(tagregs); tmp = T0[0]
        for i in range(0, len(it), 2):
            pair = it[i:i+2]
            if i == 0:
                a(f"v_xor_b32 v{acc}, s6, v{pair[0]}")
                if len(pair) > 1:
                    a(f"v_xor_b32 v{tmp}, s6, v{pair[1]}")
                    a(f"v_or_b32 v{acc}, v{acc}, v{tmp}")
            else:
                a(f"v_xor_b32 v{tmp}, s6, v{pair[0]}")
                if len(pair) > 1:
                    a(f"v_xor_b32 v{tmp+1}, s6, v{pair[1]}")
                    a(f"v_or3_b32 v{acc}, v{acc}, v{tmp}, v{tmp+1}")
                else:
                    a(f"v_or_b32 v{acc}, v{acc}, v{tmp}")
    def wait_kdone(name, v):
        a(f"v_mov_b32 v{v}, {L_FLAG}")
        a("s_mov_b32 s49, 0")
        a(f"L_{name}_kw:")
        a(f"ds_read_b32 v{v+1}, v{v}")
        a("s_waitcnt lgkmcnt(0)")
        a(f"v_readfirstlane_b32 s30, v{v+1}")
        a("s_add_u32 s49, s49, 1")
        a("s_cmp_ge_u32 s30, 256")
        a(f"s_cbranch_scc1 L_{name}_kd")
        a("s_sleep 16")
        a(f"s_cmp_lt_u32 s49, {POLLMAX * 4}")
        a(f"s_cbranch_scc1 L_{name}_kw")
        a(f"L_{name}_kd:")
    def ticket_init():
        a("s_mov_b32 s88, 0x10000\ns_mov_b32 s89, 0")
    def ticket_first():
        a("s_mov_b32 s89, 2\ns_mov_b32 s59, 2\ns_atomic_add s59, s[64:65], 0 glc")
    def ticket_top(tag, thr, capslot=None):
        a("s_cmp_lt_u32 s88, 0x10000")
        a(f"s_cbranch_scc1 L_tq{tag}")
        a("s_waitcnt lgkmcnt(0)")
        a("s_cmp_eq_u32 s89, 0")
        a("s_cselect_b32 s90, 0x10000, s59")
        a("s_add_u32 s88, s90, 1")
        a("s_cmp_eq_u32 s89, 2")
        a("s_cselect_b32 s88, s88, 0x10000")
        a("s_mov_b32 s89, 0")
        a(f"s_cmp_ge_u32 s90, {NPOOL}")
        a(f"s_cbranch_scc1 L_td{tag}")
        if capslot is not None:
            a(f"s_cmp_gt_u32 s58, {capslot}")
            a(f"s_cbranch_scc1 L_td{tag}")
        a(f"s_cmp_lt_u32 s90, {max(0, NPOOL - thr)}")
        a("s_cselect_b32 s89, 2, 1")
        a("s_mov_b32 s59, s89")
        a("s_atomic_add s59, s[64:65], 0 glc")
        a(f"s_branch L_td{tag}")
        a(f"L_tq{tag}:")
        a("s_mov_b32 s90, s88")
        a("s_mov_b32 s88, 0x10000")
        a(f"L_td{tag}:")
    NS = NPOOL // 4
    def wg_ticket(tag, allow):
        a("s_lshl_b32 s30, s93, 2")
        a(f"s_add_u32 s30, s30, {L_TQ}")
        a("v_mov_b32 v41, s30")
        a("s_cmp_eq_u32 s3, 0")
        a(f"s_cbranch_scc0 L_wr{tag}")
        a("s_waitcnt lgkmcnt(0)")
        a("s_min_u32 s31, s59, 0xfffe")
        a("s_add_u32 s91, s31, 1")
        a("v_mov_b32 v42, s91")
        a("ds_write_b32 v41, v42")
        a("s_mov_b32 s59, 0x10000")
        a(f"s_cmp_ge_u32 s31, {NS}")
        a(f"s_cbranch_scc1 L_wd{tag}")
        allow(f"L_wd{tag}")
        a("s_mov_b32 s59, 1")
        a("s_atomic_add s59, s[64:65], 0 glc")
        a(f"s_branch L_wd{tag}")
        a(f"L_wr{tag}:")
        a("s_mov_b32 s49, 0")
        a(f"L_ws{tag}:")
        a("ds_read_b32 v42, v41")
        a("s_add_u32 s49, s49, 1")
        a("s_waitcnt lgkmcnt(0)")
        a("v_readfirstlane_b32 s91, v42")
        a(f"s_cmp_ge_u32 s49, {POLLMAX * 8}")
        a(f"s_cbranch_scc1 L_wd{tag}")
        a("s_cmp_eq_u32 s91, 0")
        a(f"s_cbranch_scc1 L_ws{tag}")
        a(f"L_wd{tag}:")
        a("s_sub_u32 s91, s91, 1")
        a("s_lshl_b32 s91, s91, 2")
        a("s_add_u32 s91, s91, s3")
        a("s_add_u32 s93, s93, 1")
    def wg_first():
        a("s_cmp_eq_u32 s3, 0")
        lbl = a.label("L_wf")
        a(f"s_cbranch_scc0 {lbl}")
        a("s_mov_b32 s59, 1")
        a("s_atomic_add s59, s[64:65], 0 glc")
        a(f"{lbl}:")
    def tile_of(n, dst, t1="s30", t2="s31"):
        a(f"s_bfe_u32 {t1}, {n}, 0x30002")
        a(f"s_lshl_b32 {t1}, {t1}, 7")
        a(f"s_lshr_b32 {t2}, {n}, 5")
        a(f"s_lshl_b32 {t2}, {t2}, 2")
        a(f"s_add_u32 {t1}, {t1}, {t2}")
        a(f"s_and_b32 {t2}, {n}, 3")
        a(f"s_add_u32 {t1}, {t1}, {t2}")
        a(f"s_add_u32 {t1}, {t1}, {4*NV}")
        a(f"s_cmp_lt_u32 {n}, {NPOOL}")
        a(f"s_cselect_b32 {dst}, {t1}, 1024")
    def fake_n(dst):
        a(f"s_sub_u32 s30, s58, {NV}")
        a(f"s_lshl_b32 s31, s30, 5")
        a(f"s_lshl_b32 {dst}, s5, 2")
        a(f"s_add_u32 {dst}, {dst}, s31")
        a(f"s_add_u32 {dst}, {dst}, s3")
        a(f"s_cmp_lt_u32 s30, {NP}")
        a(f"s_cselect_b32 {dst}, {dst}, 0x10000")
    def make_tag():
        a("s_mul_i32 s6, s6, 0x9E3779B1\ns_add_u32 s6, s6, 0x7F4A7C15")

    def ln_loads(row0_sgpr):
        a(f"""
        s_mov_b32 s32, s8
        s_mov_b32 s33, s9
        s_mov_b32 s34, 1152
        s_mov_b32 s35, 0x20000
        v_lshlrev_b32 v20, 3, v0
        v_lshlrev_b32 v21, 1, v0
        v_lshl_add_u32 v22, v3, 2, v2
        v_add_u32 v22, s{row0_sgpr}, v22
        v_lshlrev_b32 v22, 1, v22
        buffer_load_dwordx2 v[4:5], v20, s[32:35], 0 offen
        buffer_load_dwordx2 v[6:7], v20, s[32:35], 0 offen offset:512
        buffer_load_ushort v8, v21, s[32:35], 0 offen offset:1024
        buffer_load_ushort v9, v22, s[32:35], 0 offen
        buffer_load_ushort v10, v22, s[32:35], 0 offen offset:128
        """)
    def ln_compute():
        for i, r in enumerate((4, 5, 6, 7)):
            a(f"v_lshlrev_b32 v{24+2*i}, 16, v{r}")
            a(f"v_and_b32 v{25+2*i}, 0xffff0000, v{r}")
        a("v_lshlrev_b32 v32, 16, v8")
        a("v_add_f32 v33, v24, v25\nv_add_f32 v34, v26, v27\nv_add_f32 v35, v28, v29\nv_add_f32 v36, v30, v31")
        a("v_add_f32 v33, v33, v34\nv_add_f32 v35, v35, v36\nv_add_f32 v33, v33, v32\nv_add_f32 v33, v33, v35")
        allreduce("v_add_f32", 33, 34)
        a("v_mov_b32 v36, 0x44100000")
        a("v_mov_b32 v37, 0x3ae38e39")
        div_refined(38, 33, 36, 37, 34)
        for i in range(9):
            a(f"v_sub_f32 v{24+i}, v{24+i}, v38")
        a("v_mul_f32 v33, v24, v24")
        for i in range(1, 9):
            a(f"v_fmac_f32 v33, v{24+i}, v{24+i}")
        allreduce("v_add_f32", 33, 34)
        div_refined(39, 33, 36, 37, 34)
        to_bf16f(38, 38)
        to_bf16f(39, 39)
        a("v_add_f32 v39, 0x3727c5ac, v39")
        to_bf16f(39, 39)
        a("v_sqrt_f32 v39, v39")
        a.nop(1)
        to_bf16f(39, 39)
        a("v_rcp_f32 v37, v39")
        for r in (9, 10):
            a(f"v_lshlrev_b32 v{r}, 16, v{r}")
            a(f"v_sub_f32 v{r}, v{r}, v38")
            to_bf16f(r, r)
        for r in (9, 10):
            div_refined(33, r, 39, 37, 34)
            a(f"v_cvt_pk_bf16_f32 v{r}, v33, v33")

    def job4(wb, n, nyounger):
        a("v_mov_b32 v16, 0\nv_mov_b32 v17, 0\nv_mov_b32 v18, 0\nv_mov_b32 v19, 0")
        def prep(j):
            src = 9 if j < 16 else 10
            b = 24 + 4 * (j & 1)
            for w in range(4):
                a(f"v_and_b32_dpp v{b+w}, v{src}, v{12+w} row_newbcast:{j & 15} row_mask:0xf bank_mask:0xf")
        a.nop(2)
        prep(0)
        for j in range(n):
            if j + 1 < n: prep(j + 1)
            else: a.nop(2)
            a(f"s_waitcnt vmcnt({min(63, n - 1 - j + nyounger)})")
            b = 24 + 4 * (j & 1)
            a(f"v_mfma_f32_16x16x32_bf16 v[16:19], v[{wb+4*j}:{wb+4*j+3}], v[{b}:{b+3}], v[16:19]")
        a.nop(8)
        a("s_mov_b32 s52, 0xff00ff00\ns_mov_b32 s53, 0xff00ff00")
        a("v_cndmask_b32 v20, v16, v18, s[52:53]")
        a("v_cndmask_b32 v22, v17, v19, s[52:53]")

    def job8_zero(ab):
        for i in range(36): a(f"v_mov_b32 v{ab+i}, 0")
    def job8(wb, nb, mult, ab):
        for bb in range(nb):
            for w in range(4):
                a(f"v_and_b32 v{24+w}, v{mult[bb]}, v{12+w}")
            a.nop(2)
            for blk in range(9):
                j = bb * 9 + blk
                a(f"v_mfma_f32_16x16x32_bf16 v[{ab+4*blk}:{ab+4*blk+3}], v[{wb+4*j}:{wb+4*j+3}], v[24:27], v[{ab+4*blk}:{ab+4*blk+3}]")
        a.nop(6)
    def job8_addr(ybase, v):
        a(f"v_and_b32 v{v}, 1, v2\nv_lshlrev_b32 v{v}, 2, v{v}")
        a(f"v_lshrrev_b32 v21, 3, v3\nv_lshlrev_b32 v21, 1, v21\nv_add_u32 v{v}, v{v}, v21")
        a(f"v_lshrrev_b32 v21, 1, v2\nv_add_u32 v{v}, v{v}, v21")
        if R96:
            a(f"v_lshlrev_b32 v{v}, 2, v{v}\nv_bfe_u32 v21, v3, 1, 2\nv_add_u32 v{v}, v{v}, v21")
            a(f"v_lshlrev_b32 v{v}, {YSH}, v{v}")
            a(f"v_and_b32 v21, 1, v3\nv_lshl_add_u32 v{v}, v21, 4, v{v}")
        else:
            a(f"v_lshlrev_b32 v{v}, 1, v{v}\nv_bfe_u32 v21, v3, 2, 1\nv_add_u32 v{v}, v{v}, v21")
            a(f"v_lshlrev_b32 v{v}, {YSH}, v{v}")
            a(f"v_and_b32 v21, 3, v3\nv_lshl_add_u32 v{v}, v21, 4, v{v}")
        a(f"s_lshl_b32 s30, s2, {YP}\ns_add_u32 s30, s30, {ybase}")
        a(f"v_add_u32 v{v}, s30, v{v}")
    def job8_finish(ab, pairbase):
        for blk in range(9):
            y = ab + 4 * blk
            a(f"v_permlane32_swap_b32 v{y}, v{y+1}")
            a(f"v_permlane32_swap_b32 v{y+2}, v{y+3}")
        for t in range(3):
            for k in range(3):
                blk = 3 * t + k
                y = ab + 4 * blk; pr = pairbase + 4 * t + k
                a(f"v_add_f32_dpp v{pr}, v{y+1}, v{y} row_ror:8 row_mask:0xf bank_mask:0x3")
                a(f"v_add_f32_dpp v{pr}, v{y+2}, v{y+3} row_ror:8 row_mask:0xf bank_mask:0xc")
    def job8_store(pairbase, vaddr, fl):
        for t in range(3):
            a(f"s_mov_b32 s31, {(t * (32 if R96 else 16)) << YSH}")
            a(f"buffer_store_dwordx4 v[{pairbase+4*t}:{pairbase+4*t+3}], v{vaddr}, s[44:47], s31 offen {fl}")
    def job8_publish(ab, pairbase, vaddr, fl='sc1'):
        for blk in range(9):
            y = ab + 4 * blk
            a(f"v_permlane32_swap_b32 v{y}, v{y+1}")
            a(f"v_permlane32_swap_b32 v{y+2}, v{y+3}")
        for t in range(3):
            for k in range(3):
                blk = 3 * t + k
                y = ab + 4 * blk; pr = pairbase + 4 * t + k
                a(f"v_add_f32_dpp v{pr}, v{y+1}, v{y} row_ror:8 row_mask:0xf bank_mask:0x3")
                a(f"v_add_f32_dpp v{pr}, v{y+2}, v{y+3} row_ror:8 row_mask:0xf bank_mask:0xc")
            a(f"s_mov_b32 s31, {(t * (32 if R96 else 16)) << YSH}")
            a(f"buffer_store_dwordx4 v[{pairbase+4*t}:{pairbase+4*t+3}], v{vaddr}, s[44:47], s31 offen {fl}")

    a(f"""
    s_cmp_ge_u32 s2, 256
    s_cbranch_scc1 L_end
    s_load_dwordx16 s[8:23], s[0:1], 0
    s_load_dwordx4 s[24:27], s[0:1], 64
    s_load_dwordx2 s[28:29], s[0:1], 80
    """)
    if TSTAMP: a("s_memrealtime s[70:71]")
    a(f"""
    v_lshrrev_b32 v1, 6, v0
    v_and_b32 v0, 63, v0
    v_readfirstlane_b32 s3, v1
    s_lshr_b32 s4, s2, 3
    s_and_b32 s5, s2, 7
    v_lshrrev_b32 v2, 4, v0
    v_and_b32 v3, 15, v0
    """)
    if PF:
        a(f"""
        s_cmp_eq_u32 s3, 5
        s_cbranch_scc0 L_nopf
        L_pc:
        s_getpc_b64 s[30:31]
        v_lshlrev_b32 v4, 7, v0
        v_add_u32 v5, 8192, v4
        v_add_u32 v6, 16384, v4
        v_min_u32 v4, L_end-L_pc, v4
        v_min_u32 v5, L_end-L_pc, v5
        v_min_u32 v6, L_end-L_pc, v6
        global_load_dword v49, v4, s[30:31]
        global_load_dword v50, v5, s[30:31]
        global_load_dword v51, v6, s[30:31]
        L_nopf:
        """)
    a(f"""
    s_cmp_eq_u32 s3, 4
    s_cbranch_scc0 L_noinit
    v_lshlrev_b32 v4, 3, v0
    v_mov_b32 v6, -1
    v_mov_b32 v7, -1
    ds_write_b64 v4, v[6:7] offset:{L_ID}
    v_mov_b32 v8, 0
    v_mov_b32 v9, 0
    """)
    if WGT: a(f"ds_write_b64 v4, v[8:9] offset:{L_TQ}")
    a(f"""
    v_mov_b32 v5, {L_FLAG}
    ds_write_b64 v5, v[8:9]
    L_noinit:
    """)
    a(f"""
    s_waitcnt lgkmcnt(0)
    s_load_dword s6, s[28:29], {EPOCH}
    s_mov_b32 s44, s28
    s_mov_b32 s45, s29
    s_mov_b32 s46, {WS_SIZE}
    s_mov_b32 s47, 0x20000
    s_cmp_eq_u32 s3, 4
    s_cbranch_scc1 L_helperA
    s_cmp_eq_u32 s3, 5
    s_cbranch_scc1 L_helperB
    """)

    SL = 64
    T0[0] = 62
    def issue(pos, nxt, srd_cur, srd_nxt):
        j = pos & 7
        vo = ((7, 46) if nxt else (5, 6))[j >> 2]
        srd = srd_nxt if nxt else srd_cur
        a(f"buffer_load_dwordx4 v[{SL+4*j}:{SL+4*j+3}], v{vo}, {srd}, 0 offen offset:{(j & 3) * 1024} {NT}")
    def issue_after(n, srd_cur, srd_nxt):
        m = n + W
        issue(m & 7, m >= 8, srd_cur, srd_nxt)
    a(f"""
    s_lshl_b32 s30, s4, 23
    s_add_u32 s32, s10, s30
    s_addc_u32 s33, s11, 0
    s_mov_b32 s34, 0x800000
    s_mov_b32 s35, 0x20000
    s_lshl_b32 s56, s5, 7
    s_add_u32 s56, s56, s3
    s_lshl_b32 s31, s56, 13
    v_lshlrev_b32 v4, 4, v0
    v_add_u32 v5, s31, v4
    v_add_u32 v6, 4096, v5
    """)
    if B0 or ORD2 or ORD3: a("s_barrier")
    for n in range(W): issue(n, False, "s[32:35]", None)
    a(f"""
    s_add_u32 s36, s12, s30
    s_addc_u32 s37, s13, 0
    s_mov_b32 s38, 0x800000
    s_mov_b32 s39, 0x20000
    s_mov_b32 s42, 0x800000
    s_mov_b32 s43, 0x20000
    s_mov_b32 s57, s56
    s_mul_i32 s30, s4, {CSTR}
    s_add_u32 s30, s30, {CNT if CBASE is None else CBASE}
    s_add_u32 s64, s28, s30
    s_addc_u32 s65, s29, 0
    s_mul_i32 s84, s4, {NPOOL * 128}
    s_add_u32 s84, s84, {SG}
    s_mov_b32 s58, 0                   ; i
    s_mov_b32 s88, 0x10000
    s_mov_b32 s89, 0
    s_mov_b32 s93, 0
    s_mov_b32 s59, 0
    s_mov_b32 s60, {LOG2E:#x}
    s_mov_b32 s61, {SCALE:#x}
    s_mov_b32 s52, 0xcccccccc
    s_mov_b32 s53, 0xcccccccc
    s_mov_b32 s54, 0xaaaaaaaa
    s_mov_b32 s55, 0xaaaaaaaa
    """)
    make_masks(20, 21)
    a(f"""
    v_mov_b32 v16, 0
    v_mov_b32 v17, 0
    v_mov_b32 v18, 0
    v_mov_b32 v19, 0
    v_mov_b32 v20, 0
    v_mov_b32 v22, 0xff800000
    v_lshlrev_b32 v23, 4, v3
    s_mul_i32 s30, s3, {SSTR}
    s_add_u32 s30, s30, {L_S}
    v_lshl_add_u32 v47, v0, 2, s30
    s_lshl_b32 s30, s3, 7
    s_add_u32 s30, s30, {L_ID - 4*NV - 4}
    v_mov_b32 v43, s30
    v_mov_b32 v56, v47
    v_lshrrev_b32 v57, 1, v3
    v_lshlrev_b32 v57, 1, v57
    v_lshrrev_b32 v59, 1, v2
    v_add_u32 v57, v57, v59
    v_lshlrev_b32 v57, 3, v57
    v_and_b32 v59, 1, v2
    v_lshlrev_b32 v59, 4, v59
    v_sub_u32 v59, 16, v59
    s_waitcnt lgkmcnt(0)
    """)
    make_tag()
    stamp(1)
    if ORD2 or ORD3: a("s_barrier")
    if PRE8:
        for n in range(W, 8): issue(n, False, "s[32:35]", None)
    if QF:
        assert ORD3
        a(f"v_mov_b32 v41, {L_QF}\ns_mov_b32 s49, 0\nL_qw:\nds_read_b32 v42, v41\ns_add_u32 s49, s49, 1\ns_waitcnt lgkmcnt(0)\nv_readfirstlane_b32 s30, v42")
        a(f"s_cmp_ge_u32 s49, {POLLMAX * 16}\ns_cbranch_scc1 L_qd\ns_cmp_eq_u32 s30, 0\ns_cbranch_scc0 L_qd\ns_sleep 1\ns_branch L_qw\nL_qd:")
    else:
        a("s_barrier")
    a(f"ds_read_b128 v[8:11], v23 offset:{L_Q}")
    a("s_waitcnt lgkmcnt(0)")
    stamp(2)
    a("L_ktile:")
    if PROG:
        a("s_memrealtime s[86:87]\ns_waitcnt lgkmcnt(0)\ns_mov_b32 m0, s58\ns_nop 0\nv_writelane_b32 v128, s86, m0")
    a("s_add_u32 s58, s58, 1")
    a("s_lshl_b32 s31, s58, 2")
    a("s_add_u32 s30, s31, s56")
    if DYN and WGT:
        a("s_mov_b32 s62, s30")
        a(f"s_cmp_eq_u32 s58, {NV-1}")
        a("s_cbranch_scc0 L_kf")
        wg_first()
        a("L_kf:")
        a(f"s_cmp_lt_u32 s58, {NV}")
        a("s_cbranch_scc1 L_kstat")
        def allow_k(lbl):
            a(f"s_cmp_ge_u32 s58, {NV + MAXD - 1}")
            a(f"s_cbranch_scc1 {lbl}")
        wg_ticket("k", allow_k)
        tile_of("s91", "s62")
        a("L_kstat:")
    elif DYN and BATCH:
        a("s_mov_b32 s62, s30")
        a(f"s_cmp_eq_u32 s58, {NV-2}")
        a("s_cbranch_scc0 L_kf")
        ticket_first()
        a("L_kf:")
        a(f"s_cmp_lt_u32 s58, {NV}")
        a("s_cbranch_scc1 L_kstat")
        ticket_top("k", 0, NV + MAXD - 4)
        a("s_mov_b32 s91, s90")
        tile_of("s91", "s62")
        a("L_kstat:")
    elif DYN:
        a("s_waitcnt lgkmcnt(0)")
        a("s_mov_b32 s92, s30")
        a("s_mov_b32 s91, s59")
        if FAKE: fake_n("s91")
        tile_of("s91", "s62")
        a(f"s_cmp_lt_u32 s58, {NV}")
        a("s_cselect_b32 s62, s92, s62")
        a("s_mov_b32 s59, 0x10000")
        a("s_mov_b32 s85, 0")
        a(f"s_cmp_lt_u32 s58, {NV-1}")
        a("s_cbranch_scc1 L_knotk")
        a(f"s_cmp_ge_u32 s58, {NV + MAXD - 1}")
        a("s_cbranch_scc1 L_knotk")
        a("s_cmp_ge_u32 s62, 1024")
        a("s_cbranch_scc1 L_knotk")
        if RQ < 0:
            a("s_mov_b32 s59, 1")
            a("s_atomic_add s59, s[64:65], 0 glc")
        else:
            a("s_mov_b32 s85, 1")
        a("L_knotk:")
    if DYN:
        a("s_cmp_lt_u32 s62, 1024")
    else:
        a("s_mov_b32 s62, s30")
        a(f"s_cmp_lt_u32 s58, {NV}")
    a("s_cselect_b32 s83, 1, 0")
    a("s_cselect_b32 s62, s62, s56")
    a("s_cselect_b32 s40, s32, s36")
    a("s_cselect_b32 s41, s33, s37")
    a("s_lshl_b32 s63, s62, 13")
    a("v_add_u32 v7, s63, v4\nv_add_u32 v46, 4096, v7")
    for j in range(8):
        a(f"s_waitcnt vmcnt({W-1})")
        P = 24 + j; sl = SL + 4 * j
        a(f"v_dot2_f32_bf16 v{P}, v{sl}, v8, 0")
        a(f"v_dot2_f32_bf16 v{P}, v{sl+1}, v9, v{P}")
        a(f"v_dot2_f32_bf16 v{P}, v{sl+2}, v10, v{P}")
        a(f"v_dot2_f32_bf16 v{P}, v{sl+3}, v11, v{P}")
        if PRE8 and j + W < 8:
            a("s_cmp_eq_u32 s58, 1")
            a(f"s_cbranch_scc1 L_kskip{j}")
        issue_after(j, "s[32:35]", "s[40:43]")
        if PRE8 and j + W < 8: a(f"L_kskip{j}:")
        if DYN and j == RQ and not BATCH and not WGT:
            a("s_cmp_eq_u32 s85, 1")
            a("s_cbranch_scc0 L_knorq")
            a("s_mov_b32 s59, 1")
            a("s_atomic_add s59, s[64:65], 0 glc")
            a("L_knorq:")
    for j in range(4):
        a(f"v_add_f32_dpp v{32+j}, v{24+j}, v{24+j} row_ror:8 row_mask:0xf bank_mask:0x3")
        a(f"v_add_f32_dpp v{32+j}, v{28+j}, v{28+j} row_ror:8 row_mask:0xf bank_mask:0xc")
    for j in range(2):
        a(f"v_add_f32_dpp v{36+j}, v{32+j}, v{32+j} row_shl:4 row_mask:0xf bank_mask:0x5")
        a(f"v_add_f32_dpp v{36+j}, v{34+j}, v{34+j} row_shr:4 row_mask:0xf bank_mask:0xa")
    a("v_mov_b32 v5, v7")
    a("v_add_f32_dpp v38, v36, v36 quad_perm:[2,3,0,1] row_mask:0xf bank_mask:0xf")
    a("v_add_f32_dpp v39, v37, v37 quad_perm:[2,3,0,1] row_mask:0xf bank_mask:0xf")
    a("v_cndmask_b32 v40, v38, v39, s[52:53]")
    a("v_mov_b32 v6, v46")
    if DYN: a("v_mov_b32 v41, s57")
    else: a("s_nop 0")
    a("v_add_f32_dpp v40, v40, v40 quad_perm:[1,0,3,2] row_mask:0xf bank_mask:0xf")
    a("v_cvt_pk_bf16_f32 v40, v40, v40")
    a("v_and_b32 v40, 0xffff0000, v40")
    a("v_mul_f32 v40, s61, v40")
    a("v_cvt_pk_bf16_f32 v40, v40, v40")
    a("v_and_b32 v40, 0xffff0000, v40")
    a("ds_write_b32 v56, v40")
    if DYN:
        a(f"s_cmp_gt_u32 s58, {NV}")
        a("s_cbranch_scc0 L_noid")
        a("s_lshl_b32 s30, s58, 2")
        a("v_add_u32 v42, s30, v43")
        a("ds_write_b32 v42, v41 offset:0")
        a("L_noid:")
    a("v_max_f32 v22, v22, v40")
    a("v_add_u32 v56, 256, v56")
    a("s_mov_b32 s57, s91")
    a("s_cmp_eq_u32 s83, 1")
    a("s_cbranch_scc1 L_ktile")
    stamp(5)
    a(f"v_mov_b32 v41, {L_FLAG}")
    a("v_mov_b32 v42, 1")
    a("s_waitcnt lgkmcnt(0)")
    a("ds_add_u32 v41, v42")
    a("ds_read_b32 v58, v47")
    allreduce("v_max_f32", 22, 41, rors=(8, 4, 2))
    a("v_mul_f32 v21, s60, v22")
    a("v_add_u32 v56, 256, v47")
    a("s_mov_b32 s94, s58")
    a("s_mov_b32 s58, 0")
    a(f"s_add_u32 s64, s64, {VOFF}\ns_addc_u32 s65, s65, 0")
    if BATCH: ticket_init()
    if WGT: a("s_mov_b32 s93, 32")
    def pcompute(tag):
        a("v_cmp_lt_f32 vcc, v22, v40")
        a(f"s_cbranch_vccnz L_rare{tag}")
        a(f"L_back{tag}:")
        a("v_fma_f32 v41, v40, s60, -v21")
        a("v_exp_f32 v41, v41")
        a("s_nop 0")
        a("v_add_f32 v20, v20, v41")
        a("v_cvt_pk_bf16_f32 v42, v41, v41")
        if HILO:
            a("v_and_b32 v43, 0xffff0000, v42")
            a("v_sub_f32 v43, v41, v43")
            a("v_cvt_pk_bf16_f32 v43, v43, v43")
            a("v_cndmask_b32 v42, v42, v43, s[54:55]")
        a.nop(2)
    def prepB(j):
        b = 48 + 4 * (j & 1)
        if HILO:
            y = 44 + (j & 1)
            a(f"v_mov_b32_dpp v{y}, v42 row_newbcast:{2*j} row_mask:0xf bank_mask:0x3")
            a(f"v_mov_b32_dpp v{y}, v42 row_newbcast:{2*j+1} row_mask:0xf bank_mask:0xc")
            for w in range(4): a(f"v_and_b32 v{b+w}, v{y}, v{12+w}")
        else:
            for w in range(4):
                a(f"v_and_b32_dpp v{b+w}, v42, v{12+w} row_newbcast:{2*j} row_mask:0xf bank_mask:0xf")
    def progstamp():
        if PROG:
            a("s_memrealtime s[86:87]\ns_waitcnt lgkmcnt(0)\ns_mov_b32 m0, s58\ns_nop 0\nv_writelane_b32 v129, s86, m0")
    def allow_v(lbl):
        a("s_cmp_ge_u32 s93, 126")
        a(f"s_cbranch_scc1 {lbl}")
    if LT and DYN:
        variants = sorted(set(AW)) if AW else [W]
        def issueW(n, Wv):
            m = n + Wv
            issue(m & 7, m >= 8, "s[36:39]", "s[36:39]")
        def vphase(Wv, sx):
            J0 = 8 - Wv
            a(f"L_vtile{sx}:")
            a("s_waitcnt lgkmcnt(0)")
            progstamp()
            a("s_add_u32 s58, s58, 1")
            a("s_lshl_b32 s30, s58, 2")
            a("s_add_u32 s62, s30, s56")
            a("v_mov_b32 v40, v58")
            a("ds_read_b32 v58, v56")
            a("v_add_u32 v56, 256, v56")
            a("s_lshl_b32 s63, s62, 13")
            a("v_add_u32 v7, s63, v4\nv_add_u32 v46, 4096, v7")
            pcompute("s" + sx)
            prepB(0)
            for j in range(8):
                if j < 7: prepB(j + 1)
                else: a.nop(1)
                a(f"s_waitcnt vmcnt({Wv - 1})")
                b = 48 + 4 * (j & 1); sl = SL + 4 * j
                a(f"v_mfma_f32_16x16x32_bf16 v[16:19], v[{sl}:{sl+3}], v[{b}:{b+3}], v[16:19]")
                issueW(j, Wv)
            a("v_mov_b32 v5, v7\nv_mov_b32 v6, v46")
            a(f"s_cmp_lt_u32 s58, {NV-1}")
            a(f"s_cbranch_scc1 L_vtile{sx}")
            def lt_tile(tag, SX, SY, other):
                tg = tag + sx
                a(f"L_vd{tg}:")
                if SX is None: a("s_waitcnt lgkmcnt(0)")
                else: a(f"s_waitcnt vmcnt({Wv})")
                progstamp()
                a("s_add_u32 s58, s58, 1")
                a("s_mov_b32 s59, 1")
                a("s_atomic_add s59, s[64:65], 0 glc")
                if SX is None:
                    a("v_mov_b32 v40, v58")
                else:
                    a(f"v_lshlrev_b32 v40, v59, v{SX}")
                    a(f"v_cmp_ne_u32 vcc, s6, v{SX+1}")
                    a("v_and_b32 v40, 0xffff0000, v40")
                    a(f"s_cbranch_vccnz L_retry{tg}")
                    a(f"L_retry_back{tg}:")
                pcompute(tg)
                prepB(0)
                for j in range(8):
                    if j < 7: prepB(j + 1)
                    else: a.nop(1)
                    a(f"s_waitcnt vmcnt({Wv - 1 if j <= J0 else Wv})")
                    b = 48 + 4 * (j & 1); sl = SL + 4 * j
                    a(f"v_mfma_f32_16x16x32_bf16 v[16:19], v[{sl}:{sl+3}], v[{b}:{b+3}], v[16:19]")
                    if j == J0:
                        a("s_waitcnt lgkmcnt(0)")
                        a("s_mov_b32 s91, s59")
                        tile_of("s91", "s62")
                        a("s_lshl_b32 s63, s62, 13")
                        a("s_lshl_b32 s83, s91, 7")
                        a("s_add_u32 s83, s83, s84")
                        a("v_add_u32 v7, s63, v4\nv_add_u32 v46, 4096, v7")
                        a(f"buffer_load_dwordx2 v[{SY}:{SY+1}], v57, s[44:47], s83 offen {SLF}")
                    issueW(j, Wv)
                a("s_mov_b32 s82, s83")
                a("v_mov_b32 v5, v7\nv_mov_b32 v6, v46")
                a("s_cmp_lt_u32 s62, 1024")
                if other is None: a("s_cbranch_scc0 L_vend")
                else: a(f"s_cbranch_scc1 L_vd{other}{sx}")
            lt_tile("l", None, 60, None)
            lt_tile("a", 60, 62, None)
            lt_tile("b", 62, 60, "a")
            a("s_branch L_vend")
        if AW:
            for k, cond in ((0, f"s_cmp_le_u32 s94, {NV}"), (1, f"s_cmp_eq_u32 s94, {NV+1}")):
                a(cond)
                a(f"s_cbranch_scc1 L_ventry{AW[k]}")
            a(f"s_branch L_ventry{AW[2]}")
            for Wv in variants:
                a(f"L_ventry{Wv}:")
                for n in range(W, Wv): issue(n, False, "s[36:39]", None)
                vphase(Wv, f"w{Wv}")
        else:
            vphase(W, "")
        a("L_vend:")
    else:
        a("L_vtile:")
        a(f"s_waitcnt lgkmcnt(0)")
        progstamp()
        a("s_add_u32 s58, s58, 1")
        a("s_lshl_b32 s30, s58, 2")
        a("s_add_u32 s30, s30, s56")
        a("v_mov_b32 v40, v58")
        if DYN:
            if WGT:
                a("s_mov_b32 s62, s30")
                a(f"s_cmp_eq_u32 s58, {NV-1}")
                a("s_cbranch_scc0 L_vf")
                wg_first()
                a("L_vf:")
                a(f"s_cmp_lt_u32 s58, {NV}")
                a("s_cbranch_scc1 L_vstat")
                wg_ticket("vs", allow_v)
                tile_of("s91", "s62")
                a("L_vstat:")
            elif BATCH:
                a("s_mov_b32 s62, s30")
                a(f"s_cmp_eq_u32 s58, {NV-2}")
                a("s_cbranch_scc0 L_vf")
                ticket_first()
                a("L_vf:")
                a(f"s_cmp_lt_u32 s58, {NV}")
                a("s_cbranch_scc1 L_vstat")
                ticket_top("vs", THR)
                a("s_mov_b32 s91, s90")
                tile_of("s91", "s62")
                a("L_vstat:")
            else:
                a("s_mov_b32 s92, s30")
                a("s_mov_b32 s91, s59")
                if FAKE: fake_n("s91")
                tile_of("s91", "s62")
                a(f"s_cmp_lt_u32 s58, {NV}")
                a("s_cselect_b32 s62, s92, s62")
                if RQ < 0:
                    a(f"s_cmp_lt_u32 s58, {NV-1}")
                    a("s_cbranch_scc1 L_vnorq")
                    a("s_mov_b32 s59, 1")
                    a("s_atomic_add s59, s[64:65], 0 glc")
                    a("L_vnorq:")
            a("s_lshl_b32 s83, s91, 7")
            a("s_add_u32 s83, s83, s84")
            a(f"s_cmp_lt_u32 s58, {NV}")
            a("s_cselect_b32 s83, 0x7f000000, s83")
            if NOSL: a("s_mov_b32 s83, 0x7f000000")
            a(f"buffer_load_dwordx2 v[60:61], v57, s[44:47], s83 offen {SLF}")
        else:
            a(f"s_cmp_lt_u32 s58, {NV}")
            a("s_cselect_b32 s62, s30, 1024")
        a("ds_read_b32 v58, v56")
        a("v_add_u32 v56, 256, v56")
        a("s_lshl_b32 s63, s62, 13")
        a("v_add_u32 v7, s63, v4\nv_add_u32 v46, 4096, v7")
        pcompute("s")
        prepB(0)
        for j in range(8):
            if j < 7: prepB(j + 1)
            else: a.nop(1)
            n = (W if j < W else W - 1) if DYN else W - 1
            a(f"s_waitcnt vmcnt({n})")
            b = 48 + 4 * (j & 1); sl = SL + 4 * j
            a(f"v_mfma_f32_16x16x32_bf16 v[16:19], v[{sl}:{sl+3}], v[{b}:{b+3}], v[16:19]")
            issue_after(j, "s[36:39]", "s[36:39]")
            if DYN and j == RQ and not BATCH and not WGT:
                a(f"s_cmp_lt_u32 s58, {NV-1}")
                a("s_cbranch_scc1 L_vnorq")
                a("s_mov_b32 s59, 1")
                a("s_atomic_add s59, s[64:65], 0 glc")
                a("L_vnorq:")
        a("v_mov_b32 v5, v7\nv_mov_b32 v6, v46")
        a(f"s_cmp_lt_u32 s58, {NV}")
        a("s_cbranch_scc1 L_vtile")
        if DYN:
            a("s_mov_b32 s82, s83")
            a("s_cmp_lt_u32 s62, 1024")
            a("s_cbranch_scc0 L_vend")
            if WD8 or BURST:
                for n in range(W, 8): issue(n, False, "s[36:39]", None)
            def dyntile(tag, X, Y, SX, SY, other):
                a(f"L_vd{tag}:")
                a(f"s_waitcnt vmcnt({8 if (BURST or WD8) else W})" + ("" if (BATCH or WGT) else " lgkmcnt(0)"))
                progstamp()
                if BATCH:
                    ticket_top("v" + tag, THR)
                    a("s_mov_b32 s91, s90")
                a("s_add_u32 s58, s58, 1")
                if WGT: wg_ticket("v" + tag, allow_v)
                elif not BATCH: a("s_mov_b32 s91, s59")
                if FAKE: fake_n("s91")
                tile_of("s91", "s62")
                a(f"v_lshlrev_b32 v40, v59, v{SX}")
                a(f"v_cmp_ne_u32 vcc, s6, v{SX+1}")
                a("v_and_b32 v40, 0xffff0000, v40")
                if not NOPUB and not NOSL: a(f"s_cbranch_vccnz L_retry{tag}")
                a(f"L_retry_back{tag}:")
                a("s_lshl_b32 s63, s62, 13")
                a(f"s_lshl_b32 s83, s91, 7")
                a("s_add_u32 s83, s83, s84")
                if RQ < 0 and not BATCH and not WGT:
                    a("s_cmp_lt_u32 s62, 1024")
                    a(f"s_cbranch_scc0 L_vdnorq{tag}")
                    a("s_mov_b32 s59, 1")
                    a("s_atomic_add s59, s[64:65], 0 glc")
                    a(f"L_vdnorq{tag}:")
                a("v_add_u32 v7, s63, v4\nv_add_u32 v46, 4096, v7")
                if NOSL: a("s_mov_b32 s83, 0x7f000000")
                a(f"buffer_load_dwordx2 v[{SY}:{SY+1}], v57, s[44:47], s83 offen {SLF}")
                def ld(j, base):
                    a(f"buffer_load_dwordx4 v[{base+4*j}:{base+4*j+3}], v{7 if j < 4 else 46}, s[36:39], 0 offen offset:{(j & 3) * 1024} {NT}")
                if BURST:
                    for j in range(8): ld(j, Y)
                pcompute(tag)
                prepB(0)
                for j in range(8):
                    if j < 7: prepB(j + 1)
                    else: a.nop(1)
                    a(f"s_waitcnt vmcnt({16 - j if BURST else (8 if WD8 else (W if j < W else W - 1))})")
                    b = 48 + 4 * (j & 1); sl = X + 4 * j
                    a(f"v_mfma_f32_16x16x32_bf16 v[16:19], v[{sl}:{sl+3}], v[{b}:{b+3}], v[16:19]")
                    if not BURST:
                        if WD8: issue(j, True, "s[36:39]", "s[36:39]")
                        else: issue_after(j, "s[36:39]", "s[36:39]")
                    if j == RQ and not BATCH and not WGT:
                        a("s_cmp_lt_u32 s62, 1024")
                        a(f"s_cbranch_scc0 L_vdnorq{tag}")
                        a("s_mov_b32 s59, 1")
                        a("s_atomic_add s59, s[64:65], 0 glc")
                        a(f"L_vdnorq{tag}:")
                a("s_mov_b32 s82, s83")
                if not BURST: a("v_mov_b32 v5, v7\nv_mov_b32 v6, v46")
                a("s_cmp_lt_u32 s62, 1024")
                if other is None:
                    a("s_cbranch_scc0 L_vend")
                else:
                    a(f"s_cbranch_scc1 L_vd{other}")
            if BURST:
                dyntile("a", SL, SL + 32, 60, 62, None)
                dyntile("b", SL + 32, SL, 62, 60, "a")
            else:
                dyntile("a", SL, SL, 60, 62, None)
                dyntile("b", SL, SL, 62, 60, "a")
            a("L_vend:")
    stamp(3)
    allreduce("v_add_f32", 20, 27)
    a("v_mul_f32 v23, 0.5, v20")
    if HILO:
        for r in range(4):
            a(f"v_add_f32_dpp v{16+r}, v{16+r}, v{16+r} row_ror:8 row_mask:0xf bank_mask:0xf")
    a("s_mov_b32 s52, 0xff00ff00\ns_mov_b32 s53, 0xff00ff00")
    a("v_lshl_add_u32 v26, v2, 5, v3")
    a("v_lshlrev_b32 v26, 2, v26")
    a(f"s_lshl_b32 s30, s3, 9")
    a("v_add_u32 v26, s30, v26")
    a("v_cndmask_b32 v24, v16, v17, s[52:53]")
    a("v_cndmask_b32 v25, v18, v19, s[52:53]")
    a("s_lshl_b32 s30, s3, 3")
    a("v_mov_b32 v27, s30")
    a(f"ds_write_b32 v26, v24 offset:{L_O}")
    a(f"ds_write_b32 v26, v25 offset:{L_O + 64}")
    a("s_mov_b64 exec, 1")
    a(f"ds_write_b64 v27, v[22:23] offset:{L_ML}")
    a("s_mov_b64 exec, -1")
    a("s_waitcnt lgkmcnt(0)")
    a("s_barrier")
    stamp(4)
    if PROG:
        a("s_waitcnt vmcnt(0)")
        a("s_lshl_b32 s30, s2, 3\ns_add_u32 s30, s30, s3\ns_lshl_b32 s30, s30, 9")
        a(f"s_add_u32 s30, s30, {TS + 0x100000}")
        a("v_lshl_add_u32 v62, v0, 2, s30")
        a("buffer_store_dword v128, v62, s[44:47], 0 offen")
        a("buffer_store_dword v129, v62, s[44:47], 0 offen offset:256")
        a("s_mov_b32 s72, s58")
    stamp_store(6)
    a("s_endpgm")
    sfx = [f"w{x}" for x in sorted(set(AW))] if (AW and LT and DYN) else [""]
    for tag in [t + x for x in sfx for t in ((["s", "l", "a", "b"] if LT else ["s", "a", "b"]) if DYN else ["s"])]:
        a(f"L_rare{tag}:")
        a("v_mov_b32 v41, v40")
        for n in (8, 4, 2):
            a.nop(2)
            a(f"v_max_f32_dpp v41, v41, v41 row_ror:{n} row_mask:0xf bank_mask:0xf")
        a.nop(2)
        a("v_max_f32_dpp v41, v41, v41 row_bcast:15 row_mask:0xa bank_mask:0xf")
        a.nop(2)
        a("v_max_f32_dpp v41, v41, v41 row_bcast:31 row_mask:0xc bank_mask:0xf")
        a.nop(1)
        a("v_readlane_b32 s30, v41, 63")
        a.nop(2)
        a("v_mov_b32 v22, s30")
        a("v_mul_f32 v42, s60, v22")
        a("v_sub_f32 v43, v21, v42")
        a("v_exp_f32 v43, v43")
        a("v_mov_b32 v21, v42")
        for r in (16, 17, 18, 19, 20):
            a(f"v_mul_f32 v{r}, v{r}, v43")
        a(f"s_branch L_back{tag}")
    if DYN:
        for tag, SX in [(t + x, r) for x in sfx for t, r in (("a", 60), ("b", 62))]:
            a(f"L_retry{tag}:")
            a("s_mov_b32 s49, 0")
            a(f"L_retry_loop{tag}:")
            a(f"buffer_load_dwordx2 v[{SX}:{SX+1}], v57, s[44:47], s82 offen sc1")
            a("s_waitcnt vmcnt(0)")
            a(f"v_cmp_ne_u32 vcc, s6, v{SX+1}")
            a(f"s_cbranch_vccz L_retry_done{tag}")
            a("s_add_u32 s49, s49, 1")
            a("s_sleep 2")
            a(f"s_cmp_lt_u32 s49, {POLLMAX}")
            a(f"s_cbranch_scc1 L_retry_loop{tag}")
            if dbg: a("v_mov_b32 v41, 6\nv_mov_b32 v42, 24\nglobal_atomic_or v42, v41, s[26:27]")
            a(f"L_retry_done{tag}:")
            a(f"v_lshlrev_b32 v40, v59, v{SX}")
            a("v_and_b32 v40, 0xffff0000, v40")
            a(f"s_branch L_retry_back{tag}")

    a("L_helperA:")
    if SD: stamp(1)
    T0[0] = 60
    WB = 64
    if DYN:
        a(f"""
        s_cmp_eq_u32 s5, 0
        s_cbranch_scc0 L_nozero
        s_mul_i32 s30, s4, {CSTR}
        s_add_u32 s30, s30, {CNT if CBASE is None else CBASE}
        v_mul_u32_u24 v4, {VOFF}, v0
        v_add_u32 v4, s30, v4
        v_mov_b32 v5, 0
        s_mov_b64 exec, 3
        buffer_store_dword v5, v4, s[44:47], 0 offen sc1
        s_mov_b64 exec, -1
        L_nozero:
        """)
    a("s_mul_i32 s48, s5, 72")
    ln_loads(48)
    a(f"""
    s_mov_b32 s36, s14
    s_mov_b32 s37, s15
    s_mov_b32 s38, {576*8192}
    s_mov_b32 s39, 0x20000
    v_add_u32 v23, s48, v2
    v_lshlrev_b32 v23, 13, v23
    v_lshl_add_u32 v23, v3, 4, v23
    s_lshl_b32 s30, s4, 8
    v_add_u32 v23, s30, v23
    """)
    for j in range(18):
        a(f"s_mov_b32 s31, {j*32768}")
        a(f"buffer_load_dwordx4 v[{WB+4*j}:{WB+4*j+3}], v23, s[36:39], s31 offen {NT}")
    if B0 or ORD3: a("s_barrier")
    make_masks(20, 21)
    a("s_waitcnt vmcnt(18)")
    if ORD2: a("s_barrier")
    if SD: stamp(2)
    ln_compute()
    if SD: stamp(3)
    job4(WB, 18, 0)
    a(f"s_waitcnt lgkmcnt(0)")
    make_tag()
    a(f"""
    v_lshlrev_b32 v24, 4, v0
    s_lshl_b32 s30, s2, 10
    s_add_u32 s30, s30, {QG}
    v_add_u32 v24, s30, v24
    v_mov_b32 v21, s6
    v_mov_b32 v23, s6
    buffer_store_dwordx4 v[20:23], v24, s[44:47], 0 offen {QSF}
    """)
    stamp(4 if SD else 1)
    def wo_addr():
        a(f"""
        s_mov_b32 s36, s16
        s_mov_b32 s37, s17
        s_mov_b32 s38, {4096*1152}
        s_mov_b32 s39, 0x20000
        v_lshrrev_b32 v58, 3, v3
        v_lshl_add_u32 v58, v2, 1, v58
        s_lshl_b32 s30, s2, 4
        v_add_u32 v58, s30, v58
        s_movk_i32 s31, 1152
        v_mul_lo_u32 v58, v58, s31
        v_and_b32 v59, 7, v3
        v_lshl_add_u32 v58, v59, 4, v58
        v_add_u32 v59, 9216, v58
        """)
    def wo_issue():
        for bb in range(2):
            for blk in range(9):
                j = bb * 9 + blk
                a(f"buffer_load_dwordx4 v[{WB+4*j}:{WB+4*j+3}], v{58+bb}, s[36:39], 0 offen offset:{blk*128} {NT}")
    def wo_loads():
        wo_addr(); wo_issue()
    if not WOLATE and not WOG: wo_loads()
    a(f"""
    s_lshl_b32 s30, s4, 13
    s_add_u32 s30, s30, {QG}
    v_lshlrev_b32 v4, 4, v0
    v_add_u32 v4, s30, v4
    v_add_u32 v5, 4096, v4
    """)
    def qloads():
        for p in range(8):
            a(f"buffer_load_dwordx4 v[{24+4*p}:{24+4*p+3}], v{4 + (p >> 2)}, s[44:47], 0 offen offset:{(p & 3) * 1024} {QLF}")
    if WOG:
        if ORD3 and ACKW: a("s_waitcnt vmcnt(0)")
        qloads()
        if ORD2 or ORD3: a("s_barrier")
        if not WOT: wo_loads()
        a("s_mov_b32 s49, 0")
        a(f"s_waitcnt vmcnt({0 if WOT else 18})")
        if SD: stamp(5)
        a("s_branch L_q_chk")
        a("L_q_poll:")
        qloads()
        a("s_waitcnt vmcnt(0)")
        a("L_q_chk:")
    else:
        poll_begin("q")
        qloads()
        a("s_waitcnt vmcnt(0)")
    tagcheck(6, [24 + 4*p + o for p in range(8) for o in (1, 3)])
    poll_end("q", 6, code=1)
    for o in (0, 2):
        a(f"v_add_f32 v{24+o}, v{24+o}, v{28+o}")
        a(f"v_add_f32 v{32+o}, v{32+o}, v{36+o}")
        a(f"v_add_f32 v{40+o}, v{40+o}, v{44+o}")
        a(f"v_add_f32 v{48+o}, v{48+o}, v{52+o}")
        a(f"v_add_f32 v{24+o}, v{24+o}, v{32+o}")
        a(f"v_add_f32 v{40+o}, v{40+o}, v{48+o}")
        a(f"v_add_f32 v{24+o}, v{24+o}, v{40+o}")
    a("v_cvt_pk_bf16_f32 v24, v24, v26")
    a("v_and_b32 v25, 8, v3\nv_add_u32 v25, v25, v3\nv_lshl_add_u32 v25, v2, 5, v25\nv_lshlrev_b32 v25, 1, v25")
    a(f"ds_write_b16 v25, v24 offset:{L_Q}")
    a(f"ds_write_b16_d16_hi v25, v24 offset:{L_Q + 16}")
    a("s_waitcnt lgkmcnt(0)")
    if QF: a(f"v_mov_b32 v25, {L_QF}\nv_mov_b32 v26, 1\nds_write_b32 v25, v26")
    if not SD: stamp(2)
    if not QF: a("s_barrier")
    if WOLATE and not WOG: wo_loads()
    if TLB:
        a(f"""
        s_lshl_b32 s30, s4, 23
        s_add_u32 s32, s10, s30
        s_addc_u32 s33, s11, 0
        s_mov_b32 s34, 0x800000
        s_mov_b32 s35, 0x20000
        s_add_u32 s40, s12, s30
        s_addc_u32 s41, s13, 0
        s_mov_b32 s42, 0x800000
        s_mov_b32 s43, 0x20000
        s_mul_i32 s31, s5, {4*NV*8192}
        v_lshlrev_b32 v4, {TLB}, v0
        s_mul_i32 s30, s2, 0x1500
        s_and_b32 s30, s30, 0x7f00
        v_mul_u32_u24 v5, 0x1100, v0
        v_add_u32 v5, s30, v5
        v_and_b32 v5, 0x7f00, v5
        v_add_u32 v4, v4, v5
        v_add_u32 v5, s31, v4
        v_mov_b32 v7, 0x7f000000
        v_cmp_gt_u32 vcc, {4*NV*8192}, v4
        v_add_u32 v6, {POOL0*8192}, v4
        s_nop 0
        v_cndmask_b32 v5, v7, v5, vcc
        buffer_load_dword v196, v5, s[40:43], 0 offen {NT}
        buffer_load_dword v197, v6, s[40:43], 0 offen {NT}
        buffer_load_dword v198, v6, s[32:35], 0 offen {NT}
        """)
    if WOT: wo_addr()
    AB = 140; PR = 176
    job8_zero(AB)
    for t in range(3): a(f"v_mov_b32 v{PR+4*t+3}, s6")
    job8_addr(YA, 20)
    a(f"""
    v_lshrrev_b32 v56, 3, v3
    v_lshl_add_u32 v56, v2, 1, v56
    v_lshl_add_u32 v56, v2, 4, v56
    v_lshlrev_b32 v56, 2, v56
    v_add_u32 v57, 32, v56
    s_mov_b32 s60, {LOG2E:#x}
    """)
    if DYN and not NOPUB:
        wait_kdone("ha", 4)
        a(f"""
        v_lshrrev_b32 v4, 3, v0
        v_and_b32 v4, 3, v4                  ; w
        s_movk_i32 s30, {SSTR}
        v_mul_lo_u32 v5, v4, s30
        v_lshrrev_b32 v6, 5, v0
        v_lshl_add_u32 v5, v6, 8, v5
        v_and_b32 v7, 7, v0
        v_lshl_add_u32 v5, v7, 3, v5         ; LDS score address (minus L_S + NV*256)
        v_lshlrev_b32 v4, 7, v4
        v_lshl_add_u32 v4, v6, 2, v4         ; LDS id address (minus L_ID)
        v_lshlrev_b32 v7, 4, v7              ; j*16
        s_mul_i32 s30, s4, {NPOOL*128}
        s_add_u32 s30, s30, {SG}
        v_add_u32 v7, s30, v7
        v_mov_b32 v9, 0x7f000000
        s_mov_b32 s62, 0x07060302
        v_mov_b32 v25, s6
        v_mov_b32 v27, s6
        s_mov_b32 s49, 0
        L_pub:
        ds_read_b32 v8, v4 offset:{L_ID}
        ds_read_b32 v28, v5 offset:{L_S + NV*256}
        ds_read_b32 v29, v5 offset:{L_S + NV*256 + 64}
        ds_read_b32 v30, v5 offset:{L_S + NV*256 + 128}
        ds_read_b32 v31, v5 offset:{L_S + NV*256 + 192}
        s_waitcnt lgkmcnt(0)
        v_cmp_gt_u32 vcc, {NPOOL}, v8
        s_cbranch_vccz L_pub_done
        v_lshl_add_u32 v6, v8, 7, v7
        v_perm_b32 v24, v29, v28, s62
        v_perm_b32 v26, v31, v30, s62
        v_cndmask_b32 v6, v9, v6, vcc
        buffer_store_dwordx4 v[24:27], v6, s[44:47], 0 offen {PUBF}
        v_add_u32 v4, 8, v4
        v_add_u32 v5, 512, v5
        s_add_u32 s49, s49, 1
        s_waitcnt vmcnt(0)
        s_cmp_lt_u32 s49, {MAXD//2}
        s_cbranch_scc1 L_pub
        L_pub_done:
        """)
    a(f"""
    s_lshl_b32 s30, s2, 11
    s_add_u32 s30, s30, {AG}
    v_lshlrev_b32 v10, 4, v0
    v_add_u32 v10, s30, v10
    v_mov_b32 v11, s30
    s_lshl_b32 s30, s4, 14
    s_add_u32 s30, s30, {AG}
    v_lshlrev_b32 v4, 11, v2
    v_add_u32 v4, s30, v4
    v_add_u32 v5, 8192, v4
    s_lshl_b32 s31, s5, 7
    v_lshl_add_u32 v6, v3, 3, s31
    v_add_u32 v7, v5, v6
    v_add_u32 v6, v4, v6
    v_mov_b32 v8, 0
    v_lshlrev_b32 v9, 3, v0
    v_mov_b32 v41, s6
    v_mov_b32 v43, s6
    v_mov_b32 v45, s6
    v_mov_b32 v47, s6
    s_waitcnt vmcnt(0)
    """)
    a("s_barrier")
    if not SD: stamp(3)
    a(f"""
    ds_read_b128 v[24:27], v8 offset:{L_ML}
    ds_read_b128 v[28:31], v8 offset:{L_ML + 16}
    ds_read_b64 v[32:33], v9 offset:{L_O}
    ds_read_b64 v[34:35], v9 offset:{L_O + 512}
    ds_read_b64 v[36:37], v9 offset:{L_O + 1024}
    ds_read_b64 v[38:39], v9 offset:{L_O + 1536}
    s_waitcnt lgkmcnt(4)
    v_max_f32 v40, v24, v26
    v_max3_f32 v40, v40, v28, v30
    v_sub_f32 v24, v24, v40
    v_sub_f32 v26, v26, v40
    v_sub_f32 v28, v28, v40
    v_sub_f32 v30, v30, v40
    v_mul_f32 v24, s60, v24
    v_mul_f32 v26, s60, v26
    v_mul_f32 v28, s60, v28
    v_mul_f32 v30, s60, v30
    v_exp_f32 v24, v24
    v_exp_f32 v26, v26
    v_exp_f32 v28, v28
    v_exp_f32 v30, v30
    s_waitcnt lgkmcnt(0)
    v_mul_f32 v42, v24, v25
    v_mul_f32 v44, v24, v32
    v_mul_f32 v46, v24, v33
    v_fmac_f32 v42, v26, v27
    v_fmac_f32 v44, v26, v34
    v_fmac_f32 v46, v26, v35
    v_fmac_f32 v42, v28, v29
    v_fmac_f32 v44, v28, v36
    v_fmac_f32 v46, v28, v37
    v_fmac_f32 v42, v30, v31
    v_fmac_f32 v44, v30, v38
    v_fmac_f32 v46, v30, v39
    buffer_store_dwordx4 v[44:47], v10, s[44:47], 0 offen {AGF}
    s_mov_b64 exec, 1
    buffer_store_dwordx4 v[40:43], v11, s[44:47], 0 offen offset:1024 {AGF}
    s_mov_b64 exec, -1
    """)
    def agloads(G):
        a(f"""
        buffer_load_dwordx2 v[{G}:{G+1}], v6, s[44:47], 0 offen {AGLF}
        buffer_load_dwordx2 v[{G+2}:{G+3}], v7, s[44:47], 0 offen {AGLF}
        buffer_load_dwordx4 v[{G+4}:{G+7}], v4, s[44:47], 0 offen offset:1024 {AGLF}
        buffer_load_dwordx4 v[{G+8}:{G+11}], v5, s[44:47], 0 offen offset:1024 {AGLF}
        """)
    def agcheck(G):
        tagcheck(8, [G+1, G+3, G+5, G+7, G+9, G+11])
        a("v_cmp_ne_u32 vcc, 0, v8")
    if PIPE:
        S = [200, 212, 224]
        agloads(S[0]); a(f"s_sleep {AGSLEEP}")
        agloads(S[1]); a(f"s_sleep {AGSLEEP}")
        agloads(S[2])
        a("s_mov_b32 s49, 0")
        a("L_ag_poll:")
        for k in range(3):
            a("s_waitcnt vmcnt(8)")
            agcheck(S[k])
            a(f"s_cbranch_vccz L_ag_use{k}")
            agloads(S[k])
        a("s_add_u32 s49, s49, 1")
        a(f"s_cmp_lt_u32 s49, {POLLMAX}")
        a("s_cbranch_scc1 L_ag_poll")
        if dbg: a("v_mov_b32 v60, 2\nv_mov_b32 v61, 8\nglobal_atomic_or v61, v60, s[26:27]")
        for k in (2, 1, 0):
            a(f"L_ag_use{k}:")
            for o in (0, 2, 4, 6, 8, 10): a(f"v_mov_b32 v{24+o}, v{S[k]+o}")
            if k != 0: a("s_branch L_ag_got")
        a("L_ag_got:")
    elif WOT:
        agloads(24)
        wo_issue()
        a("s_mov_b32 s49, 0")
        a("s_waitcnt vmcnt(18)")
        a("s_branch L_ag_chk")
        a("L_ag_poll:")
        agloads(24)
        a("s_waitcnt vmcnt(0)")
        a("L_ag_chk:")
        tagcheck(8, [25, 27, 29, 31, 33, 35])
        poll_end("ag", 8, sleep=AGPS, code=2)
    elif YBL:
        agloads(24)
        a(f"v_mov_b32 v60, {L_QF}\nv_mov_b32 v61, 2\nds_write_b32 v60, v61")
        a("s_mov_b32 s49, 0")
        a("s_branch L_ag_chk")
        a("L_ag_poll:")
        agloads(24)
        a("L_ag_chk:")
        a("s_waitcnt vmcnt(0)")
        tagcheck(8, [25, 27, 29, 31, 33, 35])
        poll_end("ag", 8, sleep=AGPS, code=2)
    else:
        poll_begin("ag")
        agloads(24)
        a("s_waitcnt vmcnt(0)")
        tagcheck(8, [25, 27, 29, 31, 33, 35])
        poll_end("ag", 8, sleep=AGPS, code=2)
    if not SD: stamp(4)
    a("v_max_f32 v36, v28, v32")
    allreduce("v_max_f32", 36, 37, rors=())
    a(f"""
    v_sub_f32 v28, v28, v36
    v_sub_f32 v32, v32, v36
    v_mul_f32 v28, s60, v28
    v_mul_f32 v32, s60, v32
    v_exp_f32 v28, v28
    v_exp_f32 v32, v32
    s_nop 0
    v_mul_f32 v38, v28, v30
    v_mul_f32 v39, v28, v24
    v_fmac_f32 v38, v32, v34
    v_fmac_f32 v39, v32, v26
    v_mov_b32 v36, v38
    v_mov_b32 v37, v39
    s_nop 0
    v_permlane16_swap_b32 v38, v36
    v_permlane16_swap_b32 v39, v37
    v_add_f32 v38, v38, v36
    v_add_f32 v39, v39, v37
    v_mov_b32 v36, v38
    v_mov_b32 v37, v39
    s_nop 0
    v_permlane32_swap_b32 v38, v36
    v_permlane32_swap_b32 v39, v37
    v_add_f32 v38, v38, v36
    v_add_f32 v39, v39, v37
    v_rcp_f32 v40, v38
    s_nop 0
    """)
    div_refined(41, 39, 38, 40, 37)
    a("v_cvt_pk_bf16_f32 v41, v41, v41")
    a(f"""
    ds_bpermute_b32 v44, v56, v41
    ds_bpermute_b32 v45, v57, v41
    s_waitcnt vmcnt(0) lgkmcnt(0)
    """)
    job8(WB, 2, [44, 45], AB)
    job8_publish(AB, PR, 20, YAF)
    if not SD: stamp(5)
    stamp_store(6)
    a("s_endpgm")

    a("L_helperB:")
    if ORD2: a("s_barrier\ns_barrier")
    if ORD3: a("s_barrier")
    T0[0] = 46
    W1B = 52; W2B = 148
    a(f"""
    s_mul_i32 s50, s2, 43691
    s_lshr_b32 s50, s50, 18
    s_mul_i32 s30, s50, 6
    s_sub_u32 s51, s2, s30           ; rs
    s_mul_i32 s48, s51, 96
    """)
    ln_loads(48)
    a(f"""
    s_mov_b32 s36, s20
    s_mov_b32 s37, s21
    s_mov_b32 s38, {576*9216}
    s_mov_b32 s39, 0x20000
    v_add_u32 v23, s48, v2
    s_movk_i32 s31, 9216
    v_mul_lo_u32 v23, v23, s31
    v_lshl_add_u32 v23, v3, 4, v23
    s_lshl_b32 s30, s50, 8
    v_add_u32 v23, s30, v23
    s_cmp_lt_u32 s2, 216
    s_cbranch_scc1 L_hasw1
    v_mov_b32 v23, 0x7f000000
    L_hasw1:
    """)
    if B0: a("s_barrier")
    for j in range(24):
        a(f"s_mov_b32 s31, {j*36864}")
        a(f"buffer_load_dwordx4 v[{W1B+4*j}:{W1B+4*j+3}], v23, s[36:39], s31 offen {NT}")
    def w2_loads():
        a(f"""
        s_mul_i32 s86, s2, 9
        s_lshr_b32 s87, s86, 2           ; b0
        s_add_u32 s86, s86, 9
        s_lshr_b32 s86, s86, 2
        s_sub_u32 s86, s86, s87          ; cnt
        s_mov_b32 s40, s22
        s_mov_b32 s41, s23
        s_mov_b32 s42, {4608*1152}
        s_mov_b32 s43, 0x20000
        v_lshrrev_b32 v40, 3, v3
        v_lshl_add_u32 v40, v2, 1, v40
        s_lshl_b32 s30, s87, 3
        v_add_u32 v40, s30, v40
        s_movk_i32 s31, 1152
        v_mul_lo_u32 v40, v40, s31
        v_and_b32 v41, 7, v3
        v_lshl_add_u32 v40, v41, 4, v40
        v_add_u32 v41, 9216, v40
        v_add_u32 v42, 18432, v40
        s_cmp_eq_u32 s86, 3
        s_cbranch_scc1 L_cnt3
        v_mov_b32 v42, 0x7f000000
        L_cnt3:
        """)
        for bb in range(3):
            for blk in range(9):
                j = bb * 9 + blk
                a(f"buffer_load_dwordx4 v[{W2B+4*j}:{W2B+4*j+3}], v{40+bb}, s[40:43], 0 offen offset:{blk*128} {NT}")
    if ORD3: a("s_barrier")
    if W2EARLY: w2_loads()
    if TW:
        a(f"""
        s_lshl_b32 s30, s4, 23
        s_add_u32 s32, s12, s30
        s_addc_u32 s33, s13, 0
        s_mov_b32 s34, 0x800000
        s_mov_b32 s35, 0x20000
        v_and_b32 v43, 7, v0
        v_lshlrev_b32 v43, 20, v43
        s_mul_i32 s31, s2, 0x1500
        s_and_b32 s31, s31, 0x7f00
        s_add_u32 s31, s31, 0xf0000
        v_add_u32 v43, s31, v43
        v_mov_b32 v44, 0x7f000000
        v_cmp_gt_u32 vcc, 8, v0
        s_nop 1
        v_cndmask_b32 v43, v44, v43, vcc
        buffer_load_dword v45, v43, s[32:35], 0 offen {NT}
        s_add_u32 s32, s10, s30
        s_addc_u32 s33, s11, 0
        buffer_load_dword v45, v43, s[32:35], 0 offen {NT}
        v_lshlrev_b32 v43, 20, v0
        s_lshl_b32 s31, s2, 8
        v_add_u32 v43, s31, v43
        v_cmp_gt_u32 vcc, 9, v0
        s_nop 1
        v_cndmask_b32 v43, v44, v43, vcc
        buffer_load_dword v45, v43, s[44:47], 0 offen
        s_mov_b32 s32, s24
        s_mov_b32 s33, s25
        s_mov_b32 s34, 1152
        v_mov_b32 v43, 0
        s_mov_b64 exec, 1
        buffer_load_dword v45, v43, s[32:35], 0 offen
        s_mov_b64 exec, -1
        """)
    make_masks(20, 21)
    if not QF: a("s_barrier")
    if NOFFN: a("s_waitcnt vmcnt(0) lgkmcnt(0)"); make_tag(); a("s_branch L_ffn_done")
    nyo = (27 if W2EARLY else 0) + (4 if TW else 0)
    a(f"s_waitcnt vmcnt({24 + nyo})")
    ln_compute()
    job4(W1B, 24, nyo)
    a(f"s_waitcnt lgkmcnt(0)")
    make_tag()
    a(f"""
    v_lshlrev_b32 v24, 4, v0
    s_mul_i32 s30, s51, {4608*8}
    s_lshl_b32 s31, s50, 10
    s_add_u32 s30, s30, s31
    s_add_u32 s30, s30, {HG}
    v_add_u32 v24, s30, v24
    v_mov_b32 v21, s6
    v_mov_b32 v23, s6
    s_cmp_lt_u32 s2, 216
    s_cbranch_scc0 L_nopubh
    buffer_store_dwordx4 v[20:23], v24, s[44:47], 0 offen {HF}
    L_nopubh:
    """)
    stamp(1)
    if not W2EARLY: w2_loads()
    a(f"""
    v_lshrrev_b32 v4, 5, v0
    s_mov_b32 s31, {4608*8}
    v_mul_lo_u32 v4, v4, s31
    v_and_b32 v5, 31, v0
    s_lshl_b32 s30, s86, 3
    v_cmp_gt_u32 s[54:55], s30, v5
    s_lshl_b32 s30, s87, 3
    v_add_u32 v5, s30, v5
    v_lshrrev_b32 v6, 4, v5
    v_lshlrev_b32 v6, 3, v6                 ; *8 lanes
    v_and_b32 v7, 7, v5
    v_add_u32 v6, v6, v7
    v_lshlrev_b32 v6, 4, v6
    v_bfe_u32 v7, v5, 3, 1
    v_lshl_add_u32 v6, v7, 3, v6
    v_add_u32 v4, v4, v6
    v_add_u32 v4, {HG}, v4
    v_add_u32 v5, {2*4608*8}, v4
    v_add_u32 v6, {4*4608*8}, v4
    """)
    AB = 52; PR = 88
    job8_zero(AB)
    for t in range(3): a(f"v_mov_b32 v{PR+4*t+3}, s6")
    job8_addr(YBb, 20)
    if HLATE: wait_kdone("hb", 40)
    poll_begin("h")
    a(f"""
    buffer_load_dwordx2 v[28:29], v4, s[44:47], 0 offen {HF}
    buffer_load_dwordx2 v[30:31], v5, s[44:47], 0 offen {HF}
    buffer_load_dwordx2 v[32:33], v6, s[44:47], 0 offen {HF}
    s_waitcnt vmcnt(0)
    """)
    tagcheck(8, [29, 31, 33])
    a("v_cndmask_b32 v8, 0, v8, s[54:55]")
    poll_end("h", 8, sleep=HSLEEP, code=3)
    a(f"""
    v_add_f32 v28, v28, v30
    v_add_f32 v28, v28, v32
    v_cndmask_b32 v28, 0, v28, s[54:55]
    v_mov_b32 v29, v28
    s_nop 1
    v_permlane32_swap_b32 v28, v29
    v_add_f32 v28, v28, v29
    """)
    to_bf16f(28, 28)
    a(f"""
    s_mov_b32 s60, {LOG2E:#x}
    v_mul_f32 v29, s60, v28
    v_exp_f32 v29, -v29
    s_nop 0
    v_add_f32 v29, 1.0, v29
    v_rcp_f32 v30, v29
    s_nop 0
    v_mul_f32 v31, v28, v30
    v_cvt_pk_bf16_f32 v31, v31, v31
    v_lshrrev_b32 v32, 3, v3
    v_lshl_add_u32 v32, v2, 1, v32
    v_lshlrev_b32 v32, 2, v32
    v_add_u32 v33, 32, v32
    v_add_u32 v34, 64, v32
    ds_bpermute_b32 v36, v32, v31
    ds_bpermute_b32 v37, v33, v31
    ds_bpermute_b32 v38, v34, v31
    s_waitcnt lgkmcnt(0)
    """)
    job8(W2B, 3, [36, 37, 38], AB)
    job8_finish(AB, PR)
    if NOFFN: a("L_ffn_done:"); [a(f"v_mov_b32 v{PR+4*t+3}, s6") for t in range(3)]; job8_addr(YBb, 20)
    stamp(2)
    def yaddr():
        if YPAD:
            a(f"""
            s_lshl_b32 s30, s2, 15
            v_lshrrev_b32 v4, 2, v0
            v_lshlrev_b32 v4, 7, v4
            v_and_b32 v5, 3, v0
            v_lshl_add_u32 v4, v5, 4, v4
            v_add_u32 v4, s30, v4
            v_add_u32 v5, 8192, v4
            v_add_u32 v6, 16384, v4
            v_add_u32 v7, 24576, v4
            """)
        else:
            a(f"""
            s_lshl_b32 s30, s2, {YSH}
            v_lshlrev_b32 v4, 4, v0
            v_add_u32 v4, s30, v4
            v_add_u32 v5, 4096, v4
            v_add_u32 v6, 8192, v4
            v_add_u32 v7, 12288, v4
            """)
        a(f"s_mov_b32 s88, {YBb}\ns_mov_b32 s89, {YA}")
    def yloads(G, sbase, fl):
        for i in range(NL):
            if YPAD:
                a(f"s_add_u32 s90, {sbase}, {(i & 3) * 2048}")
                a(f"buffer_load_dwordx4 v[{G+4*i}:{G+4*i+3}], v{4 + (i >> 2)}, s[44:47], s90 offen {fl}")
            else:
                a(f"buffer_load_dwordx4 v[{G+4*i}:{G+4*i+3}], v{4 + (i >> 2)}, s[44:47], {sbase} offen offset:{(i & 3)*1024} {fl}")
    def ycheck(G):
        tagcheck(8, [G + 4*i + 3 for i in range(NL)])
        a("v_cmp_ne_u32 vcc, 0, v8")
    def ysum(d, G):
        st = 1
        while st < NL:
            for i in range(0, NL, 2 * st):
                x, y = G + 4*i, G + 4*(i + st)
                a(f"v_pk_add_f32 v[{x}:{x+1}], v[{x}:{x+1}], v[{y}:{y+1}]")
                a(f"v_add_f32 v{x+2}, v{x+2}, v{y+2}")
            st *= 2
        R = [G, G + 1, G + 2]; Tm = [G + 4, G + 5, G + 6]
        a.nop(1)
        for n in ((2, 4, 8) if R96 else (4, 8)):
            for x in R: a(f"v_add_f32_dpp v{x}, v{x}, v{x} row_ror:{n} row_mask:0xf bank_mask:0xf")
        for sw in ("16", "32"):
            for x, t in zip(R, Tm): a(f"v_mov_b32 v{t}, v{x}")
            for x, t in zip(R, Tm): a(f"v_permlane{sw}_swap_b32 v{x}, v{t}")
            for x, t in zip(R, Tm): a(f"v_add_f32 v{x}, v{x}, v{t}")
        for k, x in enumerate(R): a(f"v_cvt_pk_bf16_f32 v{d+k}, v{x}, v{x}")
        for k in range(3): a(f"v_and_b32 v{d+k}, 0xffff0000, v{d+k}")
    GA, GB2 = 100, 164
    a(f"""
    s_mov_b32 s32, s8
    s_mov_b32 s33, s9
    s_mov_b32 s34, 1152
    s_mov_b32 s35, 0x20000
    s_lshr_b32 s30, s2, {5 if R96 else 4}
    s_mul_i32 s30, s30, 192
    s_and_b32 s31, s2, {31 if R96 else 15}
    s_lshl_b32 s31, s31, {1 if R96 else 2}
    s_add_u32 s30, s30, s31
    v_and_b32 v10, {1 if R96 else 3}, v0
    v_add_u32 v10, s30, v10
    v_lshlrev_b32 v10, 1, v10
    buffer_load_ushort v12, v10, s[32:35], 0 offen
    buffer_load_ushort v13, v10, s[32:35], 0 offen offset:128
    buffer_load_ushort v14, v10, s[32:35], 0 offen offset:256
    s_mov_b32 s36, s24
    s_mov_b32 s37, s25
    s_mov_b32 s38, 1152
    s_mov_b32 s39, 0x20000
    """)
    yaddr()
    a("s_waitcnt vmcnt(0)")
    a("v_lshlrev_b32 v12, 16, v12\nv_lshlrev_b32 v13, 16, v13\nv_lshlrev_b32 v14, 16, v14")
    stamp(3)
    a("s_barrier")
    if YBL:
        a(f"v_mov_b32 v44, {L_QF}\ns_mov_b32 s49, 0\nL_ybw:\nds_read_b32 v45, v44\ns_add_u32 s49, s49, 1\ns_waitcnt lgkmcnt(0)\nv_readfirstlane_b32 s30, v45")
        a(f"s_cmp_ge_u32 s49, {POLLMAX * 16}\ns_cbranch_scc1 L_ybd\ns_cmp_eq_u32 s30, 2\ns_cbranch_scc0 L_ybw\nL_ybd:")
    job8_store(PR, 20, YBSF)
    a(f"s_cmp_lt_u32 s2, {NRED}")
    a("s_cbranch_scc0 L_notred2")
    poll_begin("yb")
    yloads(GB2, "s88", YBLF)
    a("s_waitcnt vmcnt(0)")
    tagcheck(8, [GB2 + 4*i + 3 for i in range(NL)])
    poll_end("yb", 8, sleep=YBPS, code=4)
    yloads(GA, "s89", YALF)
    ysum(40, GB2)
    if PIPE:
        yloads(GB2, "s89", YALF)
        a("s_mov_b32 s49, 0")
        a("L_ya_poll:")
        a(f"s_waitcnt vmcnt({NL})")
        ycheck(GA)
        a("s_cbranch_vccz L_ya_useA")
        yloads(GA, "s89", YALF)
        a(f"s_waitcnt vmcnt({NL})")
        ycheck(GB2)
        a("s_cbranch_vccz L_ya_useB")
        yloads(GB2, "s89", YALF)
        a("s_add_u32 s49, s49, 1")
        a(f"s_cmp_lt_u32 s49, {POLLMAX}")
        a("s_cbranch_scc1 L_ya_poll")
        if dbg: a("v_mov_b32 v46, 5\nv_mov_b32 v47, 20\nglobal_atomic_or v47, v46, s[26:27]")
        a("L_ya_useB:")
        stamp(4)
        ysum(24, GB2)
        a("s_branch L_ya_fin")
        a("L_ya_useA:")
        stamp(4)
        ysum(24, GA)
        a("L_ya_fin:")
    else:
        a("s_mov_b32 s49, 0")
        a("s_branch L_ya_chk")
        a("L_ya_poll:")
        yloads(GA, "s89", YALF)
        a("L_ya_chk:")
        a("s_waitcnt vmcnt(0)")
        tagcheck(8, [GA + 4*i + 3 for i in range(NL)])
        poll_end("ya", 8, sleep=YAPS, code=5)
        stamp(4)
        ysum(24, GA)
    for k in range(3): a(f"v_add_f32 v{24+k}, v{12+k}, v{24+k}")
    for k in range(3): a(f"v_cvt_pk_bf16_f32 v{24+k}, v{24+k}, v{24+k}")
    for k in range(3): a(f"v_and_b32 v{24+k}, 0xffff0000, v{24+k}")
    for k in range(3): a(f"v_add_f32 v{24+k}, v{24+k}, v{40+k}")
    for k in range(3): a(f"v_cvt_pk_bf16_f32 v{24+k}, v{24+k}, v{24+k}")
    a(f"""
    s_mov_b64 exec, {3 if R96 else 15}
    buffer_store_short v24, v10, s[36:39], 0 offen
    buffer_store_short v25, v10, s[36:39], 0 offen offset:128
    buffer_store_short v26, v10, s[36:39], 0 offen offset:256
    s_mov_b64 exec, -1
    s_cmp_eq_u32 s2, 0
    s_cbranch_scc0 L_notred2
    v_mov_b32 v4, {EPOCH}
    v_mov_b32 v5, s6
    s_mov_b64 exec, 1
    buffer_store_dword v5, v4, s[44:47], 0 offen sc1
    s_mov_b64 exec, -1
    L_notred2:
    """)
    stamp(5)
    stamp_store(6, t=46)
    if AGG:
        a("s_cmp_eq_u32 s2, 0\ns_cbranch_scc0 L_end")
        a("s_mov_b32 s49, 0\nL_aggw:\ns_sleep 64\ns_add_u32 s49, s49, 1\ns_cmp_lt_u32 s49, 40\ns_cbranch_scc1 L_aggw")
        Q = [("all", 0, "min"), ("s", 1, "max"), ("s", 2, "max"), ("s", 5, "min"), ("s", 5, "max"), ("s", 3, "min"), ("s", 3, "max"), ("s", 3, "sum"),
             ("a", 1, "max"), ("a", 4, "max"), ("a", 5, "max"), ("b", 4, "max"), ("b", 5, "max"), ("s", 2, "sum"), ("a", 1, "sum"), ("all", 0, "max")]
        a("v_and_b32 v4, 7, v0")
        a("v_cmp_gt_u32 s[52:53], 4, v4\nv_cmp_eq_u32 s[54:55], 4, v4\nv_cmp_eq_u32 s[56:57], 5, v4\nv_cmp_gt_u32 s[58:59], 6, v4")
        for i, (r, idx, op) in enumerate(Q):
            a(f"v_mov_b32 v{100+i}, {'0x7fffffff' if op == 'min' else ('0x80000000' if op == 'max' else 0)}")
        a(f"v_lshlrev_b32 v5, 6, v0\nv_add_u32 v5, {TS}, v5\ns_mov_b32 s49, 0")
        a("L_agg:")
        a("buffer_load_dwordx4 v[8:11], v5, s[44:47], 0 offen sc1\nbuffer_load_dwordx4 v[12:15], v5, s[44:47], 0 offen offset:16 sc1")
        a("s_lshl_b32 s30, s49, 3\nv_lshrrev_b32 v6, 3, v0\nv_add_u32 v6, s30, v6\nv_cmp_gt_u32 s[60:61], 48, v6\ns_and_b64 s[60:61], s[60:61], s[56:57]")
        a("s_waitcnt vmcnt(0)")
        for k in range(8): a(f"v_subrev_u32 v{8+k}, s70, v{8+k}")
        masks = {"all": "s[58:59]", "s": "s[52:53]", "a": "s[54:55]", "b": "s[60:61]"}
        for i, (r, idx, op) in enumerate(Q):
            neutral = {"min": "0x7fffffff", "max": "0x80000000", "sum": "0"}[op]
            a(f"v_mov_b32 v16, {neutral}")
            a(f"v_cndmask_b32 v16, v16, v{8+idx}, {masks[r]}")
            a({"min": f"v_min_i32 v{100+i}, v{100+i}, v16", "max": f"v_max_i32 v{100+i}, v{100+i}, v16", "sum": f"v_add_u32 v{100+i}, v{100+i}, v16"}[op])
        a("v_add_u32 v5, 4096, v5\ns_add_u32 s49, s49, 1\ns_cmp_lt_u32 s49, 32\ns_cbranch_scc1 L_agg")
        for i, (r, idx, op) in enumerate(Q):
            allreduce({"min": "v_min_i32", "max": "v_max_i32", "sum": "v_add_u32"}[op], 100 + i, 16)
        a("s_mov_b32 s32, s26\ns_mov_b32 s33, s27\ns_mov_b32 s34, 256\ns_mov_b32 s35, 0x20000\nv_mov_b32 v4, 0\ns_mov_b64 exec, 1")
        for i in range(len(Q)): a(f"buffer_store_dword v{100+i}, v4, s[32:35], 0 offen offset:{4*i}")
        a("s_waitcnt vmcnt(0)")
    a("L_end:")
    a("s_endpgm")
    body = a.text()
    txt = f"""{HEADER}; @launch grid=(256,1,1) block=(384,1,1) lds={LDS}
.amdgcn_target "amdgcn-amd-amdhsa--gfx950"
.text
.globl {KN}
.p2align 8
.type {KN},@function
{KN}:
{body}
.section .rodata,"a"
.p2align 6
.amdhsa_kernel {KN}
  .amdhsa_next_free_vgpr 256
  .amdhsa_next_free_sgpr 96
  .amdhsa_accum_offset 256
  .amdhsa_group_segment_fixed_size 0
  .amdhsa_kernarg_size 88
  .amdhsa_user_sgpr_count 2
  .amdhsa_user_sgpr_kernarg_segment_ptr 1
  .amdhsa_system_sgpr_workgroup_id_x 1
.end_amdhsa_kernel
"""
    return txt

if __name__ == "__main__":
    import argparse
    ap = argparse.ArgumentParser()
    ap.add_argument("out")
    ap.add_argument("--nv", type=int, default=24)
    ap.add_argument("--w", type=int, default=8)
    ap.add_argument("--nohilo", action="store_true")
    ap.add_argument("--ts", action="store_true")
    ap.add_argument("--dbg", action="store_true")
    ap.add_argument("--prog", action="store_true")
    ap.add_argument("--w2late", action="store_true")
    ap.add_argument("--wolate", action="store_true")
    ap.add_argument("--nopf", action="store_true")
    ap.add_argument("--ord2", action="store_true"); ap.add_argument("--cstr", type=int, default=256); ap.add_argument("--cbase", type=lambda x: int(x, 0), default=None); ap.add_argument("--ord3", action="store_true"); ap.add_argument("--noackw", action="store_true"); ap.add_argument("--noffn", action="store_true"); ap.add_argument("--hsleep", type=int, default=16); ap.add_argument("--atomrepl", default=None); ap.add_argument("--nowgt", action="store_true"); ap.add_argument("--noatom", action="store_true"); ap.add_argument("--nosl", action="store_true"); ap.add_argument("--fake", action="store_true"); ap.add_argument("--burst", action="store_true"); ap.add_argument("--rq", type=int, default=-1); ap.add_argument("--batch", type=int, default=0); ap.add_argument("--thr", type=int, default=96)
    ap.add_argument("--sd", action="store_true")
    ap.add_argument("--agg", action="store_true")
    ap.add_argument("--agps", type=int, default=0); ap.add_argument("--yaps", type=int, default=0); ap.add_argument("--tw", action="store_true"); ap.add_argument("--ybl", action="store_true"); ap.add_argument("--r96", action="store_true"); ap.add_argument("--ypad", action="store_true"); ap.add_argument("--aw", default=None); ap.add_argument("--lt", action="store_true"); ap.add_argument("--wd8", action="store_true"); ap.add_argument("--wot", action="store_true"); ap.add_argument("--pre8", action="store_true"); ap.add_argument("--ybps", type=int, default=0); ap.add_argument("--aglf", default=None); ap.add_argument("--yalf", default=None); ap.add_argument("--pipe", action="store_true"); ap.add_argument("--agsleep", type=int, default=6); ap.add_argument("--noqf", action="store_true"); ap.add_argument("--nohlate", action="store_true"); ap.add_argument("--hf", default="sc1"); ap.add_argument("--qsf", default="sc1"); ap.add_argument("--qlf", default="sc1"); ap.add_argument("--agf", default="sc1"); ap.add_argument("--yaf", default="sc1")
    ap.add_argument("--b0", action="store_true"); ap.add_argument("--wog", action="store_true")
    ap.add_argument("--pubf", default="sc1 nt"); ap.add_argument("--slf", default="sc1 nt"); ap.add_argument("--ybsf", default="sc1"); ap.add_argument("--yblf", default="sc1")
    ap.add_argument("--nopub", action="store_true")
    ap.add_argument("--noyb", action="store_true")
    ap.add_argument("--tlb", type=int, default=0)
    args = ap.parse_args()
    t = gen(NV=args.nv, HILO=not args.nohilo, TSTAMP=args.ts, dbg=args.dbg, W=args.w, PROG=args.prog,
            W2EARLY=not args.w2late, WOLATE=args.wolate, PF=not args.nopf, TLB=args.tlb, NOPUB=args.nopub, NOYB=args.noyb, PUBF=args.pubf, SLF=args.slf, YBSF=args.ybsf, YBLF=args.yblf, HF=args.hf, QSF=args.qsf, QLF=args.qlf, AGF=args.agf, YAF=args.yaf, B0=args.b0, WOG=args.wog, AGG=args.agg, SD=args.sd, ORD2=args.ord2, BURST=args.burst, RQ=args.rq, BATCH=args.batch, THR=args.thr, FAKE=args.fake, NOATOM=args.noatom, NOSL=args.nosl, WGT=not args.nowgt, ATOMREPL=args.atomrepl, CSTR=args.cstr, CBASE=args.cbase, ORD3=args.ord3, ACKW=not args.noackw, NOFFN=args.noffn, HSLEEP=args.hsleep, QF=not args.noqf, HLATE=not args.nohlate, PIPE=args.pipe, AGSLEEP=args.agsleep, AGLF=args.aglf, YALF=args.yalf, AGPS=args.agps, YAPS=args.yaps, YBPS=args.ybps, WOT=args.wot, PRE8=args.pre8, WD8=args.wd8, LT=args.lt, YPAD=args.ypad, R96=args.r96, YBL=args.ybl, TW=args.tw, AW=(tuple(int(x) for x in args.aw.split(',')) if args.aw else None))
    errs = hazard.check(t)
    for e in errs: print("HAZARD", e)
    open(args.out, "w").write(t)
```

```python
import sys
from asmlib import A, NAME, KN
import hazard

WS_SIZE = 0x1000000
EPOCH = 0
CNT   = 0x1000
QG    = 0x10000
HG    = 0x60000
AG    = 0xA0000
SG    = 0x140000
YA    = 0x600000
YB    = 0x740000
TS    = 0x900000
L_Q   = 0
L_ML  = 256
L_FLAG = 320
L_QF  = 324
L_O   = 512
L_S   = 4096
L_ID  = 53248
SSTR  = 12288
L_TQ  = 53760
LOG2E = 0x3FB8AA3B
SCALE = 0x3DB504F3

HEADER = """; Fused decode step  out = x + MHA(LN(x)) + FFN(LN(x))   for gfx950 (hand-written; emitted by my own generator script).
;
;              (exp(score - true running max) x V on MFMA).  Each wave owns 30 tiles of 32 keys per phase; the last
;              combines the 8 partial softmax results of the head, multiplies 16 rows of wo
; Cross-workgroup hand-offs are {value(s), tag} granules in d_ws written/read with sc1; the tag is derived from an
"""

class K(A):
    noatom = False
    atomrepl = None
    def __call__(self, s=''):
        if self.noatom: s = '\n'.join(l for l in s.split('\n') if 's_atomic_add' not in l)
        if self.atomrepl: s = '\n'.join((self.atomrepl if 's_atomic_add' in l else l) for l in s.split('\n'))
        super().__call__(s)
    def nop(self, n):
        while n > 0:
            m = min(n, 16); self(f"s_nop {m-1}"); n -= m

def gen(NV=24, HILO=True, TSTAMP=False, NT="nt", POLLMAX=40000, LDS=86016, dbg=False, W=8, PROG=False,
        W2EARLY=True, WOLATE=False, PF=True, TLB=0, NOPUB=False, NOYB=False, PUBF='sc1 nt', SLF='sc1 nt', YBSF='sc1', YBLF='sc1', HF='sc1', QSF='sc1', QLF='sc1', AGF='sc1', YAF='sc1', B0=False, WOG=False, AGG=False, SD=False, ORD2=False, BURST=False, RQ=-1, BATCH=0, THR=96, FAKE=False, NOATOM=False, NOSL=False, WGT=True, ATOMREPL=None, CSTR=256, CBASE=None, ORD3=False, ACKW=True, PRE=0, NOFFN=False, NOWO=False, HSLEEP=16, QF=True, HLATE=True, PIPE=False, AGSLEEP=6, AGLF=None, YALF=None, AGPS=0, YAPS=0, YBPS=0, WOT=False, PRE8=False, WD8=False, LT=False, AW=None, YPAD=False, R96=False, YBL=False, TW=False, FINX=0, OUTF='', PF2=False, AFIRST=False):
    a = K()
    YSH = 15 if YPAD else 14
    YP = 7 if YPAD else 6
    YBb = 0x780000 if YPAD else YB
    NRED = 96 if R96 else 48
    NL = 8 if R96 else 16
    if R96: YSH, YP = 13, 5
    AGLF = AGLF or AGF; YALF = YALF or YAF
    VOFF = 128 if CSTR >= 256 else 4
    a.noatom = NOATOM
    a.atomrepl = ATOMREPL
    DYN = NV < 32
    NP = 32 - NV; POOL0 = 32 * NV; NPOOL = 32 * NP
    MAXD = 48 - NV if NV < 32 else 0
    MAXD -= MAXD & 1
    MAXD = min(MAXD, 32)
    assert 32 * MAXD >= NPOOL
    assert SG + 32 * NPOOL * 128 + 65536 <= YA
    T0 = [60]

    def stamp(i):
        if TSTAMP:
            a(f"s_memrealtime s[{70+2*i}:{71+2*i}]")
            a("s_waitcnt lgkmcnt(0)")
    def stamp_store(nst, t=60):
        if TSTAMP:
            a("s_waitcnt vmcnt(0)")
            a("s_lshl_b32 s30, s2, 3\ns_add_u32 s30, s30, s3\ns_lshl_b32 s30, s30, 6")
            a(f"s_add_u32 s30, s30, {TS}")
            a("s_mov_b64 exec, 1")
            a(f"v_mov_b32 v{t}, s30")
            for i in range(nst):
                a(f"v_mov_b32 v{t+1}, s{70+2*i}")
                a(f"buffer_store_dword v{t+1}, v{t}, s[44:47], 0 offen offset:{4*i}" + (" sc1" if AGG else ""))
            a("s_getreg_b32 s31, hwreg(HW_REG_XCC_ID)")
            a(f"v_mov_b32 v{t+1}, s31")
            a(f"buffer_store_dword v{t+1}, v{t}, s[44:47], 0 offen offset:60")
            a("s_waitcnt vmcnt(0)")
            a("s_mov_b64 exec, -1")

    def make_masks(tmp1, tmp2):
        a(f"v_and_b32 v{tmp1}, 7, v3")
        a(f"v_and_b32 v{tmp2}, 1, v3")
        a(f"v_lshlrev_b32 v{tmp2}, 4, v{tmp2}")
        a(f"v_mov_b32 v12, 0xffff")
        a(f"v_lshlrev_b32 v{tmp2}, v{tmp2}, v12")
        a(f"v_lshrrev_b32 v{tmp1}, 1, v{tmp1}")
        for w in range(4):
            a(f"v_cmp_eq_u32 vcc, {w}, v{tmp1}")
            a.nop(2)
            a(f"v_cndmask_b32 v{12+w}, 0, v{tmp2}, vcc")

    def allreduce(op, v, t, rors=(8, 4, 2, 1), cross=True):
        for n in rors:
            a.nop(2)
            a(f"{op}_dpp v{v}, v{v}, v{v} row_ror:{n} row_mask:0xf bank_mask:0xf")
        if cross:
            for sw in ("16", "32"):
                a(f"v_mov_b32 v{t}, v{v}")
                a.nop(2)
                a(f"v_permlane{sw}_swap_b32 v{v}, v{t}")
                a(f"{op} v{v}, v{v}, v{t}")

    def to_bf16f(dst, src):
        a(f"v_cvt_pk_bf16_f32 v{dst}, v{src}, v{src}")
        a(f"v_and_b32 v{dst}, 0xffff0000, v{dst}")

    def div_refined(dst, num, den, rcp, t):
        a(f"v_mul_f32 v{dst}, v{num}, v{rcp}")
        a(f"v_fma_f32 v{t}, -v{dst}, v{den}, v{num}")
        a(f"v_fma_f32 v{dst}, v{t}, v{rcp}, v{dst}")

    def poll_begin(name):
        a(f"s_mov_b32 s49, 0")
        a(f"L_{name}_poll:")
    def poll_end(name, acc, sleep=0, code=1):
        a(f"v_cmp_ne_u32 vcc, 0, v{acc}")
        a(f"s_cbranch_vccz L_{name}_ok")
        a(f"s_add_u32 s49, s49, 1")
        if sleep: a(f"s_sleep {sleep}")
        a(f"s_cmp_lt_u32 s49, {POLLMAX}")
        a(f"s_cbranch_scc1 L_{name}_poll")
        if dbg:
            t = T0[0]
            a(f"v_mov_b32 v{t}, {code}\nv_mov_b32 v{t+1}, {4*code}\nglobal_atomic_or v{t+1}, v{t}, s[26:27]")
        a(f"L_{name}_ok:")
    def tagcheck(acc, tagregs):
        it = list(tagregs); tmp = T0[0]
        for i in range(0, len(it), 2):
            pair = it[i:i+2]
            if i == 0:
                a(f"v_xor_b32 v{acc}, s6, v{pair[0]}")
                if len(pair) > 1:
                    a(f"v_xor_b32 v{tmp}, s6, v{pair[1]}")
                    a(f"v_or_b32 v{acc}, v{acc}, v{tmp}")
            else:
                a(f"v_xor_b32 v{tmp}, s6, v{pair[0]}")
                if len(pair) > 1:
                    a(f"v_xor_b32 v{tmp+1}, s6, v{pair[1]}")
                    a(f"v_or3_b32 v{acc}, v{acc}, v{tmp}, v{tmp+1}")
                else:
                    a(f"v_or_b32 v{acc}, v{acc}, v{tmp}")
    def wait_kdone(name, v):
        a(f"v_mov_b32 v{v}, {L_FLAG}")
        a("s_mov_b32 s49, 0")
        a(f"L_{name}_kw:")
        a(f"ds_read_b32 v{v+1}, v{v}")
        a("s_waitcnt lgkmcnt(0)")
        a(f"v_readfirstlane_b32 s30, v{v+1}")
        a("s_add_u32 s49, s49, 1")
        a("s_cmp_ge_u32 s30, 256")
        a(f"s_cbranch_scc1 L_{name}_kd")
        a("s_sleep 16")
        a(f"s_cmp_lt_u32 s49, {POLLMAX * 4}")
        a(f"s_cbranch_scc1 L_{name}_kw")
        a(f"L_{name}_kd:")
    def ticket_init():
        a("s_mov_b32 s88, 0x10000\ns_mov_b32 s89, 0")
    def ticket_first():
        a("s_mov_b32 s89, 2\ns_mov_b32 s59, 2\ns_atomic_add s59, s[64:65], 0 glc")
    def ticket_top(tag, thr, capslot=None):
        a("s_cmp_lt_u32 s88, 0x10000")
        a(f"s_cbranch_scc1 L_tq{tag}")
        a("s_waitcnt lgkmcnt(0)")
        a("s_cmp_eq_u32 s89, 0")
        a("s_cselect_b32 s90, 0x10000, s59")
        a("s_add_u32 s88, s90, 1")
        a("s_cmp_eq_u32 s89, 2")
        a("s_cselect_b32 s88, s88, 0x10000")
        a("s_mov_b32 s89, 0")
        a(f"s_cmp_ge_u32 s90, {NPOOL}")
        a(f"s_cbranch_scc1 L_td{tag}")
        if capslot is not None:
            a(f"s_cmp_gt_u32 s58, {capslot}")
            a(f"s_cbranch_scc1 L_td{tag}")
        a(f"s_cmp_lt_u32 s90, {max(0, NPOOL - thr)}")
        a("s_cselect_b32 s89, 2, 1")
        a("s_mov_b32 s59, s89")
        a("s_atomic_add s59, s[64:65], 0 glc")
        a(f"s_branch L_td{tag}")
        a(f"L_tq{tag}:")
        a("s_mov_b32 s90, s88")
        a("s_mov_b32 s88, 0x10000")
        a(f"L_td{tag}:")
    NS = NPOOL // 4
    def wg_ticket(tag, allow):
        a("s_lshl_b32 s30, s93, 2")
        a(f"s_add_u32 s30, s30, {L_TQ}")
        a("v_mov_b32 v41, s30")
        a("s_cmp_eq_u32 s3, 0")
        a(f"s_cbranch_scc0 L_wr{tag}")
        a("s_waitcnt lgkmcnt(0)")
        a("s_min_u32 s31, s59, 0xfffe")
        a("s_add_u32 s91, s31, 1")
        a("v_mov_b32 v42, s91")
        a("ds_write_b32 v41, v42")
        a("s_mov_b32 s59, 0x10000")
        a(f"s_cmp_ge_u32 s31, {NS}")
        a(f"s_cbranch_scc1 L_wd{tag}")
        allow(f"L_wd{tag}")
        a("s_mov_b32 s59, 1")
        a("s_atomic_add s59, s[64:65], 0 glc")
        a(f"s_branch L_wd{tag}")
        a(f"L_wr{tag}:")
        a("s_mov_b32 s49, 0")
        a(f"L_ws{tag}:")
        a("ds_read_b32 v42, v41")
        a("s_add_u32 s49, s49, 1")
        a("s_waitcnt lgkmcnt(0)")
        a("v_readfirstlane_b32 s91, v42")
        a(f"s_cmp_ge_u32 s49, {POLLMAX * 8}")
        a(f"s_cbranch_scc1 L_wd{tag}")
        a("s_cmp_eq_u32 s91, 0")
        a(f"s_cbranch_scc1 L_ws{tag}")
        a(f"L_wd{tag}:")
        a("s_sub_u32 s91, s91, 1")
        a("s_lshl_b32 s91, s91, 2")
        a("s_add_u32 s91, s91, s3")
        a("s_add_u32 s93, s93, 1")
    def wg_first():
        a("s_cmp_eq_u32 s3, 0")
        lbl = a.label("L_wf")
        a(f"s_cbranch_scc0 {lbl}")
        a("s_mov_b32 s59, 1")
        a("s_atomic_add s59, s[64:65], 0 glc")
        a(f"{lbl}:")
    def tile_of(n, dst, t1="s30", t2="s31"):
        a(f"s_bfe_u32 {t1}, {n}, 0x30002")
        a(f"s_lshl_b32 {t1}, {t1}, 7")
        a(f"s_lshr_b32 {t2}, {n}, 5")
        a(f"s_lshl_b32 {t2}, {t2}, 2")
        a(f"s_add_u32 {t1}, {t1}, {t2}")
        a(f"s_and_b32 {t2}, {n}, 3")
        a(f"s_add_u32 {t1}, {t1}, {t2}")
        a(f"s_add_u32 {t1}, {t1}, {4*NV}")
        a(f"s_cmp_lt_u32 {n}, {NPOOL}")
        a(f"s_cselect_b32 {dst}, {t1}, 1024")
    def fake_n(dst):
        a(f"s_sub_u32 s30, s58, {NV}")
        a(f"s_lshl_b32 s31, s30, 5")
        a(f"s_lshl_b32 {dst}, s5, 2")
        a(f"s_add_u32 {dst}, {dst}, s31")
        a(f"s_add_u32 {dst}, {dst}, s3")
        a(f"s_cmp_lt_u32 s30, {NP}")
        a(f"s_cselect_b32 {dst}, {dst}, 0x10000")
    def make_tag():
        a("s_mul_i32 s6, s6, 0x9E3779B1\ns_add_u32 s6, s6, 0x7F4A7C15")

    def ln_loads(row0_sgpr):
        a(f"""
        s_mov_b32 s32, s8
        s_mov_b32 s33, s9
        s_mov_b32 s34, 1152
        s_mov_b32 s35, 0x20000
        v_lshlrev_b32 v20, 3, v0
        v_lshlrev_b32 v21, 1, v0
        v_lshl_add_u32 v22, v3, 2, v2
        v_add_u32 v22, s{row0_sgpr}, v22
        v_lshlrev_b32 v22, 1, v22
        buffer_load_dwordx2 v[4:5], v20, s[32:35], 0 offen
        buffer_load_dwordx2 v[6:7], v20, s[32:35], 0 offen offset:512
        buffer_load_ushort v8, v21, s[32:35], 0 offen offset:1024
        buffer_load_ushort v9, v22, s[32:35], 0 offen
        buffer_load_ushort v10, v22, s[32:35], 0 offen offset:128
        """)
    def ln_compute():
        for i, r in enumerate((4, 5, 6, 7)):
            a(f"v_lshlrev_b32 v{24+2*i}, 16, v{r}")
            a(f"v_and_b32 v{25+2*i}, 0xffff0000, v{r}")
        a("v_lshlrev_b32 v32, 16, v8")
        a("v_add_f32 v33, v24, v25\nv_add_f32 v34, v26, v27\nv_add_f32 v35, v28, v29\nv_add_f32 v36, v30, v31")
        a("v_add_f32 v33, v33, v34\nv_add_f32 v35, v35, v36\nv_add_f32 v33, v33, v32\nv_add_f32 v33, v33, v35")
        allreduce("v_add_f32", 33, 34)
        a("v_mov_b32 v36, 0x44100000")
        a("v_mov_b32 v37, 0x3ae38e39")
        div_refined(38, 33, 36, 37, 34)
        for i in range(9):
            a(f"v_sub_f32 v{24+i}, v{24+i}, v38")
        a("v_mul_f32 v33, v24, v24")
        for i in range(1, 9):
            a(f"v_fmac_f32 v33, v{24+i}, v{24+i}")
        allreduce("v_add_f32", 33, 34)
        div_refined(39, 33, 36, 37, 34)
        to_bf16f(38, 38)
        to_bf16f(39, 39)
        a("v_add_f32 v39, 0x3727c5ac, v39")
        to_bf16f(39, 39)
        a("v_sqrt_f32 v39, v39")
        a.nop(1)
        to_bf16f(39, 39)
        a("v_rcp_f32 v37, v39")
        for r in (9, 10):
            a(f"v_lshlrev_b32 v{r}, 16, v{r}")
            a(f"v_sub_f32 v{r}, v{r}, v38")
            to_bf16f(r, r)
        for r in (9, 10):
            div_refined(33, r, 39, 37, 34)
            a(f"v_cvt_pk_bf16_f32 v{r}, v33, v33")

    def job4(wb, n, nyounger):
        a("v_mov_b32 v16, 0\nv_mov_b32 v17, 0\nv_mov_b32 v18, 0\nv_mov_b32 v19, 0")
        def prep(j):
            src = 9 if j < 16 else 10
            b = 24 + 4 * (j & 1)
            for w in range(4):
                a(f"v_and_b32_dpp v{b+w}, v{src}, v{12+w} row_newbcast:{j & 15} row_mask:0xf bank_mask:0xf")
        a.nop(2)
        prep(0)
        for j in range(n):
            if j + 1 < n: prep(j + 1)
            else: a.nop(2)
            a(f"s_waitcnt vmcnt({min(63, n - 1 - j + nyounger)})")
            b = 24 + 4 * (j & 1)
            a(f"v_mfma_f32_16x16x32_bf16 v[16:19], v[{wb+4*j}:{wb+4*j+3}], v[{b}:{b+3}], v[16:19]")
        a.nop(8)
        a("s_mov_b32 s52, 0xff00ff00\ns_mov_b32 s53, 0xff00ff00")
        a("v_cndmask_b32 v20, v16, v18, s[52:53]")
        a("v_cndmask_b32 v22, v17, v19, s[52:53]")

    def job8_zero(ab):
        for i in range(36): a(f"v_mov_b32 v{ab+i}, 0")
    def job8(wb, nb, mult, ab):
        for bb in range(nb):
            for w in range(4):
                a(f"v_and_b32 v{24+w}, v{mult[bb]}, v{12+w}")
            a.nop(2)
            for blk in range(9):
                j = bb * 9 + blk
                a(f"v_mfma_f32_16x16x32_bf16 v[{ab+4*blk}:{ab+4*blk+3}], v[{wb+4*j}:{wb+4*j+3}], v[24:27], v[{ab+4*blk}:{ab+4*blk+3}]")
        a.nop(6)
    def job8_addr(ybase, v):
        a(f"v_and_b32 v{v}, 1, v2\nv_lshlrev_b32 v{v}, 2, v{v}")
        a(f"v_lshrrev_b32 v21, 3, v3\nv_lshlrev_b32 v21, 1, v21\nv_add_u32 v{v}, v{v}, v21")
        a(f"v_lshrrev_b32 v21, 1, v2\nv_add_u32 v{v}, v{v}, v21")
        if R96:
            a(f"v_lshlrev_b32 v{v}, 2, v{v}\nv_bfe_u32 v21, v3, 1, 2\nv_add_u32 v{v}, v{v}, v21")
            a(f"v_lshlrev_b32 v{v}, {YSH}, v{v}")
            a(f"v_and_b32 v21, 1, v3\nv_lshl_add_u32 v{v}, v21, 4, v{v}")
        else:
            a(f"v_lshlrev_b32 v{v}, 1, v{v}\nv_bfe_u32 v21, v3, 2, 1\nv_add_u32 v{v}, v{v}, v21")
            a(f"v_lshlrev_b32 v{v}, {YSH}, v{v}")
            a(f"v_and_b32 v21, 3, v3\nv_lshl_add_u32 v{v}, v21, 4, v{v}")
        a(f"s_lshl_b32 s30, s2, {YP}\ns_add_u32 s30, s30, {ybase}")
        a(f"v_add_u32 v{v}, s30, v{v}")
    def job8_finish(ab, pairbase):
        for blk in range(9):
            y = ab + 4 * blk
            a(f"v_permlane32_swap_b32 v{y}, v{y+1}")
            a(f"v_permlane32_swap_b32 v{y+2}, v{y+3}")
        for t in range(3):
            for k in range(3):
                blk = 3 * t + k
                y = ab + 4 * blk; pr = pairbase + 4 * t + k
                a(f"v_add_f32_dpp v{pr}, v{y+1}, v{y} row_ror:8 row_mask:0xf bank_mask:0x3")
                a(f"v_add_f32_dpp v{pr}, v{y+2}, v{y+3} row_ror:8 row_mask:0xf bank_mask:0xc")
    def job8_store(pairbase, vaddr, fl):
        for t in range(3):
            a(f"s_mov_b32 s31, {(t * (32 if R96 else 16)) << YSH}")
            a(f"buffer_store_dwordx4 v[{pairbase+4*t}:{pairbase+4*t+3}], v{vaddr}, s[44:47], s31 offen {fl}")
    def job8_publish(ab, pairbase, vaddr, fl='sc1'):
        for blk in range(9):
            y = ab + 4 * blk
            a(f"v_permlane32_swap_b32 v{y}, v{y+1}")
            a(f"v_permlane32_swap_b32 v{y+2}, v{y+3}")
        for t in range(3):
            for k in range(3):
                blk = 3 * t + k
                y = ab + 4 * blk; pr = pairbase + 4 * t + k
                a(f"v_add_f32_dpp v{pr}, v{y+1}, v{y} row_ror:8 row_mask:0xf bank_mask:0x3")
                a(f"v_add_f32_dpp v{pr}, v{y+2}, v{y+3} row_ror:8 row_mask:0xf bank_mask:0xc")
            a(f"s_mov_b32 s31, {(t * (32 if R96 else 16)) << YSH}")
            a(f"buffer_store_dwordx4 v[{pairbase+4*t}:{pairbase+4*t+3}], v{vaddr}, s[44:47], s31 offen {fl}")

    a(f"""
    s_cmp_ge_u32 s2, 256
    s_cbranch_scc1 L_end
    s_load_dwordx16 s[8:23], s[0:1], 0
    s_load_dwordx4 s[24:27], s[0:1], 64
    s_load_dwordx2 s[28:29], s[0:1], 80
    """)
    if PF2:
        a("""
        L_pc2:
        s_getpc_b64 s[30:31]
        v_lshlrev_b32 v4, 6, v0
        v_min_u32 v4, L_end-L_pc2, v4
        global_load_dword v48, v4, s[30:31]
        """)
    if TSTAMP: a("s_memrealtime s[70:71]")
    a(f"""
    v_lshrrev_b32 v1, 6, v0
    v_and_b32 v0, 63, v0
    v_readfirstlane_b32 s3, v1
    s_lshr_b32 s4, s2, 3
    s_and_b32 s5, s2, 7
    v_lshrrev_b32 v2, 4, v0
    v_and_b32 v3, 15, v0
    """)
    if PF and not PF2:
        a(f"""
        s_cmp_eq_u32 s3, 5
        s_cbranch_scc0 L_nopf
        L_pc:
        s_getpc_b64 s[30:31]
        v_lshlrev_b32 v4, 7, v0
        v_add_u32 v5, 8192, v4
        v_add_u32 v6, 16384, v4
        v_min_u32 v4, L_end-L_pc, v4
        v_min_u32 v5, L_end-L_pc, v5
        v_min_u32 v6, L_end-L_pc, v6
        global_load_dword v49, v4, s[30:31]
        global_load_dword v50, v5, s[30:31]
        global_load_dword v51, v6, s[30:31]
        L_nopf:
        """)
    a(f"""
    s_cmp_eq_u32 s3, 4
    s_cbranch_scc0 L_noinit
    v_lshlrev_b32 v4, 3, v0
    v_mov_b32 v6, -1
    v_mov_b32 v7, -1
    ds_write_b64 v4, v[6:7] offset:{L_ID}
    v_mov_b32 v8, 0
    v_mov_b32 v9, 0
    """)
    if WGT: a(f"ds_write_b64 v4, v[8:9] offset:{L_TQ}")
    a(f"""
    v_mov_b32 v5, {L_FLAG}
    ds_write_b64 v5, v[8:9]
    L_noinit:
    """)
    a(f"""
    s_waitcnt lgkmcnt(0)
    s_load_dword s6, s[28:29], {EPOCH}
    s_mov_b32 s44, s28
    s_mov_b32 s45, s29
    s_mov_b32 s46, {WS_SIZE}
    s_mov_b32 s47, 0x20000
    s_cmp_eq_u32 s3, 4
    s_cbranch_scc1 L_helperA
    s_cmp_eq_u32 s3, 5
    s_cbranch_scc1 L_helperB
    """)

    SL = 64
    T0[0] = 62
    def issue(pos, nxt, srd_cur, srd_nxt):
        j = pos & 7
        vo = ((7, 46) if nxt else (5, 6))[j >> 2]
        srd = srd_nxt if nxt else srd_cur
        a(f"buffer_load_dwordx4 v[{SL+4*j}:{SL+4*j+3}], v{vo}, {srd}, 0 offen offset:{(j & 3) * 1024} {NT}")
    def issue_after(n, srd_cur, srd_nxt):
        m = n + W
        issue(m & 7, m >= 8, srd_cur, srd_nxt)
    a(f"""
    s_lshl_b32 s30, s4, 23
    s_add_u32 s32, s10, s30
    s_addc_u32 s33, s11, 0
    s_mov_b32 s34, 0x800000
    s_mov_b32 s35, 0x20000
    s_lshl_b32 s56, s5, 7
    s_add_u32 s56, s56, s3
    s_lshl_b32 s31, s56, 13
    v_lshlrev_b32 v4, 4, v0
    v_add_u32 v5, s31, v4
    v_add_u32 v6, 4096, v5
    """)
    if B0 or ORD2 or ORD3: a("s_barrier")
    for n in range(W): issue(n, False, "s[32:35]", None)
    a(f"""
    s_add_u32 s36, s12, s30
    s_addc_u32 s37, s13, 0
    s_mov_b32 s38, 0x800000
    s_mov_b32 s39, 0x20000
    s_mov_b32 s42, 0x800000
    s_mov_b32 s43, 0x20000
    s_mov_b32 s57, s56
    s_mul_i32 s30, s4, {CSTR}
    s_add_u32 s30, s30, {CNT if CBASE is None else CBASE}
    s_add_u32 s64, s28, s30
    s_addc_u32 s65, s29, 0
    s_mul_i32 s84, s4, {NPOOL * 128}
    s_add_u32 s84, s84, {SG}
    s_mov_b32 s58, 0                   ; i
    s_mov_b32 s88, 0x10000
    s_mov_b32 s89, 0
    s_mov_b32 s93, 0
    s_mov_b32 s59, 0
    s_mov_b32 s60, {LOG2E:#x}
    s_mov_b32 s61, {SCALE:#x}
    s_mov_b32 s52, 0xcccccccc
    s_mov_b32 s53, 0xcccccccc
    s_mov_b32 s54, 0xaaaaaaaa
    s_mov_b32 s55, 0xaaaaaaaa
    """)
    make_masks(20, 21)
    a(f"""
    v_mov_b32 v16, 0
    v_mov_b32 v17, 0
    v_mov_b32 v18, 0
    v_mov_b32 v19, 0
    v_mov_b32 v20, 0
    v_mov_b32 v22, 0xff800000
    v_lshlrev_b32 v23, 4, v3
    s_mul_i32 s30, s3, {SSTR}
    s_add_u32 s30, s30, {L_S}
    v_lshl_add_u32 v47, v0, 2, s30
    s_lshl_b32 s30, s3, 7
    s_add_u32 s30, s30, {L_ID - 4*NV - 4}
    v_mov_b32 v43, s30
    v_mov_b32 v56, v47
    v_lshrrev_b32 v57, 1, v3
    v_lshlrev_b32 v57, 1, v57
    v_lshrrev_b32 v59, 1, v2
    v_add_u32 v57, v57, v59
    v_lshlrev_b32 v57, 3, v57
    v_and_b32 v59, 1, v2
    v_lshlrev_b32 v59, 4, v59
    v_sub_u32 v59, 16, v59
    s_waitcnt lgkmcnt(0)
    """)
    make_tag()
    stamp(1)
    if ORD2 or ORD3: a("s_barrier")
    if PRE8:
        for n in range(W, 8): issue(n, False, "s[32:35]", None)
    if QF:
        assert ORD3
        a(f"v_mov_b32 v41, {L_QF}\ns_mov_b32 s49, 0\nL_qw:\nds_read_b32 v42, v41\ns_add_u32 s49, s49, 1\ns_waitcnt lgkmcnt(0)\nv_readfirstlane_b32 s30, v42")
        a(f"s_cmp_ge_u32 s49, {POLLMAX * 16}\ns_cbranch_scc1 L_qd\ns_cmp_eq_u32 s30, 0\ns_cbranch_scc0 L_qd\ns_sleep 1\ns_branch L_qw\nL_qd:")
    else:
        a("s_barrier")
    a(f"ds_read_b128 v[8:11], v23 offset:{L_Q}")
    a("s_waitcnt lgkmcnt(0)")
    stamp(2)
    a("L_ktile:")
    if PROG:
        a("s_memrealtime s[86:87]\ns_waitcnt lgkmcnt(0)\ns_mov_b32 m0, s58\ns_nop 0\nv_writelane_b32 v128, s86, m0")
    a("s_add_u32 s58, s58, 1")
    a("s_lshl_b32 s31, s58, 2")
    a("s_add_u32 s30, s31, s56")
    if DYN and WGT:
        a("s_mov_b32 s62, s30")
        a(f"s_cmp_eq_u32 s58, {NV-1}")
        a("s_cbranch_scc0 L_kf")
        wg_first()
        a("L_kf:")
        a(f"s_cmp_lt_u32 s58, {NV}")
        a("s_cbranch_scc1 L_kstat")
        def allow_k(lbl):
            a(f"s_cmp_ge_u32 s58, {NV + MAXD - 1}")
            a(f"s_cbranch_scc1 {lbl}")
        wg_ticket("k", allow_k)
        tile_of("s91", "s62")
        a("L_kstat:")
    elif DYN and BATCH:
        a("s_mov_b32 s62, s30")
        a(f"s_cmp_eq_u32 s58, {NV-2}")
        a("s_cbranch_scc0 L_kf")
        ticket_first()
        a("L_kf:")
        a(f"s_cmp_lt_u32 s58, {NV}")
        a("s_cbranch_scc1 L_kstat")
        ticket_top("k", 0, NV + MAXD - 4)
        a("s_mov_b32 s91, s90")
        tile_of("s91", "s62")
        a("L_kstat:")
    elif DYN:
        a("s_waitcnt lgkmcnt(0)")
        a("s_mov_b32 s92, s30")
        a("s_mov_b32 s91, s59")
        if FAKE: fake_n("s91")
        tile_of("s91", "s62")
        a(f"s_cmp_lt_u32 s58, {NV}")
        a("s_cselect_b32 s62, s92, s62")
        a("s_mov_b32 s59, 0x10000")
        a("s_mov_b32 s85, 0")
        a(f"s_cmp_lt_u32 s58, {NV-1}")
        a("s_cbranch_scc1 L_knotk")
        a(f"s_cmp_ge_u32 s58, {NV + MAXD - 1}")
        a("s_cbranch_scc1 L_knotk")
        a("s_cmp_ge_u32 s62, 1024")
        a("s_cbranch_scc1 L_knotk")
        if RQ < 0:
            a("s_mov_b32 s59, 1")
            a("s_atomic_add s59, s[64:65], 0 glc")
        else:
            a("s_mov_b32 s85, 1")
        a("L_knotk:")
    if DYN:
        a("s_cmp_lt_u32 s62, 1024")
    else:
        a("s_mov_b32 s62, s30")
        a(f"s_cmp_lt_u32 s58, {NV}")
    a("s_cselect_b32 s83, 1, 0")
    a("s_cselect_b32 s62, s62, s56")
    a("s_cselect_b32 s40, s32, s36")
    a("s_cselect_b32 s41, s33, s37")
    a("s_lshl_b32 s63, s62, 13")
    a("v_add_u32 v7, s63, v4\nv_add_u32 v46, 4096, v7")
    for j in range(8):
        a(f"s_waitcnt vmcnt({W-1})")
        P = 24 + j; sl = SL + 4 * j
        a(f"v_dot2_f32_bf16 v{P}, v{sl}, v8, 0")
        a(f"v_dot2_f32_bf16 v{P}, v{sl+1}, v9, v{P}")
        a(f"v_dot2_f32_bf16 v{P}, v{sl+2}, v10, v{P}")
        a(f"v_dot2_f32_bf16 v{P}, v{sl+3}, v11, v{P}")
        if PRE8 and j + W < 8:
            a("s_cmp_eq_u32 s58, 1")
            a(f"s_cbranch_scc1 L_kskip{j}")
        issue_after(j, "s[32:35]", "s[40:43]")
        if PRE8 and j + W < 8: a(f"L_kskip{j}:")
        if DYN and j == RQ and not BATCH and not WGT:
            a("s_cmp_eq_u32 s85, 1")
            a("s_cbranch_scc0 L_knorq")
            a("s_mov_b32 s59, 1")
            a("s_atomic_add s59, s[64:65], 0 glc")
            a("L_knorq:")
    for j in range(4):
        a(f"v_add_f32_dpp v{32+j}, v{24+j}, v{24+j} row_ror:8 row_mask:0xf bank_mask:0x3")
        a(f"v_add_f32_dpp v{32+j}, v{28+j}, v{28+j} row_ror:8 row_mask:0xf bank_mask:0xc")
    for j in range(2):
        a(f"v_add_f32_dpp v{36+j}, v{32+j}, v{32+j} row_shl:4 row_mask:0xf bank_mask:0x5")
        a(f"v_add_f32_dpp v{36+j}, v{34+j}, v{34+j} row_shr:4 row_mask:0xf bank_mask:0xa")
    a("v_mov_b32 v5, v7")
    a("v_add_f32_dpp v38, v36, v36 quad_perm:[2,3,0,1] row_mask:0xf bank_mask:0xf")
    a("v_add_f32_dpp v39, v37, v37 quad_perm:[2,3,0,1] row_mask:0xf bank_mask:0xf")
    a("v_cndmask_b32 v40, v38, v39, s[52:53]")
    a("v_mov_b32 v6, v46")
    if DYN: a("v_mov_b32 v41, s57")
    else: a("s_nop 0")
    a("v_add_f32_dpp v40, v40, v40 quad_perm:[1,0,3,2] row_mask:0xf bank_mask:0xf")
    a("v_cvt_pk_bf16_f32 v40, v40, v40")
    a("v_and_b32 v40, 0xffff0000, v40")
    a("v_mul_f32 v40, s61, v40")
    a("v_cvt_pk_bf16_f32 v40, v40, v40")
    a("v_and_b32 v40, 0xffff0000, v40")
    a("ds_write_b32 v56, v40")
    if DYN:
        a(f"s_cmp_gt_u32 s58, {NV}")
        a("s_cbranch_scc0 L_noid")
        a("s_lshl_b32 s30, s58, 2")
        a("v_add_u32 v42, s30, v43")
        a("ds_write_b32 v42, v41 offset:0")
        a("L_noid:")
    a("v_max_f32 v22, v22, v40")
    a("v_add_u32 v56, 256, v56")
    a("s_mov_b32 s57, s91")
    a("s_cmp_eq_u32 s83, 1")
    a("s_cbranch_scc1 L_ktile")
    stamp(5)
    a(f"v_mov_b32 v41, {L_FLAG}")
    a("v_mov_b32 v42, 1")
    a("s_waitcnt lgkmcnt(0)")
    a("ds_add_u32 v41, v42")
    a("ds_read_b32 v58, v47")
    allreduce("v_max_f32", 22, 41, rors=(8, 4, 2))
    a("v_mul_f32 v21, s60, v22")
    a("v_add_u32 v56, 256, v47")
    a("s_mov_b32 s94, s58")
    a("s_mov_b32 s58, 0")
    a(f"s_add_u32 s64, s64, {VOFF}\ns_addc_u32 s65, s65, 0")
    if BATCH: ticket_init()
    if WGT: a("s_mov_b32 s93, 32")
    def pcompute(tag):
        a("v_cmp_lt_f32 vcc, v22, v40")
        a(f"s_cbranch_vccnz L_rare{tag}")
        a(f"L_back{tag}:")
        a("v_fma_f32 v41, v40, s60, -v21")
        a("v_exp_f32 v41, v41")
        a("s_nop 0")
        a("v_add_f32 v20, v20, v41")
        a("v_cvt_pk_bf16_f32 v42, v41, v41")
        if HILO:
            a("v_and_b32 v43, 0xffff0000, v42")
            a("v_sub_f32 v43, v41, v43")
            a("v_cvt_pk_bf16_f32 v43, v43, v43")
            a("v_cndmask_b32 v42, v42, v43, s[54:55]")
        a.nop(2)
    def prepB(j):
        b = 48 + 4 * (j & 1)
        if HILO:
            y = 44 + (j & 1)
            a(f"v_mov_b32_dpp v{y}, v42 row_newbcast:{2*j} row_mask:0xf bank_mask:0x3")
            a(f"v_mov_b32_dpp v{y}, v42 row_newbcast:{2*j+1} row_mask:0xf bank_mask:0xc")
            for w in range(4): a(f"v_and_b32 v{b+w}, v{y}, v{12+w}")
        else:
            for w in range(4):
                a(f"v_and_b32_dpp v{b+w}, v42, v{12+w} row_newbcast:{2*j} row_mask:0xf bank_mask:0xf")
    def progstamp():
        if PROG:
            a("s_memrealtime s[86:87]\ns_waitcnt lgkmcnt(0)\ns_mov_b32 m0, s58\ns_nop 0\nv_writelane_b32 v129, s86, m0")
    def allow_v(lbl):
        a("s_cmp_ge_u32 s93, 126")
        a(f"s_cbranch_scc1 {lbl}")
    if LT and DYN:
        variants = sorted(set(AW)) if AW else [W]
        def issueW(n, Wv):
            m = n + Wv
            issue(m & 7, m >= 8, "s[36:39]", "s[36:39]")
        def vphase(Wv, sx):
            J0 = 8 - Wv
            a(f"L_vtile{sx}:")
            a("s_waitcnt lgkmcnt(0)")
            progstamp()
            a("s_add_u32 s58, s58, 1")
            a("s_lshl_b32 s30, s58, 2")
            a("s_add_u32 s62, s30, s56")
            a("v_mov_b32 v40, v58")
            a("ds_read_b32 v58, v56")
            a("v_add_u32 v56, 256, v56")
            a("s_lshl_b32 s63, s62, 13")
            a("v_add_u32 v7, s63, v4\nv_add_u32 v46, 4096, v7")
            pcompute("s" + sx)
            prepB(0)
            for j in range(8):
                if j < 7: prepB(j + 1)
                else: a.nop(1)
                a(f"s_waitcnt vmcnt({Wv - 1})")
                b = 48 + 4 * (j & 1); sl = SL + 4 * j
                a(f"v_mfma_f32_16x16x32_bf16 v[16:19], v[{sl}:{sl+3}], v[{b}:{b+3}], v[16:19]")
                issueW(j, Wv)
            a("v_mov_b32 v5, v7\nv_mov_b32 v6, v46")
            a(f"s_cmp_lt_u32 s58, {NV-1}")
            a(f"s_cbranch_scc1 L_vtile{sx}")
            def lt_tile(tag, SX, SY, other):
                tg = tag + sx
                a(f"L_vd{tg}:")
                if SX is None: a("s_waitcnt lgkmcnt(0)")
                else: a(f"s_waitcnt vmcnt({Wv})")
                progstamp()
                a("s_add_u32 s58, s58, 1")
                a("s_mov_b32 s59, 1")
                a("s_atomic_add s59, s[64:65], 0 glc")
                if SX is None:
                    a("v_mov_b32 v40, v58")
                else:
                    a(f"v_lshlrev_b32 v40, v59, v{SX}")
                    a(f"v_cmp_ne_u32 vcc, s6, v{SX+1}")
                    a("v_and_b32 v40, 0xffff0000, v40")
                    a(f"s_cbranch_vccnz L_retry{tg}")
                    a(f"L_retry_back{tg}:")
                pcompute(tg)
                prepB(0)
                for j in range(8):
                    if j < 7: prepB(j + 1)
                    else: a.nop(1)
                    a(f"s_waitcnt vmcnt({Wv - 1 if j <= J0 else Wv})")
                    b = 48 + 4 * (j & 1); sl = SL + 4 * j
                    a(f"v_mfma_f32_16x16x32_bf16 v[16:19], v[{sl}:{sl+3}], v[{b}:{b+3}], v[16:19]")
                    if j == J0:
                        a("s_waitcnt lgkmcnt(0)")
                        a("s_mov_b32 s91, s59")
                        tile_of("s91", "s62")
                        a("s_lshl_b32 s63, s62, 13")
                        a("s_lshl_b32 s83, s91, 7")
                        a("s_add_u32 s83, s83, s84")
                        a("v_add_u32 v7, s63, v4\nv_add_u32 v46, 4096, v7")
                        if FINX:
                            a(f"s_cmp_ge_u32 s91, {NPOOL - FINX}")
                            a(f"s_cbranch_scc1 L_fin{sx}")
                        a(f"buffer_load_dwordx2 v[{SY}:{SY+1}], v57, s[44:47], s83 offen {SLF}")
                    issueW(j, Wv)
                a("s_mov_b32 s82, s83")
                a("v_mov_b32 v5, v7\nv_mov_b32 v6, v46")
                a("s_cmp_lt_u32 s62, 1024")
                if other is None: a("s_cbranch_scc0 L_vend")
                else: a(f"s_cbranch_scc1 L_vd{other}{sx}")
            lt_tile("l", None, 60, None)
            lt_tile("a", 60, 62, None)
            lt_tile("b", 62, 60, "a")
            a("s_branch L_vend")
            if FINX:
                SB = SL + 32
                a(f"L_fin{sx}:")
                a(f"buffer_load_dwordx2 v[130:131], v57, s[44:47], s83 offen {SLF}")
                for j in range(8):
                    a(f"buffer_load_dwordx4 v[{SB+4*j}:{SB+4*j+3}], v{7 if j < 4 else 46}, s[36:39], 0 offen offset:{(j & 3) * 1024} {NT}")
                for j in range(J0 + 1, 8):
                    if j < 7: prepB(j + 1)
                    else: a.nop(1)
                    a(f"s_waitcnt vmcnt({7 - j + 9})")
                    b = 48 + 4 * (j & 1); sl = SL + 4 * j
                    a(f"v_mfma_f32_16x16x32_bf16 v[16:19], v[{sl}:{sl+3}], v[{b}:{b+3}], v[16:19]")
                a("s_cmp_lt_u32 s62, 1024")
                a("s_cbranch_scc0 L_vend")
                a("s_mov_b32 s82, s83")
                a("s_waitcnt vmcnt(8)")
                progstamp()
                a("s_add_u32 s58, s58, 1")
                tg = "f" + sx
                a("v_lshlrev_b32 v40, v59, v130")
                a("v_cmp_ne_u32 vcc, s6, v131")
                a("v_and_b32 v40, 0xffff0000, v40")
                a(f"s_cbranch_vccnz L_retry{tg}")
                a(f"L_retry_back{tg}:")
                pcompute(tg)
                prepB(0)
                for j in range(8):
                    if j < 7: prepB(j + 1)
                    else: a.nop(1)
                    a(f"s_waitcnt vmcnt({7 - j})")
                    b = 48 + 4 * (j & 1); sl = SB + 4 * j
                    a(f"v_mfma_f32_16x16x32_bf16 v[16:19], v[{sl}:{sl+3}], v[{b}:{b+3}], v[16:19]")
                a.nop(4)
                a("s_branch L_vend")
        if AW:
            for k, cond in ((0, f"s_cmp_le_u32 s94, {NV}"), (1, f"s_cmp_eq_u32 s94, {NV+1}")):
                a(cond)
                a(f"s_cbranch_scc1 L_ventry{AW[k]}")
            a(f"s_branch L_ventry{AW[2]}")
            for Wv in variants:
                a(f"L_ventry{Wv}:")
                for n in range(W, Wv): issue(n, False, "s[36:39]", None)
                vphase(Wv, f"w{Wv}")
        else:
            vphase(W, "")
        a("L_vend:")
    else:
        a("L_vtile:")
        a(f"s_waitcnt lgkmcnt(0)")
        progstamp()
        a("s_add_u32 s58, s58, 1")
        a("s_lshl_b32 s30, s58, 2")
        a("s_add_u32 s30, s30, s56")
        a("v_mov_b32 v40, v58")
        if DYN:
            if WGT:
                a("s_mov_b32 s62, s30")
                a(f"s_cmp_eq_u32 s58, {NV-1}")
                a("s_cbranch_scc0 L_vf")
                wg_first()
                a("L_vf:")
                a(f"s_cmp_lt_u32 s58, {NV}")
                a("s_cbranch_scc1 L_vstat")
                wg_ticket("vs", allow_v)
                tile_of("s91", "s62")
                a("L_vstat:")
            elif BATCH:
                a("s_mov_b32 s62, s30")
                a(f"s_cmp_eq_u32 s58, {NV-2}")
                a("s_cbranch_scc0 L_vf")
                ticket_first()
                a("L_vf:")
                a(f"s_cmp_lt_u32 s58, {NV}")
                a("s_cbranch_scc1 L_vstat")
                ticket_top("vs", THR)
                a("s_mov_b32 s91, s90")
                tile_of("s91", "s62")
                a("L_vstat:")
            else:
                a("s_mov_b32 s92, s30")
                a("s_mov_b32 s91, s59")
                if FAKE: fake_n("s91")
                tile_of("s91", "s62")
                a(f"s_cmp_lt_u32 s58, {NV}")
                a("s_cselect_b32 s62, s92, s62")
                if RQ < 0:
                    a(f"s_cmp_lt_u32 s58, {NV-1}")
                    a("s_cbranch_scc1 L_vnorq")
                    a("s_mov_b32 s59, 1")
                    a("s_atomic_add s59, s[64:65], 0 glc")
                    a("L_vnorq:")
            a("s_lshl_b32 s83, s91, 7")
            a("s_add_u32 s83, s83, s84")
            a(f"s_cmp_lt_u32 s58, {NV}")
            a("s_cselect_b32 s83, 0x7f000000, s83")
            if NOSL: a("s_mov_b32 s83, 0x7f000000")
            a(f"buffer_load_dwordx2 v[60:61], v57, s[44:47], s83 offen {SLF}")
        else:
            a(f"s_cmp_lt_u32 s58, {NV}")
            a("s_cselect_b32 s62, s30, 1024")
        a("ds_read_b32 v58, v56")
        a("v_add_u32 v56, 256, v56")
        a("s_lshl_b32 s63, s62, 13")
        a("v_add_u32 v7, s63, v4\nv_add_u32 v46, 4096, v7")
        pcompute("s")
        prepB(0)
        for j in range(8):
            if j < 7: prepB(j + 1)
            else: a.nop(1)
            n = (W if j < W else W - 1) if DYN else W - 1
            a(f"s_waitcnt vmcnt({n})")
            b = 48 + 4 * (j & 1); sl = SL + 4 * j
            a(f"v_mfma_f32_16x16x32_bf16 v[16:19], v[{sl}:{sl+3}], v[{b}:{b+3}], v[16:19]")
            issue_after(j, "s[36:39]", "s[36:39]")
            if DYN and j == RQ and not BATCH and not WGT:
                a(f"s_cmp_lt_u32 s58, {NV-1}")
                a("s_cbranch_scc1 L_vnorq")
                a("s_mov_b32 s59, 1")
                a("s_atomic_add s59, s[64:65], 0 glc")
                a("L_vnorq:")
        a("v_mov_b32 v5, v7\nv_mov_b32 v6, v46")
        a(f"s_cmp_lt_u32 s58, {NV}")
        a("s_cbranch_scc1 L_vtile")
        if DYN:
            a("s_mov_b32 s82, s83")
            a("s_cmp_lt_u32 s62, 1024")
            a("s_cbranch_scc0 L_vend")
            if WD8 or BURST:
                for n in range(W, 8): issue(n, False, "s[36:39]", None)
            def dyntile(tag, X, Y, SX, SY, other):
                a(f"L_vd{tag}:")
                a(f"s_waitcnt vmcnt({8 if (BURST or WD8) else W})" + ("" if (BATCH or WGT) else " lgkmcnt(0)"))
                progstamp()
                if BATCH:
                    ticket_top("v" + tag, THR)
                    a("s_mov_b32 s91, s90")
                a("s_add_u32 s58, s58, 1")
                if WGT: wg_ticket("v" + tag, allow_v)
                elif not BATCH: a("s_mov_b32 s91, s59")
                if FAKE: fake_n("s91")
                tile_of("s91", "s62")
                a(f"v_lshlrev_b32 v40, v59, v{SX}")
                a(f"v_cmp_ne_u32 vcc, s6, v{SX+1}")
                a("v_and_b32 v40, 0xffff0000, v40")
                if not NOPUB and not NOSL: a(f"s_cbranch_vccnz L_retry{tag}")
                a(f"L_retry_back{tag}:")
                a("s_lshl_b32 s63, s62, 13")
                a(f"s_lshl_b32 s83, s91, 7")
                a("s_add_u32 s83, s83, s84")
                if RQ < 0 and not BATCH and not WGT:
                    a("s_cmp_lt_u32 s62, 1024")
                    a(f"s_cbranch_scc0 L_vdnorq{tag}")
                    a("s_mov_b32 s59, 1")
                    a("s_atomic_add s59, s[64:65], 0 glc")
                    a(f"L_vdnorq{tag}:")
                a("v_add_u32 v7, s63, v4\nv_add_u32 v46, 4096, v7")
                if NOSL: a("s_mov_b32 s83, 0x7f000000")
                a(f"buffer_load_dwordx2 v[{SY}:{SY+1}], v57, s[44:47], s83 offen {SLF}")
                def ld(j, base):
                    a(f"buffer_load_dwordx4 v[{base+4*j}:{base+4*j+3}], v{7 if j < 4 else 46}, s[36:39], 0 offen offset:{(j & 3) * 1024} {NT}")
                if BURST:
                    for j in range(8): ld(j, Y)
                pcompute(tag)
                prepB(0)
                for j in range(8):
                    if j < 7: prepB(j + 1)
                    else: a.nop(1)
                    a(f"s_waitcnt vmcnt({16 - j if BURST else (8 if WD8 else (W if j < W else W - 1))})")
                    b = 48 + 4 * (j & 1); sl = X + 4 * j
                    a(f"v_mfma_f32_16x16x32_bf16 v[16:19], v[{sl}:{sl+3}], v[{b}:{b+3}], v[16:19]")
                    if not BURST:
                        if WD8: issue(j, True, "s[36:39]", "s[36:39]")
                        else: issue_after(j, "s[36:39]", "s[36:39]")
                    if j == RQ and not BATCH and not WGT:
                        a("s_cmp_lt_u32 s62, 1024")
                        a(f"s_cbranch_scc0 L_vdnorq{tag}")
                        a("s_mov_b32 s59, 1")
                        a("s_atomic_add s59, s[64:65], 0 glc")
                        a(f"L_vdnorq{tag}:")
                a("s_mov_b32 s82, s83")
                if not BURST: a("v_mov_b32 v5, v7\nv_mov_b32 v6, v46")
                a("s_cmp_lt_u32 s62, 1024")
                if other is None:
                    a("s_cbranch_scc0 L_vend")
                else:
                    a(f"s_cbranch_scc1 L_vd{other}")
            if BURST:
                dyntile("a", SL, SL + 32, 60, 62, None)
                dyntile("b", SL + 32, SL, 62, 60, "a")
            else:
                dyntile("a", SL, SL, 60, 62, None)
                dyntile("b", SL, SL, 62, 60, "a")
            a("L_vend:")
    stamp(3)
    allreduce("v_add_f32", 20, 27)
    a("v_mul_f32 v23, 0.5, v20")
    if HILO:
        for r in range(4):
            a(f"v_add_f32_dpp v{16+r}, v{16+r}, v{16+r} row_ror:8 row_mask:0xf bank_mask:0xf")
    a("s_mov_b32 s52, 0xff00ff00\ns_mov_b32 s53, 0xff00ff00")
    a("v_lshl_add_u32 v26, v2, 5, v3")
    a("v_lshlrev_b32 v26, 2, v26")
    a(f"s_lshl_b32 s30, s3, 9")
    a("v_add_u32 v26, s30, v26")
    a("v_cndmask_b32 v24, v16, v17, s[52:53]")
    a("v_cndmask_b32 v25, v18, v19, s[52:53]")
    a("s_lshl_b32 s30, s3, 3")
    a("v_mov_b32 v27, s30")
    a(f"ds_write_b32 v26, v24 offset:{L_O}")
    a(f"ds_write_b32 v26, v25 offset:{L_O + 64}")
    a("s_mov_b64 exec, 1")
    a(f"ds_write_b64 v27, v[22:23] offset:{L_ML}")
    a("s_mov_b64 exec, -1")
    a("s_waitcnt lgkmcnt(0)")
    a("s_barrier")
    stamp(4)
    if PROG:
        a("s_waitcnt vmcnt(0)")
        a("s_lshl_b32 s30, s2, 3\ns_add_u32 s30, s30, s3\ns_lshl_b32 s30, s30, 9")
        a(f"s_add_u32 s30, s30, {TS + 0x100000}")
        a("v_lshl_add_u32 v62, v0, 2, s30")
        a("buffer_store_dword v128, v62, s[44:47], 0 offen")
        a("buffer_store_dword v129, v62, s[44:47], 0 offen offset:256")
        a("s_mov_b32 s72, s58")
    stamp_store(6)
    a("s_endpgm")
    sfx = [f"w{x}" for x in sorted(set(AW))] if (AW and LT and DYN) else [""]
    for tag in [t + x for x in sfx for t in (((["s", "l", "a", "b"] + (["f"] if FINX else [])) if LT else ["s", "a", "b"]) if DYN else ["s"])]:
        a(f"L_rare{tag}:")
        a("v_mov_b32 v41, v40")
        for n in (8, 4, 2):
            a.nop(2)
            a(f"v_max_f32_dpp v41, v41, v41 row_ror:{n} row_mask:0xf bank_mask:0xf")
        a.nop(2)
        a("v_max_f32_dpp v41, v41, v41 row_bcast:15 row_mask:0xa bank_mask:0xf")
        a.nop(2)
        a("v_max_f32_dpp v41, v41, v41 row_bcast:31 row_mask:0xc bank_mask:0xf")
        a.nop(1)
        a("v_readlane_b32 s30, v41, 63")
        a.nop(2)
        a("v_mov_b32 v22, s30")
        a("v_mul_f32 v42, s60, v22")
        a("v_sub_f32 v43, v21, v42")
        a("v_exp_f32 v43, v43")
        a("v_mov_b32 v21, v42")
        for r in (16, 17, 18, 19, 20):
            a(f"v_mul_f32 v{r}, v{r}, v43")
        a(f"s_branch L_back{tag}")
    if DYN:
        for tag, SX in [(t + x, r) for x in sfx for t, r in ((("a", 60), ("b", 62)) + ((("f", 130),) if FINX and LT else ()))]:
            a(f"L_retry{tag}:")
            a("s_mov_b32 s49, 0")
            a(f"L_retry_loop{tag}:")
            a(f"buffer_load_dwordx2 v[{SX}:{SX+1}], v57, s[44:47], s82 offen sc1")
            a("s_waitcnt vmcnt(0)")
            a(f"v_cmp_ne_u32 vcc, s6, v{SX+1}")
            a(f"s_cbranch_vccz L_retry_done{tag}")
            a("s_add_u32 s49, s49, 1")
            a("s_sleep 2")
            a(f"s_cmp_lt_u32 s49, {POLLMAX}")
            a(f"s_cbranch_scc1 L_retry_loop{tag}")
            if dbg: a("v_mov_b32 v41, 6\nv_mov_b32 v42, 24\nglobal_atomic_or v42, v41, s[26:27]")
            a(f"L_retry_done{tag}:")
            a(f"v_lshlrev_b32 v40, v59, v{SX}")
            a("v_and_b32 v40, 0xffff0000, v40")
            a(f"s_branch L_retry_back{tag}")

    a("L_helperA:")
    if SD: stamp(1)
    T0[0] = 60
    WB = 64
    if DYN:
        a(f"""
        s_cmp_eq_u32 s5, 0
        s_cbranch_scc0 L_nozero
        s_mul_i32 s30, s4, {CSTR}
        s_add_u32 s30, s30, {CNT if CBASE is None else CBASE}
        v_mul_u32_u24 v4, {VOFF}, v0
        v_add_u32 v4, s30, v4
        v_mov_b32 v5, 0
        s_mov_b64 exec, 3
        buffer_store_dword v5, v4, s[44:47], 0 offen sc1
        s_mov_b64 exec, -1
        L_nozero:
        """)
    a("s_mul_i32 s48, s5, 72")
    ln_loads(48)
    a(f"""
    s_mov_b32 s36, s14
    s_mov_b32 s37, s15
    s_mov_b32 s38, {576*8192}
    s_mov_b32 s39, 0x20000
    v_add_u32 v23, s48, v2
    v_lshlrev_b32 v23, 13, v23
    v_lshl_add_u32 v23, v3, 4, v23
    s_lshl_b32 s30, s4, 8
    v_add_u32 v23, s30, v23
    """)
    for j in range(18):
        a(f"s_mov_b32 s31, {j*32768}")
        a(f"buffer_load_dwordx4 v[{WB+4*j}:{WB+4*j+3}], v23, s[36:39], s31 offen {NT}")
    if B0 or ORD3: a("s_barrier")
    make_masks(20, 21)
    a("s_waitcnt vmcnt(18)")
    if ORD2: a("s_barrier")
    if SD: stamp(2)
    ln_compute()
    if SD: stamp(3)
    job4(WB, 18, 0)
    a(f"s_waitcnt lgkmcnt(0)")
    make_tag()
    a(f"""
    v_lshlrev_b32 v24, 4, v0
    s_lshl_b32 s30, s2, 10
    s_add_u32 s30, s30, {QG}
    v_add_u32 v24, s30, v24
    v_mov_b32 v21, s6
    v_mov_b32 v23, s6
    buffer_store_dwordx4 v[20:23], v24, s[44:47], 0 offen {QSF}
    """)
    stamp(4 if SD else 1)
    def wo_addr():
        a(f"""
        s_mov_b32 s36, s16
        s_mov_b32 s37, s17
        s_mov_b32 s38, {4096*1152}
        s_mov_b32 s39, 0x20000
        v_lshrrev_b32 v58, 3, v3
        v_lshl_add_u32 v58, v2, 1, v58
        s_lshl_b32 s30, s2, 4
        v_add_u32 v58, s30, v58
        s_movk_i32 s31, 1152
        v_mul_lo_u32 v58, v58, s31
        v_and_b32 v59, 7, v3
        v_lshl_add_u32 v58, v59, 4, v58
        v_add_u32 v59, 9216, v58
        """)
    def wo_issue():
        for bb in range(2):
            for blk in range(9):
                j = bb * 9 + blk
                a(f"buffer_load_dwordx4 v[{WB+4*j}:{WB+4*j+3}], v{58+bb}, s[36:39], 0 offen offset:{blk*128} {NT}")
    def wo_loads():
        wo_addr(); wo_issue()
    if not WOLATE and not WOG: wo_loads()
    a(f"""
    s_lshl_b32 s30, s4, 13
    s_add_u32 s30, s30, {QG}
    v_lshlrev_b32 v4, 4, v0
    v_add_u32 v4, s30, v4
    v_add_u32 v5, 4096, v4
    """)
    def qloads():
        for p in range(8):
            a(f"buffer_load_dwordx4 v[{24+4*p}:{24+4*p+3}], v{4 + (p >> 2)}, s[44:47], 0 offen offset:{(p & 3) * 1024} {QLF}")
    if WOG:
        if ORD3 and ACKW: a("s_waitcnt vmcnt(0)")
        qloads()
        if ORD2 or ORD3: a("s_barrier")
        if not WOT: wo_loads()
        a("s_mov_b32 s49, 0")
        a(f"s_waitcnt vmcnt({0 if WOT else 18})")
        if SD: stamp(5)
        a("s_branch L_q_chk")
        a("L_q_poll:")
        qloads()
        a("s_waitcnt vmcnt(0)")
        a("L_q_chk:")
    else:
        poll_begin("q")
        qloads()
        a("s_waitcnt vmcnt(0)")
    tagcheck(6, [24 + 4*p + o for p in range(8) for o in (1, 3)])
    poll_end("q", 6, code=1)
    for o in (0, 2):
        a(f"v_add_f32 v{24+o}, v{24+o}, v{28+o}")
        a(f"v_add_f32 v{32+o}, v{32+o}, v{36+o}")
        a(f"v_add_f32 v{40+o}, v{40+o}, v{44+o}")
        a(f"v_add_f32 v{48+o}, v{48+o}, v{52+o}")
        a(f"v_add_f32 v{24+o}, v{24+o}, v{32+o}")
        a(f"v_add_f32 v{40+o}, v{40+o}, v{48+o}")
        a(f"v_add_f32 v{24+o}, v{24+o}, v{40+o}")
    a("v_cvt_pk_bf16_f32 v24, v24, v26")
    a("v_and_b32 v25, 8, v3\nv_add_u32 v25, v25, v3\nv_lshl_add_u32 v25, v2, 5, v25\nv_lshlrev_b32 v25, 1, v25")
    a(f"ds_write_b16 v25, v24 offset:{L_Q}")
    a(f"ds_write_b16_d16_hi v25, v24 offset:{L_Q + 16}")
    a("s_waitcnt lgkmcnt(0)")
    if QF: a(f"v_mov_b32 v25, {L_QF}\nv_mov_b32 v26, 1\nds_write_b32 v25, v26")
    if not SD: stamp(2)
    if not QF: a("s_barrier")
    if WOLATE and not WOG: wo_loads()
    if TLB:
        a(f"""
        s_lshl_b32 s30, s4, 23
        s_add_u32 s32, s10, s30
        s_addc_u32 s33, s11, 0
        s_mov_b32 s34, 0x800000
        s_mov_b32 s35, 0x20000
        s_add_u32 s40, s12, s30
        s_addc_u32 s41, s13, 0
        s_mov_b32 s42, 0x800000
        s_mov_b32 s43, 0x20000
        s_mul_i32 s31, s5, {4*NV*8192}
        v_lshlrev_b32 v4, {TLB}, v0
        s_mul_i32 s30, s2, 0x1500
        s_and_b32 s30, s30, 0x7f00
        v_mul_u32_u24 v5, 0x1100, v0
        v_add_u32 v5, s30, v5
        v_and_b32 v5, 0x7f00, v5
        v_add_u32 v4, v4, v5
        v_add_u32 v5, s31, v4
        v_mov_b32 v7, 0x7f000000
        v_cmp_gt_u32 vcc, {4*NV*8192}, v4
        v_add_u32 v6, {POOL0*8192}, v4
        s_nop 0
        v_cndmask_b32 v5, v7, v5, vcc
        buffer_load_dword v196, v5, s[40:43], 0 offen {NT}
        buffer_load_dword v197, v6, s[40:43], 0 offen {NT}
        buffer_load_dword v198, v6, s[32:35], 0 offen {NT}
        """)
    if WOT: wo_addr()
    AB = 140; PR = 176
    job8_zero(AB)
    for t in range(3): a(f"v_mov_b32 v{PR+4*t+3}, s6")
    job8_addr(YA, 20)
    a(f"""
    v_lshrrev_b32 v56, 3, v3
    v_lshl_add_u32 v56, v2, 1, v56
    v_lshl_add_u32 v56, v2, 4, v56
    v_lshlrev_b32 v56, 2, v56
    v_add_u32 v57, 32, v56
    s_mov_b32 s60, {LOG2E:#x}
    """)
    if DYN and not NOPUB:
        wait_kdone("ha", 4)
        a(f"""
        v_lshrrev_b32 v4, 3, v0
        v_and_b32 v4, 3, v4                  ; w
        s_movk_i32 s30, {SSTR}
        v_mul_lo_u32 v5, v4, s30
        v_lshrrev_b32 v6, 5, v0
        v_lshl_add_u32 v5, v6, 8, v5
        v_and_b32 v7, 7, v0
        v_lshl_add_u32 v5, v7, 3, v5         ; LDS score address (minus L_S + NV*256)
        v_lshlrev_b32 v4, 7, v4
        v_lshl_add_u32 v4, v6, 2, v4         ; LDS id address (minus L_ID)
        v_lshlrev_b32 v7, 4, v7              ; j*16
        s_mul_i32 s30, s4, {NPOOL*128}
        s_add_u32 s30, s30, {SG}
        v_add_u32 v7, s30, v7
        v_mov_b32 v9, 0x7f000000
        s_mov_b32 s62, 0x07060302
        v_mov_b32 v25, s6
        v_mov_b32 v27, s6
        s_mov_b32 s49, 0
        L_pub:
        ds_read_b32 v8, v4 offset:{L_ID}
        ds_read_b32 v28, v5 offset:{L_S + NV*256}
        ds_read_b32 v29, v5 offset:{L_S + NV*256 + 64}
        ds_read_b32 v30, v5 offset:{L_S + NV*256 + 128}
        ds_read_b32 v31, v5 offset:{L_S + NV*256 + 192}
        s_waitcnt lgkmcnt(0)
        v_cmp_gt_u32 vcc, {NPOOL}, v8
        s_cbranch_vccz L_pub_done
        v_lshl_add_u32 v6, v8, 7, v7
        v_perm_b32 v24, v29, v28, s62
        v_perm_b32 v26, v31, v30, s62
        v_cndmask_b32 v6, v9, v6, vcc
        buffer_store_dwordx4 v[24:27], v6, s[44:47], 0 offen {PUBF}
        v_add_u32 v4, 8, v4
        v_add_u32 v5, 512, v5
        s_add_u32 s49, s49, 1
        s_waitcnt vmcnt(0)
        s_cmp_lt_u32 s49, {MAXD//2}
        s_cbranch_scc1 L_pub
        L_pub_done:
        """)
    a(f"""
    s_lshl_b32 s30, s2, 11
    s_add_u32 s30, s30, {AG}
    v_lshlrev_b32 v10, 4, v0
    v_add_u32 v10, s30, v10
    v_mov_b32 v11, s30
    s_lshl_b32 s30, s4, 14
    s_add_u32 s30, s30, {AG}
    v_lshlrev_b32 v4, 11, v2
    v_add_u32 v4, s30, v4
    v_add_u32 v5, 8192, v4
    s_lshl_b32 s31, s5, 7
    v_lshl_add_u32 v6, v3, 3, s31
    v_add_u32 v7, v5, v6
    v_add_u32 v6, v4, v6
    v_mov_b32 v8, 0
    v_lshlrev_b32 v9, 3, v0
    v_mov_b32 v41, s6
    v_mov_b32 v43, s6
    v_mov_b32 v45, s6
    v_mov_b32 v47, s6
    s_waitcnt vmcnt(0)
    """)
    a("s_barrier")
    if not SD: stamp(3)
    a(f"""
    ds_read_b128 v[24:27], v8 offset:{L_ML}
    ds_read_b128 v[28:31], v8 offset:{L_ML + 16}
    ds_read_b64 v[32:33], v9 offset:{L_O}
    ds_read_b64 v[34:35], v9 offset:{L_O + 512}
    ds_read_b64 v[36:37], v9 offset:{L_O + 1024}
    ds_read_b64 v[38:39], v9 offset:{L_O + 1536}
    s_waitcnt lgkmcnt(4)
    v_max_f32 v40, v24, v26
    v_max3_f32 v40, v40, v28, v30
    v_sub_f32 v24, v24, v40
    v_sub_f32 v26, v26, v40
    v_sub_f32 v28, v28, v40
    v_sub_f32 v30, v30, v40
    v_mul_f32 v24, s60, v24
    v_mul_f32 v26, s60, v26
    v_mul_f32 v28, s60, v28
    v_mul_f32 v30, s60, v30
    v_exp_f32 v24, v24
    v_exp_f32 v26, v26
    v_exp_f32 v28, v28
    v_exp_f32 v30, v30
    s_waitcnt lgkmcnt(0)
    v_mul_f32 v42, v24, v25
    v_mul_f32 v44, v24, v32
    v_mul_f32 v46, v24, v33
    v_fmac_f32 v42, v26, v27
    v_fmac_f32 v44, v26, v34
    v_fmac_f32 v46, v26, v35
    v_fmac_f32 v42, v28, v29
    v_fmac_f32 v44, v28, v36
    v_fmac_f32 v46, v28, v37
    v_fmac_f32 v42, v30, v31
    v_fmac_f32 v44, v30, v38
    v_fmac_f32 v46, v30, v39
    buffer_store_dwordx4 v[44:47], v10, s[44:47], 0 offen {AGF}
    s_mov_b64 exec, 1
    buffer_store_dwordx4 v[40:43], v11, s[44:47], 0 offen offset:1024 {AGF}
    s_mov_b64 exec, -1
    """)
    def agloads(G):
        a(f"""
        buffer_load_dwordx2 v[{G}:{G+1}], v6, s[44:47], 0 offen {AGLF}
        buffer_load_dwordx2 v[{G+2}:{G+3}], v7, s[44:47], 0 offen {AGLF}
        buffer_load_dwordx4 v[{G+4}:{G+7}], v4, s[44:47], 0 offen offset:1024 {AGLF}
        buffer_load_dwordx4 v[{G+8}:{G+11}], v5, s[44:47], 0 offen offset:1024 {AGLF}
        """)
    def agcheck(G):
        tagcheck(8, [G+1, G+3, G+5, G+7, G+9, G+11])
        a("v_cmp_ne_u32 vcc, 0, v8")
    if PIPE:
        S = [200, 212, 224]
        agloads(S[0]); a(f"s_sleep {AGSLEEP}")
        agloads(S[1]); a(f"s_sleep {AGSLEEP}")
        agloads(S[2])
        a("s_mov_b32 s49, 0")
        a("L_ag_poll:")
        for k in range(3):
            a("s_waitcnt vmcnt(8)")
            agcheck(S[k])
            a(f"s_cbranch_vccz L_ag_use{k}")
            agloads(S[k])
        a("s_add_u32 s49, s49, 1")
        a(f"s_cmp_lt_u32 s49, {POLLMAX}")
        a("s_cbranch_scc1 L_ag_poll")
        if dbg: a("v_mov_b32 v60, 2\nv_mov_b32 v61, 8\nglobal_atomic_or v61, v60, s[26:27]")
        for k in (2, 1, 0):
            a(f"L_ag_use{k}:")
            for o in (0, 2, 4, 6, 8, 10): a(f"v_mov_b32 v{24+o}, v{S[k]+o}")
            if k != 0: a("s_branch L_ag_got")
        a("L_ag_got:")
    elif WOT:
        agloads(24)
        wo_issue()
        a("s_mov_b32 s49, 0")
        a("s_waitcnt vmcnt(18)")
        a("s_branch L_ag_chk")
        a("L_ag_poll:")
        agloads(24)
        a("s_waitcnt vmcnt(0)")
        a("L_ag_chk:")
        tagcheck(8, [25, 27, 29, 31, 33, 35])
        poll_end("ag", 8, sleep=AGPS, code=2)
    elif YBL:
        agloads(24)
        a(f"v_mov_b32 v60, {L_QF}\nv_mov_b32 v61, 2\nds_write_b32 v60, v61")
        a("s_mov_b32 s49, 0")
        a("s_branch L_ag_chk")
        a("L_ag_poll:")
        agloads(24)
        a("L_ag_chk:")
        a("s_waitcnt vmcnt(0)")
        tagcheck(8, [25, 27, 29, 31, 33, 35])
        poll_end("ag", 8, sleep=AGPS, code=2)
    else:
        poll_begin("ag")
        agloads(24)
        a("s_waitcnt vmcnt(0)")
        tagcheck(8, [25, 27, 29, 31, 33, 35])
        poll_end("ag", 8, sleep=AGPS, code=2)
    if not SD: stamp(4)
    a("v_max_f32 v36, v28, v32")
    allreduce("v_max_f32", 36, 37, rors=())
    a(f"""
    v_sub_f32 v28, v28, v36
    v_sub_f32 v32, v32, v36
    v_mul_f32 v28, s60, v28
    v_mul_f32 v32, s60, v32
    v_exp_f32 v28, v28
    v_exp_f32 v32, v32
    s_nop 0
    v_mul_f32 v38, v28, v30
    v_mul_f32 v39, v28, v24
    v_fmac_f32 v38, v32, v34
    v_fmac_f32 v39, v32, v26
    v_mov_b32 v36, v38
    v_mov_b32 v37, v39
    s_nop 0
    v_permlane16_swap_b32 v38, v36
    v_permlane16_swap_b32 v39, v37
    v_add_f32 v38, v38, v36
    v_add_f32 v39, v39, v37
    v_mov_b32 v36, v38
    v_mov_b32 v37, v39
    s_nop 0
    v_permlane32_swap_b32 v38, v36
    v_permlane32_swap_b32 v39, v37
    v_add_f32 v38, v38, v36
    v_add_f32 v39, v39, v37
    v_rcp_f32 v40, v38
    s_nop 0
    """)
    div_refined(41, 39, 38, 40, 37)
    a("v_cvt_pk_bf16_f32 v41, v41, v41")
    a(f"""
    ds_bpermute_b32 v44, v56, v41
    ds_bpermute_b32 v45, v57, v41
    s_waitcnt vmcnt(0) lgkmcnt(0)
    """)
    job8(WB, 2, [44, 45], AB)
    job8_publish(AB, PR, 20, YAF)
    if not SD: stamp(5)
    stamp_store(6)
    a("s_endpgm")

    a("L_helperB:")
    if ORD2: a("s_barrier\ns_barrier")
    if ORD3: a("s_barrier")
    T0[0] = 46
    W1B = 52; W2B = 148
    a(f"""
    s_mul_i32 s50, s2, 43691
    s_lshr_b32 s50, s50, 18
    s_mul_i32 s30, s50, 6
    s_sub_u32 s51, s2, s30           ; rs
    s_mul_i32 s48, s51, 96
    """)
    ln_loads(48)
    a(f"""
    s_mov_b32 s36, s20
    s_mov_b32 s37, s21
    s_mov_b32 s38, {576*9216}
    s_mov_b32 s39, 0x20000
    v_add_u32 v23, s48, v2
    s_movk_i32 s31, 9216
    v_mul_lo_u32 v23, v23, s31
    v_lshl_add_u32 v23, v3, 4, v23
    s_lshl_b32 s30, s50, 8
    v_add_u32 v23, s30, v23
    s_cmp_lt_u32 s2, 216
    s_cbranch_scc1 L_hasw1
    v_mov_b32 v23, 0x7f000000
    L_hasw1:
    """)
    if B0: a("s_barrier")
    for j in range(24):
        a(f"s_mov_b32 s31, {j*36864}")
        a(f"buffer_load_dwordx4 v[{W1B+4*j}:{W1B+4*j+3}], v23, s[36:39], s31 offen {NT}")
    def w2_loads():
        a(f"""
        s_mul_i32 s86, s2, 9
        s_lshr_b32 s87, s86, 2           ; b0
        s_add_u32 s86, s86, 9
        s_lshr_b32 s86, s86, 2
        s_sub_u32 s86, s86, s87          ; cnt
        s_mov_b32 s40, s22
        s_mov_b32 s41, s23
        s_mov_b32 s42, {4608*1152}
        s_mov_b32 s43, 0x20000
        v_lshrrev_b32 v40, 3, v3
        v_lshl_add_u32 v40, v2, 1, v40
        s_lshl_b32 s30, s87, 3
        v_add_u32 v40, s30, v40
        s_movk_i32 s31, 1152
        v_mul_lo_u32 v40, v40, s31
        v_and_b32 v41, 7, v3
        v_lshl_add_u32 v40, v41, 4, v40
        v_add_u32 v41, 9216, v40
        v_add_u32 v42, 18432, v40
        s_cmp_eq_u32 s86, 3
        s_cbranch_scc1 L_cnt3
        v_mov_b32 v42, 0x7f000000
        L_cnt3:
        """)
        for bb in range(3):
            for blk in range(9):
                j = bb * 9 + blk
                a(f"buffer_load_dwordx4 v[{W2B+4*j}:{W2B+4*j+3}], v{40+bb}, s[40:43], 0 offen offset:{blk*128} {NT}")
    if ORD3: a("s_barrier")
    if W2EARLY: w2_loads()
    if TW:
        a(f"""
        s_lshl_b32 s30, s4, 23
        s_add_u32 s32, s12, s30
        s_addc_u32 s33, s13, 0
        s_mov_b32 s34, 0x800000
        s_mov_b32 s35, 0x20000
        v_and_b32 v43, 7, v0
        v_lshlrev_b32 v43, 20, v43
        s_mul_i32 s31, s2, 0x1500
        s_and_b32 s31, s31, 0x7f00
        s_add_u32 s31, s31, 0xf0000
        v_add_u32 v43, s31, v43
        v_mov_b32 v44, 0x7f000000
        v_cmp_gt_u32 vcc, 8, v0
        s_nop 1
        v_cndmask_b32 v43, v44, v43, vcc
        buffer_load_dword v45, v43, s[32:35], 0 offen {NT}
        s_add_u32 s32, s10, s30
        s_addc_u32 s33, s11, 0
        buffer_load_dword v45, v43, s[32:35], 0 offen {NT}
        v_lshlrev_b32 v43, 20, v0
        s_lshl_b32 s31, s2, 8
        v_add_u32 v43, s31, v43
        v_cmp_gt_u32 vcc, 9, v0
        s_nop 1
        v_cndmask_b32 v43, v44, v43, vcc
        buffer_load_dword v45, v43, s[44:47], 0 offen
        s_mov_b32 s32, s24
        s_mov_b32 s33, s25
        s_mov_b32 s34, 1152
        v_mov_b32 v43, 0
        s_mov_b64 exec, 1
        buffer_load_dword v45, v43, s[32:35], 0 offen
        s_mov_b64 exec, -1
        """)
    make_masks(20, 21)
    if not QF: a("s_barrier")
    if NOFFN: a("s_waitcnt vmcnt(0) lgkmcnt(0)"); make_tag(); a("s_branch L_ffn_done")
    nyo = (27 if W2EARLY else 0) + (4 if TW else 0)
    a(f"s_waitcnt vmcnt({24 + nyo})")
    ln_compute()
    job4(W1B, 24, nyo)
    a(f"s_waitcnt lgkmcnt(0)")
    make_tag()
    a(f"""
    v_lshlrev_b32 v24, 4, v0
    s_mul_i32 s30, s51, {4608*8}
    s_lshl_b32 s31, s50, 10
    s_add_u32 s30, s30, s31
    s_add_u32 s30, s30, {HG}
    v_add_u32 v24, s30, v24
    v_mov_b32 v21, s6
    v_mov_b32 v23, s6
    s_cmp_lt_u32 s2, 216
    s_cbranch_scc0 L_nopubh
    buffer_store_dwordx4 v[20:23], v24, s[44:47], 0 offen {HF}
    L_nopubh:
    """)
    stamp(1)
    if not W2EARLY: w2_loads()
    a(f"""
    v_lshrrev_b32 v4, 5, v0
    s_mov_b32 s31, {4608*8}
    v_mul_lo_u32 v4, v4, s31
    v_and_b32 v5, 31, v0
    s_lshl_b32 s30, s86, 3
    v_cmp_gt_u32 s[54:55], s30, v5
    s_lshl_b32 s30, s87, 3
    v_add_u32 v5, s30, v5
    v_lshrrev_b32 v6, 4, v5
    v_lshlrev_b32 v6, 3, v6                 ; *8 lanes
    v_and_b32 v7, 7, v5
    v_add_u32 v6, v6, v7
    v_lshlrev_b32 v6, 4, v6
    v_bfe_u32 v7, v5, 3, 1
    v_lshl_add_u32 v6, v7, 3, v6
    v_add_u32 v4, v4, v6
    v_add_u32 v4, {HG}, v4
    v_add_u32 v5, {2*4608*8}, v4
    v_add_u32 v6, {4*4608*8}, v4
    """)
    AB = 52; PR = 88
    job8_zero(AB)
    for t in range(3): a(f"v_mov_b32 v{PR+4*t+3}, s6")
    job8_addr(YBb, 20)
    if HLATE: wait_kdone("hb", 40)
    poll_begin("h")
    a(f"""
    buffer_load_dwordx2 v[28:29], v4, s[44:47], 0 offen {HF}
    buffer_load_dwordx2 v[30:31], v5, s[44:47], 0 offen {HF}
    buffer_load_dwordx2 v[32:33], v6, s[44:47], 0 offen {HF}
    s_waitcnt vmcnt(0)
    """)
    tagcheck(8, [29, 31, 33])
    a("v_cndmask_b32 v8, 0, v8, s[54:55]")
    poll_end("h", 8, sleep=HSLEEP, code=3)
    a(f"""
    v_add_f32 v28, v28, v30
    v_add_f32 v28, v28, v32
    v_cndmask_b32 v28, 0, v28, s[54:55]
    v_mov_b32 v29, v28
    s_nop 1
    v_permlane32_swap_b32 v28, v29
    v_add_f32 v28, v28, v29
    """)
    to_bf16f(28, 28)
    a(f"""
    s_mov_b32 s60, {LOG2E:#x}
    v_mul_f32 v29, s60, v28
    v_exp_f32 v29, -v29
    s_nop 0
    v_add_f32 v29, 1.0, v29
    v_rcp_f32 v30, v29
    s_nop 0
    v_mul_f32 v31, v28, v30
    v_cvt_pk_bf16_f32 v31, v31, v31
    v_lshrrev_b32 v32, 3, v3
    v_lshl_add_u32 v32, v2, 1, v32
    v_lshlrev_b32 v32, 2, v32
    v_add_u32 v33, 32, v32
    v_add_u32 v34, 64, v32
    ds_bpermute_b32 v36, v32, v31
    ds_bpermute_b32 v37, v33, v31
    ds_bpermute_b32 v38, v34, v31
    s_waitcnt lgkmcnt(0)
    """)
    job8(W2B, 3, [36, 37, 38], AB)
    job8_finish(AB, PR)
    if NOFFN: a("L_ffn_done:"); [a(f"v_mov_b32 v{PR+4*t+3}, s6") for t in range(3)]; job8_addr(YBb, 20)
    stamp(2)
    def yaddr():
        if YPAD:
            a(f"""
            s_lshl_b32 s30, s2, 15
            v_lshrrev_b32 v4, 2, v0
            v_lshlrev_b32 v4, 7, v4
            v_and_b32 v5, 3, v0
            v_lshl_add_u32 v4, v5, 4, v4
            v_add_u32 v4, s30, v4
            v_add_u32 v5, 8192, v4
            v_add_u32 v6, 16384, v4
            v_add_u32 v7, 24576, v4
            """)
        else:
            a(f"""
            s_lshl_b32 s30, s2, {YSH}
            v_lshlrev_b32 v4, 4, v0
            v_add_u32 v4, s30, v4
            v_add_u32 v5, 4096, v4
            v_add_u32 v6, 8192, v4
            v_add_u32 v7, 12288, v4
            """)
        a(f"s_mov_b32 s88, {YBb}\ns_mov_b32 s89, {YA}")
    def yloads(G, sbase, fl):
        for i in range(NL):
            if YPAD:
                a(f"s_add_u32 s90, {sbase}, {(i & 3) * 2048}")
                a(f"buffer_load_dwordx4 v[{G+4*i}:{G+4*i+3}], v{4 + (i >> 2)}, s[44:47], s90 offen {fl}")
            else:
                a(f"buffer_load_dwordx4 v[{G+4*i}:{G+4*i+3}], v{4 + (i >> 2)}, s[44:47], {sbase} offen offset:{(i & 3)*1024} {fl}")
    def ycheck(G):
        tagcheck(8, [G + 4*i + 3 for i in range(NL)])
        a("v_cmp_ne_u32 vcc, 0, v8")
    def ysum(d, G):
        st = 1
        while st < NL:
            for i in range(0, NL, 2 * st):
                x, y = G + 4*i, G + 4*(i + st)
                a(f"v_pk_add_f32 v[{x}:{x+1}], v[{x}:{x+1}], v[{y}:{y+1}]")
                a(f"v_add_f32 v{x+2}, v{x+2}, v{y+2}")
            st *= 2
        R = [G, G + 1, G + 2]; Tm = [G + 4, G + 5, G + 6]
        a.nop(1)
        for n in ((2, 4, 8) if R96 else (4, 8)):
            for x in R: a(f"v_add_f32_dpp v{x}, v{x}, v{x} row_ror:{n} row_mask:0xf bank_mask:0xf")
        for sw in ("16", "32"):
            for x, t in zip(R, Tm): a(f"v_mov_b32 v{t}, v{x}")
            for x, t in zip(R, Tm): a(f"v_permlane{sw}_swap_b32 v{x}, v{t}")
            for x, t in zip(R, Tm): a(f"v_add_f32 v{x}, v{x}, v{t}")
        for k, x in enumerate(R): a(f"v_cvt_pk_bf16_f32 v{d+k}, v{x}, v{x}")
        for k in range(3): a(f"v_and_b32 v{d+k}, 0xffff0000, v{d+k}")
    GA, GB2 = 100, 164
    a(f"""
    s_mov_b32 s32, s8
    s_mov_b32 s33, s9
    s_mov_b32 s34, 1152
    s_mov_b32 s35, 0x20000
    s_lshr_b32 s30, s2, {5 if R96 else 4}
    s_mul_i32 s30, s30, 192
    s_and_b32 s31, s2, {31 if R96 else 15}
    s_lshl_b32 s31, s31, {1 if R96 else 2}
    s_add_u32 s30, s30, s31
    v_and_b32 v10, {1 if R96 else 3}, v0
    v_add_u32 v10, s30, v10
    v_lshlrev_b32 v10, 1, v10
    buffer_load_ushort v12, v10, s[32:35], 0 offen
    buffer_load_ushort v13, v10, s[32:35], 0 offen offset:128
    buffer_load_ushort v14, v10, s[32:35], 0 offen offset:256
    s_mov_b32 s36, s24
    s_mov_b32 s37, s25
    s_mov_b32 s38, 1152
    s_mov_b32 s39, 0x20000
    """)
    yaddr()
    a("s_waitcnt vmcnt(0)")
    a("v_lshlrev_b32 v12, 16, v12\nv_lshlrev_b32 v13, 16, v13\nv_lshlrev_b32 v14, 16, v14")
    stamp(3)
    a("s_barrier")
    if YBL:
        a(f"v_mov_b32 v44, {L_QF}\ns_mov_b32 s49, 0\nL_ybw:\nds_read_b32 v45, v44\ns_add_u32 s49, s49, 1\ns_waitcnt lgkmcnt(0)\nv_readfirstlane_b32 s30, v45")
        a(f"s_cmp_ge_u32 s49, {POLLMAX * 16}\ns_cbranch_scc1 L_ybd\ns_cmp_eq_u32 s30, 2\ns_cbranch_scc0 L_ybw\nL_ybd:")
    job8_store(PR, 20, YBSF)
    a(f"s_cmp_lt_u32 s2, {NRED}")
    a("s_cbranch_scc0 L_notred2")
    poll_begin("yb")
    yloads(GB2, "s88", YBLF)
    a("s_waitcnt vmcnt(0)")
    tagcheck(8, [GB2 + 4*i + 3 for i in range(NL)])
    poll_end("yb", 8, sleep=YBPS, code=4)
    yloads(GA, "s89", YALF)
    ysum(40, GB2)
    if PIPE:
        yloads(GB2, "s89", YALF)
        a("s_mov_b32 s49, 0")
        a("L_ya_poll:")
        a(f"s_waitcnt vmcnt({NL})")
        ycheck(GA)
        a("s_cbranch_vccz L_ya_useA")
        yloads(GA, "s89", YALF)
        a(f"s_waitcnt vmcnt({NL})")
        ycheck(GB2)
        a("s_cbranch_vccz L_ya_useB")
        yloads(GB2, "s89", YALF)
        a("s_add_u32 s49, s49, 1")
        a(f"s_cmp_lt_u32 s49, {POLLMAX}")
        a("s_cbranch_scc1 L_ya_poll")
        if dbg: a("v_mov_b32 v46, 5\nv_mov_b32 v47, 20\nglobal_atomic_or v47, v46, s[26:27]")
        a("L_ya_useB:")
        stamp(4)
        ysum(24, GB2)
        a("s_branch L_ya_fin")
        a("L_ya_useA:")
        stamp(4)
        ysum(24, GA)
        a("L_ya_fin:")
    else:
        a("s_mov_b32 s49, 0")
        a("s_branch L_ya_chk")
        a("L_ya_poll:")
        yloads(GA, "s89", YALF)
        a("L_ya_chk:")
        a("s_waitcnt vmcnt(0)")
        tagcheck(8, [GA + 4*i + 3 for i in range(NL)])
        poll_end("ya", 8, sleep=YAPS, code=5)
        stamp(4)
        ysum(24, GA)
    for k in range(3): a(f"v_add_f32 v{24+k}, v{12+k}, v{24+k}")
    for k in range(3): a(f"v_cvt_pk_bf16_f32 v{24+k}, v{24+k}, v{24+k}")
    for k in range(3): a(f"v_and_b32 v{24+k}, 0xffff0000, v{24+k}")
    for k in range(3): a(f"v_add_f32 v{24+k}, v{24+k}, v{40+k}")
    for k in range(3): a(f"v_cvt_pk_bf16_f32 v{24+k}, v{24+k}, v{24+k}")
    a(f"""
    s_mov_b64 exec, {3 if R96 else 15}
    buffer_store_short v24, v10, s[36:39], 0 offen {OUTF}
    buffer_store_short v25, v10, s[36:39], 0 offen offset:128 {OUTF}
    buffer_store_short v26, v10, s[36:39], 0 offen offset:256 {OUTF}
    s_mov_b64 exec, -1
    s_cmp_eq_u32 s2, 0
    s_cbranch_scc0 L_notred2
    v_mov_b32 v4, {EPOCH}
    v_mov_b32 v5, s6
    s_mov_b64 exec, 1
    buffer_store_dword v5, v4, s[44:47], 0 offen sc1
    s_mov_b64 exec, -1
    L_notred2:
    """)
    stamp(5)
    stamp_store(6, t=46)
    if AGG:
        a("s_cmp_eq_u32 s2, 0\ns_cbranch_scc0 L_end")
        a("s_mov_b32 s49, 0\nL_aggw:\ns_sleep 64\ns_add_u32 s49, s49, 1\ns_cmp_lt_u32 s49, 40\ns_cbranch_scc1 L_aggw")
        Q = [("all", 0, "min"), ("s", 1, "max"), ("s", 2, "max"), ("s", 5, "min"), ("s", 5, "max"), ("s", 3, "min"), ("s", 3, "max"), ("s", 3, "sum"),
             ("a", 1, "max"), ("a", 4, "max"), ("a", 5, "max"), ("b", 4, "max"), ("b", 5, "max"), ("s", 2, "sum"), ("a", 1, "sum"), ("all", 0, "max")]
        a("v_and_b32 v4, 7, v0")
        a("v_cmp_gt_u32 s[52:53], 4, v4\nv_cmp_eq_u32 s[54:55], 4, v4\nv_cmp_eq_u32 s[56:57], 5, v4\nv_cmp_gt_u32 s[58:59], 6, v4")
        for i, (r, idx, op) in enumerate(Q):
            a(f"v_mov_b32 v{100+i}, {'0x7fffffff' if op == 'min' else ('0x80000000' if op == 'max' else 0)}")
        a(f"v_lshlrev_b32 v5, 6, v0\nv_add_u32 v5, {TS}, v5\ns_mov_b32 s49, 0")
        a("L_agg:")
        a("buffer_load_dwordx4 v[8:11], v5, s[44:47], 0 offen sc1\nbuffer_load_dwordx4 v[12:15], v5, s[44:47], 0 offen offset:16 sc1")
        a("s_lshl_b32 s30, s49, 3\nv_lshrrev_b32 v6, 3, v0\nv_add_u32 v6, s30, v6\nv_cmp_gt_u32 s[60:61], 48, v6\ns_and_b64 s[60:61], s[60:61], s[56:57]")
        a("s_waitcnt vmcnt(0)")
        for k in range(8): a(f"v_subrev_u32 v{8+k}, s70, v{8+k}")
        masks = {"all": "s[58:59]", "s": "s[52:53]", "a": "s[54:55]", "b": "s[60:61]"}
        for i, (r, idx, op) in enumerate(Q):
            neutral = {"min": "0x7fffffff", "max": "0x80000000", "sum": "0"}[op]
            a(f"v_mov_b32 v16, {neutral}")
            a(f"v_cndmask_b32 v16, v16, v{8+idx}, {masks[r]}")
            a({"min": f"v_min_i32 v{100+i}, v{100+i}, v16", "max": f"v_max_i32 v{100+i}, v{100+i}, v16", "sum": f"v_add_u32 v{100+i}, v{100+i}, v16"}[op])
        a("v_add_u32 v5, 4096, v5\ns_add_u32 s49, s49, 1\ns_cmp_lt_u32 s49, 32\ns_cbranch_scc1 L_agg")
        for i, (r, idx, op) in enumerate(Q):
            allreduce({"min": "v_min_i32", "max": "v_max_i32", "sum": "v_add_u32"}[op], 100 + i, 16)
        a("s_mov_b32 s32, s26\ns_mov_b32 s33, s27\ns_mov_b32 s34, 256\ns_mov_b32 s35, 0x20000\nv_mov_b32 v4, 0\ns_mov_b64 exec, 1")
        for i in range(len(Q)): a(f"buffer_store_dword v{100+i}, v4, s[32:35], 0 offen offset:{4*i}")
        a("s_waitcnt vmcnt(0)")
    a("L_end:")
    a("s_endpgm")
    body = a.text()
    if AFIRST:
        iS = body.index("    s_cbranch_scc1 L_helperB\n") + len("    s_cbranch_scc1 L_helperB\n")
        iA = body.index("L_helperA:"); iB = body.index("L_helperB:")
        head, stream, hA, hB = body[:iS], body[iS:iA], body[iA:iB], body[iB:]
        head = head.replace("    s_cmp_eq_u32 s3, 4\n    s_cbranch_scc1 L_helperA\n", "    s_cmp_lt_u32 s3, 4\n    s_cbranch_scc1 L_stream\n")
        body = head + hA + "L_stream:\n" + stream + hB
    txt = f"""{HEADER}; @launch grid=(256,1,1) block=(384,1,1) lds={LDS}
.amdgcn_target "amdgcn-amd-amdhsa--gfx950"
.text
.globl {KN}
.p2align 8
.type {KN},@function
{KN}:
{body}
.section .rodata,"a"
.p2align 6
.amdhsa_kernel {KN}
  .amdhsa_next_free_vgpr 256
  .amdhsa_next_free_sgpr 96
  .amdhsa_accum_offset 256
  .amdhsa_group_segment_fixed_size 0
  .amdhsa_kernarg_size 88
  .amdhsa_user_sgpr_count 2
  .amdhsa_user_sgpr_kernarg_segment_ptr 1
  .amdhsa_system_sgpr_workgroup_id_x 1
.end_amdhsa_kernel
"""
    return txt

if __name__ == "__main__":
    import argparse
    ap = argparse.ArgumentParser()
    ap.add_argument("out")
    ap.add_argument("--nv", type=int, default=24)
    ap.add_argument("--w", type=int, default=8)
    ap.add_argument("--nohilo", action="store_true")
    ap.add_argument("--ts", action="store_true")
    ap.add_argument("--dbg", action="store_true")
    ap.add_argument("--prog", action="store_true")
    ap.add_argument("--w2late", action="store_true")
    ap.add_argument("--wolate", action="store_true")
    ap.add_argument("--nopf", action="store_true")
    ap.add_argument("--ord2", action="store_true"); ap.add_argument("--cstr", type=int, default=256); ap.add_argument("--cbase", type=lambda x: int(x, 0), default=None); ap.add_argument("--ord3", action="store_true"); ap.add_argument("--noackw", action="store_true"); ap.add_argument("--noffn", action="store_true"); ap.add_argument("--hsleep", type=int, default=16); ap.add_argument("--atomrepl", default=None); ap.add_argument("--nowgt", action="store_true"); ap.add_argument("--noatom", action="store_true"); ap.add_argument("--nosl", action="store_true"); ap.add_argument("--fake", action="store_true"); ap.add_argument("--burst", action="store_true"); ap.add_argument("--rq", type=int, default=-1); ap.add_argument("--batch", type=int, default=0); ap.add_argument("--thr", type=int, default=96)
    ap.add_argument("--sd", action="store_true")
    ap.add_argument("--agg", action="store_true")
    ap.add_argument("--agps", type=int, default=0); ap.add_argument("--yaps", type=int, default=0); ap.add_argument("--afirst", action="store_true"); ap.add_argument("--pf2", action="store_true"); ap.add_argument("--outf", default=""); ap.add_argument("--finx", type=int, default=0); ap.add_argument("--tw", action="store_true"); ap.add_argument("--ybl", action="store_true"); ap.add_argument("--r96", action="store_true"); ap.add_argument("--ypad", action="store_true"); ap.add_argument("--aw", default=None); ap.add_argument("--lt", action="store_true"); ap.add_argument("--wd8", action="store_true"); ap.add_argument("--wot", action="store_true"); ap.add_argument("--pre8", action="store_true"); ap.add_argument("--ybps", type=int, default=0); ap.add_argument("--aglf", default=None); ap.add_argument("--yalf", default=None); ap.add_argument("--pipe", action="store_true"); ap.add_argument("--agsleep", type=int, default=6); ap.add_argument("--noqf", action="store_true"); ap.add_argument("--nohlate", action="store_true"); ap.add_argument("--hf", default="sc1"); ap.add_argument("--qsf", default="sc1"); ap.add_argument("--qlf", default="sc1"); ap.add_argument("--agf", default="sc1"); ap.add_argument("--yaf", default="sc1")
    ap.add_argument("--b0", action="store_true"); ap.add_argument("--wog", action="store_true")
    ap.add_argument("--pubf", default="sc1 nt"); ap.add_argument("--slf", default="sc1 nt"); ap.add_argument("--ybsf", default="sc1"); ap.add_argument("--yblf", default="sc1")
    ap.add_argument("--nopub", action="store_true")
    ap.add_argument("--noyb", action="store_true")
    ap.add_argument("--tlb", type=int, default=0)
    args = ap.parse_args()
    t = gen(NV=args.nv, HILO=not args.nohilo, TSTAMP=args.ts, dbg=args.dbg, W=args.w, PROG=args.prog,
            W2EARLY=not args.w2late, WOLATE=args.wolate, PF=not args.nopf, TLB=args.tlb, NOPUB=args.nopub, NOYB=args.noyb, PUBF=args.pubf, SLF=args.slf, YBSF=args.ybsf, YBLF=args.yblf, HF=args.hf, QSF=args.qsf, QLF=args.qlf, AGF=args.agf, YAF=args.yaf, B0=args.b0, WOG=args.wog, AGG=args.agg, SD=args.sd, ORD2=args.ord2, BURST=args.burst, RQ=args.rq, BATCH=args.batch, THR=args.thr, FAKE=args.fake, NOATOM=args.noatom, NOSL=args.nosl, WGT=not args.nowgt, ATOMREPL=args.atomrepl, CSTR=args.cstr, CBASE=args.cbase, ORD3=args.ord3, ACKW=not args.noackw, NOFFN=args.noffn, HSLEEP=args.hsleep, QF=not args.noqf, HLATE=not args.nohlate, PIPE=args.pipe, AGSLEEP=args.agsleep, AGLF=args.aglf, YALF=args.yalf, AGPS=args.agps, YAPS=args.yaps, YBPS=args.ybps, WOT=args.wot, PRE8=args.pre8, WD8=args.wd8, LT=args.lt, YPAD=args.ypad, R96=args.r96, YBL=args.ybl, TW=args.tw, FINX=args.finx, OUTF=args.outf, PF2=args.pf2, AFIRST=args.afirst, AW=(tuple(int(x) for x in args.aw.split(',')) if args.aw else None))
    errs = hazard.check(t)
    for e in errs: print("HAZARD", e)
    open(args.out, "w").write(t)
```
